```python
import torch

def _softmax(x, axis=-1):
    return torch.softmax(x, dim=axis)

def _gelu(x):
    return torch.nn.functional.gelu(x, approximate='tanh')

def _silu(x):
    return torch.nn.functional.silu(x)

def _sigmoid(x):
    return torch.sigmoid(x)

def _layernorm(x, axis=-1, eps=1e-05):
    m = x.mean(dim=axis, keepdim=True)
    v = x.var(dim=axis, keepdim=True, unbiased=False)
    return (x - m) / torch.sqrt(v + eps)

def _scatter_add(tgt, idx, src, axis=0):
    return tgt.clone().index_add_(axis, idx, src)

def _segment_sum(src, seg, n):
    out = torch.zeros((n,) + src.shape[1:], dtype=src.dtype)
    return out.index_add_(0, seg, src)

def _pad(x, pw):
    flat = tuple((v for pair in reversed(pw) for v in pair))
    return torch.nn.functional.pad(x, flat)
kernel_name = 'standalone__varlen_attn_packed__ragged'

def setup_inputs():

    _w = lambda a: (lambda t: t.to(torch.bfloat16) if t.is_floating_point() else t)(torch.as_tensor(a))
    cu = torch.tensor([0, 321, 555, 878, 1299, 1551, 1670, 1878, 2181, 2351, 2646, 2810, 3248, 3471, 3811, 4169, 4391], dtype=torch.int64)
    T, H, D = (int(cu[-1]), 16, 128)
    return {'q': _w((lambda *s: torch.randn(*s, dtype=torch.bfloat16) * 0.8)(T, H, D)), 'k': _w((lambda *s: torch.randn(*s, dtype=torch.bfloat16) * 0.8)(T, H, D)), 'v': _w((lambda *s: torch.randn(*s, dtype=torch.bfloat16) * 0.05)(T, H, D)), 'cu': _w(cu)}

def reference(q, k, v, cu):
    T, H, D = q.shape
    out = torch.zeros_like(q)
    scale = D ** (-0.5)
    outs = []
    for i in range(len(cu) - 1):
        s, e = (int(cu[i]), int(cu[i + 1]))
        qi, ki, vi = (q[s:e].clone(), k[s:e].clone(), v[s:e].clone())
        p = _softmax(torch.einsum('qhd,khd->hqk', qi, ki) * scale, axis=-1)
        outs.append(torch.einsum('hqk,khd->qhd', p, vi))
    return torch.concatenate(outs, axis=0)
```

```python
CU = [0, 321, 555, 878, 1299, 1551, 1670, 1878, 2181, 2351, 2646, 2810, 3248, 3471, 3811, 4169, 4391]
L = [CU[i + 1] - CU[i] for i in range(16)]
NT = [(l + 31) // 32 for l in L]
RING = 16
NCONS = 8


def pairs_with(n):
    return [(s, hb) for s in range(16) if NT[s] == n for hb in (0, 1)]


def hand_plan():
    plan = []
    W = list(range(8))

    def job(p, blocks, waves):
        assert len(blocks) == len(waves)
        return (p[0], p[1], list(zip(waves, blocks)))
    p14, p12, p11, p10, p8, p7, p6, p4 = (pairs_with(n) for n in (14, 12, 11, 10, 8, 7, 6, 4))
    for p in p14:
        plan.append([job(p, list(range(0, 7)), W[:7])])
        plan.append([job(p, list(range(7, 14)), W[:7])])
    A, B, C = [], [], []
    for p in p12:
        plan.append([job(p, list(range(8)), W)])
        A.append((p, list(range(8, 12))))
    for p in p11:
        plan.append([job(p, list(range(8)), W)])
        B.append((p, list(range(8, 11))))
    for i, p in enumerate(p10):
        cu = [job(p, list(range(8)), W)]
        if i < 2:
            cu.append(job(p4[i], list(range(4)), W[:4]))
        plan.append(cu)
        C.append((p, list(range(8, 10))))
    for i, p in enumerate(p8):
        plan.append([job(p, list(range(8)), W), job(B[i][0], B[i][1], W[:3])])
    for i in range(3):
        plan.append([job(p7[2 * i], list(range(7)), W[:7]), job(p7[2 * i + 1], list(range(7)), W[:7])])
    for i in range(2):
        plan.append([job(A[i][0], A[i][1], W[:4]), job(B[4 + i][0], B[4 + i][1], W[4:7])])
    for i in range(2):
        plan.append([job(p6[2 * i], list(range(6)), W[:6]), job(C[i][0], C[i][1], W[6:8]),
                     job(p6[2 * i + 1], list(range(6)), W[:6])])
    plan.append([job(C[2][0], C[2][1], [0, 1]), job(C[3][0], C[3][1], [2, 3])])
    assert len(plan) == 32, len(plan)
    return plan


def check_plan(plan):
    seen = set()
    for cu in plan:
        for s, hb, tasks in cu:
            for w, qb in tasks:
                assert 0 <= qb < NT[s] and (s, hb, qb) not in seen
                seen.add((s, hb, qb))
    assert len(seen) == 2 * sum(NT), len(seen)


def build_stream(cu, tau=1000, gap=1200):
    wave_t = [0] * NCONS
    ev = []
    for ji, (s, hb, tasks) in enumerate(cu):
        n = NT[s]
        start = min(wave_t[w] for w, _ in tasks)
        ev.append((start - 2, ji, 0, ('K', ji, 0)))
        for x, (w, qb) in enumerate(tasks):
            ev.append((max(start, wave_t[w] - 0) - 1, ji, 1 + x, ('Q', ji, x)))
        for t in range(n):
            if t > 0:
                ev.append((start + t * tau - tau // 2, ji, 0, ('K', ji, t)))
            ev.append((start + t * tau + (0 if t == 0 else tau // 4), ji, 50, ('V', ji, t)))
        for w, _ in tasks:
            wave_t[w] = max(wave_t[w], start) + n * tau + gap
    ev.sort(key=lambda e: (e[0] if e[0] % tau not in (tau - 1, tau - 2) else e[0] - e[0] % tau + tau - 2, e[1], e[2]))
    idx = {e[3]: i for i, e in enumerate(ev)}
    items = []
    for e in ev:
        ty, ji, x = e[3]
        s, hb, tasks = cu[ji]
        blk = tasks[x][1] if ty == 'Q' else x
        row0 = CU[s] + 32 * blk
        items.append((ty, row0, hb, min(32, CU[s + 1] - row0)))
    tl = []
    hdr = [[] for _ in range(NCONS)]
    for ji, (s, hb, tasks) in enumerate(cu):
        n = NT[s]
        tls = len(tl)
        for t in range(n):
            tl.append((idx[('K', ji, t + 1)] if t + 1 < n else 0, idx[('V', ji, t)]))
            assert idx[('K', ji, t)] < idx[('V', ji, t)]
            if t + 1 < n:
                assert idx[('V', ji, t)] < idx[('K', ji, t + 1)]
        for x, (w, qb) in enumerate(tasks):
            row0 = CU[s] + 32 * qb
            hdr[w].append(dict(row0=row0, hb=hb, nvq=min(32, CU[s + 1] - row0), n=n, qitem=idx[('Q', ji, x)],
                               k0=idx[('K', ji, 0)], tls=tls, nvl=L[s] - 32 * (n - 1)))
    for w in range(NCONS):
        last_needed = -1
        for h in hdr[w]:
            prog = min(h['qitem'], h['k0'])
            assert prog > last_needed, (prog, last_needed)
            assert max(h['qitem'], h['k0']) - prog <= RING - 1
            for t in range(h['n']):
                kn, vn = tl[h['tls'] + t]
                assert kn - prog <= RING - 1, (kn, prog)
                prog = vn
                last_needed = vn
            last_needed = max(last_needed, h['qitem'])
    assert len(items) <= 60 and len(tl) <= 64 and all(len(h) <= 3 for h in hdr), (len(items), len(tl))
    return items, tl, hdr


if __name__ == '__main__':
    plan = hand_plan()
    check_plan(plan)
    for i, cu in enumerate(plan):
        items, tl, hdr = build_stream(cu)
        load = [0] * 4
        for s, hb, tasks in cu:
            for w, qb in tasks:
                load[w % 4] += NT[s]
        print(i, [(NT[s], len(t)) for s, hb, t in cu], 'items', len(items), 'load', load)
        print('   ', ' '.join(f'{ty}{(r0)}' for ty, r0, hb, nv in items[:26]))
```

```python
import sys, os, argparse, struct, math
sys.path.insert(0, os.path.dirname(os.path.abspath(__file__)))
import plan as PL

NAME = 'standalone__varlen_attn_packed__ragged_kernel'
SLOT = 8704
RINGB = 16 * SLOT
FULLA = RINGB
PROGA = RINGB + 16
LDS = RINGB + 64
KST, VST = 1056, 1088


def f2u(x):
    return struct.unpack('<I', struct.pack('<f', x))[0]


class Gen:
    def __init__(self, o):
        self.o = o
        self.L = []

    def e(self, s):
        self.L.append('    ' + s)

    def lab(self, s):
        self.L.append(s + ':')

    def many(self, txt):
        for l in txt.strip().split('\n'):
            l = l.strip()
            if not l:
                continue
            if l.endswith(':'):
                self.L.append(l)
            else:
                self.e(l)

    def stamp(self, real=False):
        if not self.o.stamps:
            return
        self.e('s_memrealtime s[96:97]' if real else 's_memtime s[96:97]')
        self.e('s_waitcnt lgkmcnt(0)')
        self.stampval('s96')

    def stampval(self, s):
        if not self.o.stamps:
            return
        self.e('s_mov_b32 m0, s98')
        self.e('s_add_u32 s98, s98, 1')
        self.e(f'v_writelane_b32 v167, {s}, m0')

    def stamp_out(self):
        if not self.o.stamps:
            return
        self.many(f'''
            s_load_dwordx2 s[94:95], s[0:1], 48
            s_mul_i32 s96, s2, 12
            s_add_u32 s96, s96, s14
            s_lshl_b32 s96, s96, 8
            v_mbcnt_lo_u32_b32 v1, -1, 0
            v_mbcnt_hi_u32_b32 v1, -1, v1
            v_lshlrev_b32 v1, 2, v1
            v_add_u32 v1, s96, v1
            s_waitcnt lgkmcnt(0)
            global_store_dword v1, v167, s[94:95]
        ''')


O = 0
Q = 64
S = 96
P = 112
POOL = 120
vKb, vVb, vK, vV, vL, vNM, vLT, vTL = 152, 153, 154, 155, 156, 157, 158, 159
FL = 160
vFA, vPA, vOut = 164, 165, 166
sNeed, sVit, sKs, sVs, sE, sT, sP, sSpin, sFresh, sC, sNC, sThr, sFirst = \
    's36', 's37', 's38', 's39', 's40', 's41', 's42', 's43', 's44', 's45', 's46', 's47', 's48'


def r(a, n):
    return f'v[{a}:{a + n - 1}]'


def pool(i):
    return r(POOL + 4 * i, 4)


def qk(i, c0=False):
    c = '0' if c0 else r(S, 16)
    return f'v_mfma_f32_32x32x16_bf16 {r(S, 16)}, {pool(i)}, {r(Q + 4 * i, 4)}, {c}'


def pv(slot, b, j):
    return f'v_mfma_f32_32x32x16_bf16 {r(O + 16 * b, 16)}, {pool(slot)}, {r(P + 4 * j, 4)}, {r(O + 16 * b, 16)}'


def kread(slot, s, addr):
    return f'ds_read_b128 {pool(slot)}, v{addr} offset:{32 * s}'


def vread(slot, b, j):
    return [f'ds_read_b64_tr_b16 {r(POOL + 4 * slot + 2 * eh, 2)}, v{vV} offset:{(2 * j + eh) * 256 + 64 * b}'
            for eh in (0, 1)]


def fma(i):
    return f'v_fma_f32 v{S + i}, v{S + i}, {sC}, v{vNM}'


def ex(i):
    return f'v_exp_f32 v{S + i}, v{S + i}'


def add(i):
    if i == 0:
        return None
    if i == 1:
        return f'v_add_f32 v{vLT}, v{S}, v{S + 1}'
    return f'v_add_f32 v{vLT}, v{vLT}, v{S + i}'


def cvt(k):
    return f'v_cvt_pk_bf16_f32 v{P + k}, v{S + 2 * k}, v{S + 2 * k + 1}'


def lds_pub(g, addr, val):
    g.many(f'''
        s_mov_b64 exec, 1
        ds_write_b32 v{addr}, v{val}
        s_mov_b64 exec, -1
    ''')


def poll(g, tag):
    g.many(f'''
        s_cmp_gt_u32 {sP}, {sNeed}
        s_cbranch_scc1 POLLOK_{tag}
    POLL_{tag}:
        ds_read_b128 {r(FL, 4)}, v{vFA}
        s_waitcnt lgkmcnt(0)
        v_min3_u32 v{FL}, v{FL}, v{FL + 1}, v{FL + 2}
        v_min_u32 v{FL}, v{FL}, v{FL + 3}
        s_sub_u32 {sSpin}, {sSpin}, 1
        s_cbranch_scc1 END
        v_readfirstlane_b32 {sP}, v{FL}
        s_cmp_gt_u32 {sP}, {sNeed}
        s_cbranch_scc1 POLLOK_{tag}
        s_sleep 1
        s_branch POLL_{tag}
    POLLOK_{tag}:
    ''')


def gen_loader(g):
    o = g.o
    DMAX = o.dmax
    nt = ' nt' if o.nt else ''
    vKQ, vVV = 8, 16
    g.lab('LOADER')
    g.many(f'''
        s_setprio 3
        s_lshl_b32 s3, s14, 2
        s_add_u32 s3, s3, {FULLA}
        v_mov_b32 v2, s14
        v_mov_b32 v3, s3
        v_mov_b32 v4, {PROGA}
    ''')
    lds_pub(g, 3, 2)
    g.many(f'''
        v_lshrrev_b32 v5, 4, v0
        v_and_b32 v6, 15, v0
        v_lshrrev_b32 v7, 5, v0
        v_xor_b32 v7, v7, v6
        v_lshlrev_b32 v5, 12, v5
        v_lshl_add_u32 v6, v6, 4, v5
        v_lshl_add_u32 v7, v7, 4, v5
    ''')
    for p in range(8):
        g.e(f'v_add_u32 v{vKQ + p}, {p * 16384 - (p % 4) * KST}, v7')
        g.e(f'v_add_u32 v{vVV + p}, {p * 16384 - (p % 4) * VST}, v6')
    g.many(f'''
        s_mov_b32 s35, 0x00020000
        s_mov_b32 s36, 0
        s_mov_b32 s37, s14
        s_mov_b32 s38, 0
        s_mov_b32 s39, s14
        s_mov_b32 s40, 16
        s_mov_b32 s43, 0x40000
        s_mov_b32 s46, 1
        s_waitcnt lgkmcnt(0)
    ''')
    g.stamp()
    g.many(f'''
        s_add_u32 s4, s4, s15
        s_addc_u32 s5, s5, 0
        s_add_u32 s6, s6, s15
        s_addc_u32 s7, s7, 0
        s_add_u32 s8, s8, s15
        s_addc_u32 s9, s9, 0
    L_NEXT:
        s_mov_b32 m0, s36
        s_and_b32 s45, s37, 15
        s_movrels_b32 s41, s16
        s_mul_i32 s45, s45, {SLOT}
        s_cmp_eq_u32 s41, 0
        s_cbranch_scc1 L_DRAIN
    L_CHK:
        s_cmp_ge_u32 s38, {DMAX}
        s_cbranch_scc1 L_WAIT
        s_cmp_lt_u32 s37, s40
        s_cbranch_scc1 L_ISSUE
        ds_read_b128 v[24:27], v4
        ds_read_b128 v[28:31], v4 offset:16
        s_waitcnt lgkmcnt(0)
        v_min3_u32 v24, v24, v25, v26
        v_min3_u32 v27, v27, v28, v29
        v_min3_u32 v24, v24, v30, v31
        v_min_u32 v24, v24, v27
        s_nop 0
        v_readfirstlane_b32 s40, v24
        s_add_u32 s40, s40, 16
        s_cmp_lt_u32 s37, s40
        s_cbranch_scc1 L_ISSUE
        s_cmp_gt_u32 s38, 0
        s_cbranch_scc1 L_WAIT
        s_sub_u32 s43, s43, 1
        s_cbranch_scc1 END
        s_sleep 1
        s_branch L_CHK
    L_ISSUE:
        s_and_b32 s42, s41, 0x1ffff
        s_lshl_b32 s42, s42, 8
        s_bfe_u32 s34, s41, 0x60013
        s_lshl_b32 s34, s34, 12
        s_sub_u32 s34, s34, 3840
        s_mov_b32 m0, s45
        s_bitcmp1_b32 s41, 18
        s_cbranch_scc1 L_V
        s_bitcmp1_b32 s41, 17
        s_cselect_b64 s[32:33], s[6:7], s[4:5]
        s_add_u32 s32, s32, s42
        s_addc_u32 s33, s33, 0
    ''')
    for p in range(8):
        if p == 4:
            g.e(f's_add_u32 m0, s45, {4 * KST}')
            g.e('s_nop 0')
        g.e(f'buffer_load_dwordx4 v{vKQ + p}, s[32:35], 0 offen offset:{(p % 4) * KST}{nt} lds')
    g.many(f'''
        s_branch L_DONE
    L_V:
        s_add_u32 s32, s8, s42
        s_addc_u32 s33, s9, 0
    ''')
    for p in range(8):
        if p == 4:
            g.e(f's_add_u32 m0, s45, {4 * VST}')
            g.e('s_nop 0')
        g.e(f'buffer_load_dwordx4 v{vVV + p}, s[32:35], 0 offen offset:{(p % 4) * VST}{nt} lds')
    g.many(f'''
    L_DONE:
        s_add_u32 s36, s36, 1
        s_add_u32 s37, s37, 4
        s_add_u32 s38, s38, 1
        s_branch L_NEXT
    L_DRAIN:
        s_cmp_eq_u32 s38, 0
        s_cbranch_scc1 L_END
    L_WAIT:
        s_cmp_eq_u32 s46, 0
        s_cbranch_scc1 L_W0
        s_mov_b32 s46, 0
    ''')
    g.stamp()
    g.e('s_barrier')
    g.lab('L_W0')
    for k in range(1, DMAX):
        g.e(f's_cmp_eq_u32 s38, {k}')
        g.e(f's_cbranch_scc1 L_W{k}x')
    g.e(f's_waitcnt vmcnt({8 * (DMAX - 1)})')
    g.e('s_branch L_PUB')
    for k in range(DMAX - 1, 0, -1):
        g.lab(f'L_W{k}x')
        g.e(f's_waitcnt vmcnt({8 * (k - 1)})')
        if k != 1:
            g.e('s_branch L_PUB')
    g.many(f'''
    L_PUB:
        s_add_u32 s39, s39, 4
        v_mov_b32 v2, s39
    ''')
    lds_pub(g, 3, 2)
    g.e('s_sub_u32 s38, s38, 1')
    g.stamp()
    g.many(f'''
        s_cmp_eq_u32 s41, 0
        s_cbranch_scc1 L_DRAIN
        s_branch L_CHK
    L_END:
    ''')
    g.stamp_out()
    g.e('s_endpgm')


def gen_consumer(g):
    o = g.o
    c = 128 ** -0.5 * math.log2(math.e)
    st = o.stpol
    g.lab('CONSUMER')
    g.many(f'''
        v_lshlrev_b32 v1, 2, v0
        global_load_dword v{vTL}, v1, s[12:13] offset:768
        s_lshl_b32 s3, s14, 2
        s_add_u32 s3, s3, {PROGA - 16}
        v_mov_b32 v{vFA}, {FULLA}
        v_mov_b32 v{vPA}, s3
        v_and_b32 v1, 7, v0
        v_mul_u32_u24 v{vKb}, {KST}, v1
        v_bfe_u32 v2, v0, 3, 2
        v_lshl_add_u32 v{vKb}, v2, 8, v{vKb}
        v_lshrrev_b32 v3, 5, v0
        v_bfe_u32 v4, v0, 4, 1
        v_xor_b32 v5, v3, v4
        v_lshl_add_u32 v{vKb}, v5, 4, v{vKb}
        v_bfe_u32 v5, v0, 2, 2
        v_lshl_add_u32 v5, v3, 2, v5
        v_mul_u32_u24 v{vVb}, {VST}, v5
        v_lshl_add_u32 v{vVb}, v4, 5, v{vVb}
        v_and_b32 v5, 1, v0
        v_lshl_add_u32 v{vVb}, v5, 4, v{vVb}
        v_bfe_u32 v5, v0, 1, 1
        v_lshl_add_u32 v{vVb}, v5, 3, v{vVb}
        v_bfe_u32 v5, v0, 2, 1
        v_lshl_add_u32 v2, v5, 4, v2
        v_and_b32 v5, 3, v0
        v_lshl_add_u32 v2, v5, 2, v2
        v_lshlrev_b32 v2, 12, v2
        v_lshl_add_u32 v{vOut}, v3, 4, v2
        s_mov_b32 {sC}, {hex(f2u(c))}
        s_mov_b32 {sNC}, {hex(f2u(-c))}
        s_mov_b32 {sThr}, {hex(f2u(2.0 ** 24))}
        s_mov_b32 {sP}, 0
        s_mov_b32 {sSpin}, 0x40000
        s_mov_b32 s35, 0x00020000
        s_waitcnt lgkmcnt(0)
        s_lshr_b32 s3, s16, 24
        v_mov_b32 v{FL}, s3
    ''')
    lds_pub(g, vPA, FL)
    g.many(f'''
        s_add_u32 s10, s10, s15
        s_addc_u32 s11, s11, 0
        s_waitcnt vmcnt(0) lgkmcnt(0)
        s_barrier
    ''')
    if o.stamps:
        g.e('s_mov_b32 s99, 0')
    g.stamp()
    g.lab('TASK')
    g.many(f'''
        s_cmp_eq_u32 s17, 0
        s_cbranch_scc1 C_END
        v_mov_b32 v{P}, 0
        v_mov_b32 v{P + 1}, 0
        v_mov_b32 v{P + 2}, 0
        v_mov_b32 v{P + 3}, 0
        v_mov_b32 v{vL}, 0
        v_mov_b32 v{vNM}, 0x7f800000
    ''')
    for b in range(4):
        g.e(f'v_mfma_f32_32x32x16_bf16 {r(O + 16 * b, 16)}, {r(P, 4)}, {r(P, 4)}, 0')
    g.many(f'''
        s_and_b32 {sNeed}, s19, 0xff
        s_bfe_u32 {sT}, s19, 0x80008
        s_bfe_u32 {sVs}, s19, 0x80010
        s_lshr_b32 {sKs}, s19, 24
        v_lshl_add_u32 v{vV}, {sVs}, 9, v{vKb}
        v_lshl_add_u32 v{vK}, {sKs}, 9, v{vKb}
        v_readlane_b32 {sE}, v{vTL}, {sT}
        s_mov_b32 {sFirst}, 1
    ''')
    poll(g, 'T')
    g.stamp()
    for s in range(8):
        g.e(f'ds_read_b128 {r(Q + 4 * s, 4)}, v{vV} offset:{32 * s}')
    g.many(f'''
        s_and_b32 {sNeed}, {sE}, 63
        s_bfe_u32 {sVit}, {sE}, 0x80008
        s_bfe_u32 {sKs}, {sE}, 0x80010
        s_lshr_b32 {sVs}, {sE}, 24
        s_waitcnt lgkmcnt(7)
    ''')
    g.lab('FRESH')
    for s in range(8):
        g.e(kread(s, s, vK))
    g.many(f'''
        s_mov_b32 {sFresh}, 1
        s_bitcmp1_b32 {sE}, 6
        s_cbranch_scc1 MASK
        s_waitcnt lgkmcnt(7)
    ''')
    g.e(qk(0, True))
    g.lab('F_BACK')
    for s in range(1, 8):
        g.e(f's_waitcnt lgkmcnt({7 - s})')
        g.e(qk(s))
    t0, t1 = FL, FL + 1
    g.many(f'''
        s_nop 7
        s_nop 3
        v_max3_f32 v{t0}, v{S}, v{S + 1}, v{S + 2}
        v_max3_f32 v{t1}, v{S + 3}, v{S + 4}, v{S + 5}
        v_max3_f32 v{t0}, v{t0}, v{S + 6}, v{S + 7}
        v_max3_f32 v{t1}, v{t1}, v{S + 8}, v{S + 9}
        v_max3_f32 v{t0}, v{t0}, v{S + 10}, v{S + 11}
        v_max3_f32 v{t1}, v{t1}, v{S + 12}, v{S + 13}
        v_max3_f32 v{t0}, v{t0}, v{S + 14}, v{S + 15}
        v_max_f32 v{t0}, v{t0}, v{t1}
        v_mov_b32 v{t1}, v{t0}
        s_nop 1
        v_permlane32_swap_b32 v{t0}, v{t1}
        v_max_f32 v{t0}, v{t0}, v{t1}
        v_mul_f32 v{t0}, {sNC}, v{t0}
        v_min_f32 v{t0}, v{t0}, v{vNM}
        v_sub_f32 v{t1}, v{t0}, v{vNM}
        v_mov_b32 v{vNM}, v{t0}
        v_exp_f32 v{t1}, v{t1}
        s_cmp_eq_u32 {sFirst}, 0
        s_cbranch_scc1 RESCALE
    R_BACK:
        s_mov_b32 {sFirst}, 0
        v_mul_f32 v{vL}, v{vL}, v{t1}
    ''')
    for i in range(16):
        g.e(fma(i))
    for i in range(16):
        g.e(ex(i))
    for i in range(1, 16):
        g.e(add(i))
    for k in range(8):
        g.e(cvt(k))
    g.stamp()
    g.lab('LATE')
    if o.stamps:
        g.e('s_memtime s[92:93]')
        g.e('s_waitcnt lgkmcnt(0)')
    poll(g, 'L')
    if o.stamps:
        g.e('s_memtime s[96:97]')
        g.e('s_waitcnt lgkmcnt(0)')
        g.e('s_sub_u32 s96, s96, s92')
        g.e('s_add_u32 s99, s99, s96')
    g.e(f'v_lshl_add_u32 v{vV}, {sKs}, 9, v{vKb}')
    for s in range(4):
        g.e(kread(s, s, vV))
    g.lab('LOOP_CONT')
    g.many(f'''
        v_mov_b32 v{FL}, {sVit}
        v_add_f32 v{vL}, v{vL}, v{vLT}
        v_lshl_add_u32 v{vK}, {sKs}, 9, v{vKb}
        v_lshl_add_u32 v{vV}, {sVs}, 9, v{vVb}
    ''')
    lds_pub(g, vPA, FL)
    g.many(f'''
        s_bitcmp1_b32 {sE}, 7
        s_cbranch_scc1 FINAL
        s_add_u32 {sT}, {sT}, 1
    ''')
    for s in range(4, 8):
        g.e(kread(s, s, vK))
    g.many(f'''
        v_readlane_b32 {sE}, v{vTL}, {sT}
        s_mov_b32 {sFresh}, 0
        s_bitcmp1_b32 {sE}, 6
        s_cbranch_scc1 MASK
        s_waitcnt lgkmcnt(4)
    ''')
    g.e(qk(0, True))
    g.lab('L_BACK')
    for m in range(8):
        if m > 0:
            if m == 4:
                g.e('s_waitcnt lgkmcnt(8)')
            g.e(qk(m))
        for x in vread(m, m % 4, m // 4):
            g.e(x)
    g.many(f'''
        ds_read_b128 {r(FL, 4)}, v{vFA}
        s_and_b32 {sNeed}, {sE}, 63
        s_bfe_u32 {sKs}, {sE}, 0x80010
        s_waitcnt lgkmcnt(9)
        {pv(0, 0, 0)}
        v_lshl_add_u32 v{vV}, {sKs}, 9, v{vKb}
        s_bfe_u32 {sVit}, {sE}, 0x80008
        s_lshr_b32 {sVs}, {sE}, 24
        {pv(1, 1, 0)}
        s_nop 0
    ''')
    seq = []
    seq += [fma(i) for i in range(0, 4)] + [ex(i) for i in range(0, 4)]
    seq += [pv(2, 2, 0)]
    seq += [fma(i) for i in range(4, 8)] + [ex(i) for i in range(4, 8)]
    seq += [pv(3, 3, 0)]
    seq += [kread(s, s, vV) for s in range(4)]
    seq += [add(i) for i in range(1, 8)] + [cvt(k) for k in range(4)]
    seq += ['s_waitcnt lgkmcnt(4)', pv(4, 0, 1)]
    seq += [f'v_min3_u32 v{FL}, v{FL}, v{FL + 1}, v{FL + 2}', f'v_min_u32 v{FL}, v{FL}, v{FL + 3}']
    seq += [fma(i) for i in range(8, 12)] + [ex(i) for i in range(8, 12)]
    seq += [pv(5, 1, 1)]
    seq += [f'v_readfirstlane_b32 {sP}, v{FL}']
    seq += [fma(i) for i in range(12, 16)] + [ex(i) for i in range(12, 16)]
    seq += [pv(6, 2, 1)]
    seq += [add(i) for i in range(8, 16)]
    seq += [pv(7, 3, 1)]
    seq += [f'v_cmp_nge_f32 vcc, {sThr}, v{vLT}']
    seq += [cvt(k) for k in range(4, 8)]
    for x in seq:
        g.e(x)
    g.many(f'''
        s_cbranch_vccnz FRESH
        s_cmp_gt_u32 {sP}, {sNeed}
        s_cbranch_scc1 LOOP_CONT
        s_branch LATE
    ''')
    g.lab('FINAL')
    g.stamp()
    order = [(b, j) for b in range(4) for j in range(2)]
    for k in range(5):
        for x in vread(k, *order[k]):
            g.e(x)

    def mul(b):
        return [f'v_mul_f32 v{O + 16 * b + i}, v{O + 16 * b + i}, v{vL}' for i in range(16)]

    def cvst(b):
        out = []
        for gq in range(2):
            for k in range(4):
                i = O + 16 * b + 8 * gq + 2 * k
                out.append(f'v_cvt_pk_bf16_f32 v{Q + 8 * b + 4 * gq + k}, v{i}, v{i + 1}')
            out.append(f'buffer_store_dwordx4 {r(Q + 8 * b + 4 * gq, 4)}, v{vOut}, s[32:35], 0 offen offset:{64 * b + 32 * gq}{st}')
        return out
    seq = []
    seq += [f'v_mov_b32 v{FL + 1}, v{vL}', 's_and_b32 s3, s16, 0x1ffff', 's_lshl_b32 s3, s3, 8',
            f'v_permlane32_swap_b32 v{vL}, v{FL + 1}', 's_add_u32 s32, s10, s3', 's_addc_u32 s33, s11, 0',
            f'v_add_f32 v{vL}, v{vL}, v{FL + 1}', 's_mov_b32 s34, s17', 's_lshr_b32 s3, s20, 24',
            f'v_rcp_f32 v{vL}, v{vL}', f'v_mov_b32 v{FL}, s3']
    seq += ['s_waitcnt lgkmcnt(8)', pv(0, *order[0])] + vread(5, *order[5])
    seq += ['s_waitcnt lgkmcnt(8)', pv(1, *order[1])] + vread(6, *order[6])
    seq += ['s_waitcnt lgkmcnt(8)', pv(2, *order[2])] + vread(7, *order[7])
    seq += ['s_waitcnt lgkmcnt(8)', pv(3, *order[3])]
    seq += ['s_waitcnt lgkmcnt(6)', pv(4, *order[4])]
    seq += ['s_waitcnt lgkmcnt(4)', pv(5, *order[5])]
    seq += ['s_mov_b64 s[16:17], s[20:21]', 's_mov_b64 s[18:19], s[22:23]']
    seq += mul(0)
    seq += ['s_waitcnt lgkmcnt(2)', pv(6, *order[6])]
    seq += cvst(0)
    seq += ['s_waitcnt lgkmcnt(0)', pv(7, *order[7])]
    for x in seq:
        g.e(x)
    lds_pub(g, vPA, FL)
    seq = []
    seq += mul(1) + cvst(1)
    seq += ['s_mov_b64 s[20:21], s[24:25]', 's_mov_b64 s[22:23], s[26:27]']
    seq += mul(2) + cvst(2)
    seq += ['s_mov_b64 s[24:25], s[28:29]', 's_mov_b64 s[26:27], s[30:31]']
    seq += mul(3) + cvst(3)
    for x in seq:
        g.e(x)
    g.stamp()
    g.e('s_branch TASK')
    g.lab('C_END')
    if o.stamps:
        g.e('s_waitcnt vmcnt(0)')
        g.stamp()
        g.stampval('s99')
    g.stamp_out()
    g.lab('END')
    g.e('s_endpgm')
    g.lab('MASK')
    g.many(f'''
        v_mov_b32 v{FL}, s18
        s_mov_b32 exec_lo, 0
        v_lshrrev_b32 v{FL}, 16, v{FL}
        s_mov_b32 exec_lo, -1
    ''')
    for i in range(16):
        bit = 4 * (i % 4) + i // 4
        g.e(f'v_bfe_i32 v{S + i}, v{FL}, {bit}, 1')
    for i in range(16):
        g.e(f'v_lshlrev_b32 v{S + i}, 23, v{S + i}')
    g.many(f'''
        s_waitcnt lgkmcnt(4)
        s_cmp_eq_u32 {sFresh}, 0
        {qk(0)}
        s_cbranch_scc1 L_BACK
        s_branch F_BACK
    RESCALE:
    ''')
    for i in range(64):
        g.e(f'v_mul_f32 v{O + i}, v{O + i}, v{FL + 1}')
    g.e('s_branch R_BACK')


def tables(plan):
    words = []
    for cu in plan:
        items, tl, hdr = PL.build_stream(cu)
        w = [0] * 256
        for i, (ty, row0, hb, nv) in enumerate(items):
            w[(i % 4) * 16 + i // 4] = (row0 * 16 + hb) | ((ty == 'K') << 17) | ((ty == 'V') << 18) | (nv << 19)
        assert len(items) <= 60
        for c in range(8):
            base = 64 + 16 * c
            assert len(hdr[c]) <= 3
            for k, h in enumerate(hdr[c]):
                w[base + 4 * k] = (h['row0'] * 16 + h['hb']) | (min(h['qitem'], h['k0']) << 24)
                w[base + 4 * k + 1] = h['nvq'] * 4096 - 3840
                w[base + 4 * k + 2] = (0xffffffff << h['nvl']) & 0xffffffff
                w[base + 4 * k + 3] = max(h['qitem'], h['k0']) | (h['tls'] << 8) | ((h['qitem'] % 16 * 17) << 16) | \
                    ((h['k0'] % 16 * 17) << 24)
            w[base + 4 * len(hdr[c])] = 255 << 24
        lastpart = {}
        for c in range(8):
            for h in hdr[c]:
                lastpart[h['tls'] + h['n'] - 1] = h['nvl'] < 32
        for t, (kn, vn) in enumerate(tl):
            last = t in lastpart
            w[192 + t] = max(kn, vn) | ((last and lastpart[t]) << 6) | (last << 7) | (vn << 8) | \
                ((kn % 16 * 17) << 16) | ((vn % 16 * 17) << 24)
        words += w
    return words


def main():
    ap = argparse.ArgumentParser()
    ap.add_argument('-o', default='standalone__varlen_attn_packed__ragged.s')
    ap.add_argument('--stamps', action='store_true')
    ap.add_argument('--dmax', type=int, default=4)
    ap.add_argument('--nt', action='store_true')
    ap.add_argument('--stpol', default='')
    o = ap.parse_args()
    if o.stpol:
        o.stpol = ' ' + o.stpol
    g = Gen(o)
    ref = open('standalone__varlen_attn_packed__ragged.s.ref').read().split('\n')
    head = [l for l in ref if l.startswith(';') and '@launch' not in l and ref.index(l) < 12]
    out = head + [f'; @launch grid=(256,1,1) block=(768,1,1) lds={LDS}',
                  '.amdgcn_target "amdgcn-amd-amdhsa--gfx950"', '.text', f'.globl {NAME}', '.p2align 8',
                  f'.type {NAME},@function', f'{NAME}:']
    g.many(f'''
        s_cmp_ge_u32 s2, 256
        s_cbranch_scc1 END
        v_lshrrev_b32 v1, 6, v0
        s_getpc_b64 s[12:13]
    PCREF:
        s_load_dwordx4 s[4:7], s[0:1], 0
        v_readfirstlane_b32 s14, v1
        s_load_dwordx2 s[8:9], s[0:1], 16
        s_lshr_b32 s3, s2, 3
        s_lshl_b32 s3, s3, 10
        s_add_u32 s3, s3, TABLE-PCREF
        s_add_u32 s12, s12, s3
        s_addc_u32 s13, s13, 0
        s_lshl_b32 s3, s14, 6
        s_load_dwordx16 s[16:31], s[12:13], s3
        s_load_dwordx2 s[10:11], s[0:1], 32
        s_and_b32 s15, s2, 7
        s_lshl_b32 s15, s15, 9
        v_and_b32 v0, 63, v0
    ''')
    if o.stamps:
        g.e('s_mov_b32 s98, 0')
        g.e('v_mov_b32 v167, 0')
        g.e('s_memrealtime s[94:95]')
        g.e('s_memtime s[92:93]')
        g.e('s_getreg_b32 s91, hwreg(HW_REG_HW_ID)')
        g.e('s_getreg_b32 s90, hwreg(HW_REG_XCC_ID)')
        g.e('s_waitcnt lgkmcnt(0)')
        g.stampval('s91')
        g.stampval('s90')
        g.stampval('s94')
        g.stampval('s92')
    g.many('''
        s_cmp_ge_u32 s14, 4
        s_cbranch_scc1 CONSUMER
    ''')
    gen_loader(g)
    gen_consumer(g)
    plan = PL.hand_plan()
    PL.check_plan(plan)
    tw = tables(plan)
    g.L.append('.p2align 6')
    g.lab('TABLE')
    for i in range(0, len(tw), 8):
        g.e('.long ' + ', '.join(hex(x) for x in tw[i:i + 8]))
    out += g.L
    out += ['.section .rodata,"a"', '.p2align 6', f'.amdhsa_kernel {NAME}', '  .amdhsa_next_free_vgpr 168',
            '  .amdhsa_next_free_sgpr 102', '  .amdhsa_accum_offset 168', '  .amdhsa_group_segment_fixed_size 0',
            '  .amdhsa_kernarg_size 56', '  .amdhsa_user_sgpr_count 2', '  .amdhsa_user_sgpr_kernarg_segment_ptr 1',
            '  .amdhsa_system_sgpr_workgroup_id_x 1', '.end_amdhsa_kernel', '']
    open(o.o, 'w').write('\n'.join(out))


main()
```

```python
CU = [0, 321, 555, 878, 1299, 1551, 1670, 1878, 2181, 2351, 2646, 2810, 3248, 3471, 3811, 4169, 4391]
L = [CU[i + 1] - CU[i] for i in range(16)]
NT = [(l + 31) // 32 for l in L]
RING = 16
NCONS = 8


def pairs_with(n):
    return [(s, hb) for s in range(16) if NT[s] == n for hb in (0, 1)]


def hand_plan():
    plan = []
    W = list(range(8))

    def job(p, blocks, waves):
        assert len(blocks) == len(waves)
        return (p[0], p[1], list(zip(waves, blocks)))
    p14, p12, p11, p10, p8, p7, p6, p4 = (pairs_with(n) for n in (14, 12, 11, 10, 8, 7, 6, 4))
    for p in p14:
        plan.append([job(p, list(range(0, 7)), W[:7])])
        plan.append([job(p, list(range(7, 14)), W[:7])])
    A, B, C = [], [], []
    for p in p12:
        plan.append([job(p, list(range(8)), W)])
        A.append((p, list(range(8, 12))))
    for p in p11:
        plan.append([job(p, list(range(8)), W)])
        B.append((p, list(range(8, 11))))
    for i, p in enumerate(p10):
        cu = [job(p, list(range(8)), W)]
        if i < 2:
            cu.append(job(p4[i], list(range(4)), W[:4]))
        plan.append(cu)
        C.append((p, list(range(8, 10))))
    for i, p in enumerate(p8):
        plan.append([job(p, list(range(8)), W), job(B[i][0], B[i][1], W[:3])])
    for i in range(3):
        plan.append([job(p7[2 * i], list(range(7)), W[:7]), job(p7[2 * i + 1], list(range(7)), W[:7])])
    for i in range(2):
        plan.append([job(A[i][0], A[i][1], W[:4]), job(B[4 + i][0], B[4 + i][1], W[4:7])])
    for i in range(2):
        plan.append([job(p6[2 * i], list(range(6)), W[:6]), job(C[i][0], C[i][1], W[6:8]),
                     job(p6[2 * i + 1], list(range(6)), W[:6])])
    plan.append([job(C[2][0], C[2][1], [0, 1]), job(C[3][0], C[3][1], [2, 3])])
    assert len(plan) == 32, len(plan)
    return plan


def check_plan(plan):
    seen = set()
    for cu in plan:
        for s, hb, tasks in cu:
            for w, qb in tasks:
                assert 0 <= qb < NT[s] and (s, hb, qb) not in seen
                seen.add((s, hb, qb))
    assert len(seen) == 2 * sum(NT), len(seen)


def get_plan(name):
    if name == 'hand':
        return hand_plan()
    import json
    return [[(s, hb, [tuple(x) for x in t]) for s, hb, t in cu] for cu in json.load(open(name))]


def build_stream(cu, tau=1000, gap=1200, ring=16, qsplit=0):
    RING = ring
    wave_t = [0] * NCONS
    ev = []
    for ji, (s, hb, tasks) in enumerate(cu):
        n = NT[s]
        start = min(wave_t[w] for w, _ in tasks)
        ev.append((start - 2, ji, 0, ('K', ji, 0)))
        for x, (w, qb) in enumerate(tasks):
            dl = max(start, wave_t[w] - 0) - 1
            if qsplit and dl < 0 and w >= 4:
                dl = tau // 2 + 1
            ev.append((dl, ji, 1 + x, ('Q', ji, x)))
        for t in range(n):
            if t > 0:
                ev.append((start + t * tau - tau // 2, ji, 0, ('K', ji, t)))
            ev.append((start + t * tau + (0 if t == 0 else tau // 4), ji, 50, ('V', ji, t)))
        for w, _ in tasks:
            wave_t[w] = max(wave_t[w], start) + n * tau + gap
    ev.sort(key=lambda e: (e[0] if e[0] % tau not in (tau - 1, tau - 2) else e[0] - e[0] % tau + tau - 2, e[1], e[2]))
    idx = {e[3]: i for i, e in enumerate(ev)}
    items = []
    for e in ev:
        ty, ji, x = e[3]
        s, hb, tasks = cu[ji]
        blk = tasks[x][1] if ty == 'Q' else x
        row0 = CU[s] + 32 * blk
        items.append((ty, row0, hb, min(32, CU[s + 1] - row0)))
    tl = []
    hdr = [[] for _ in range(NCONS)]
    for ji, (s, hb, tasks) in enumerate(cu):
        n = NT[s]
        tls = len(tl)
        for t in range(n):
            tl.append((idx[('K', ji, t + 1)] if t + 1 < n else 0, idx[('V', ji, t)]))
            assert idx[('K', ji, t)] < idx[('V', ji, t)]
            if t + 1 < n:
                assert idx[('V', ji, t)] < idx[('K', ji, t + 1)]
        for x, (w, qb) in enumerate(tasks):
            row0 = CU[s] + 32 * qb
            hdr[w].append(dict(row0=row0, hb=hb, nvq=min(32, CU[s + 1] - row0), n=n, qitem=idx[('Q', ji, x)],
                               k0=idx[('K', ji, 0)], tls=tls, nvl=L[s] - 32 * (n - 1)))
    for w in range(NCONS):
        last_needed = -1
        for h in hdr[w]:
            prog = min(h['qitem'], h['k0'])
            assert prog > last_needed, (prog, last_needed)
            assert max(h['qitem'], h['k0']) - prog <= RING - 1
            for t in range(h['n']):
                kn, vn = tl[h['tls'] + t]
                assert kn - prog <= RING - 1, (kn, prog)
                prog = vn
                last_needed = vn
            last_needed = max(last_needed, h['qitem'])
    assert len(items) <= 63 and len(tl) <= 64 and all(len(h) <= 3 for h in hdr), (len(items), len(tl))
    return items, tl, hdr


if __name__ == '__main__':
    plan = hand_plan()
    check_plan(plan)
    for i, cu in enumerate(plan):
        items, tl, hdr = build_stream(cu)
        load = [0] * 4
        for s, hb, tasks in cu:
            for w, qb in tasks:
                load[w % 4] += NT[s]
        print(i, [(NT[s], len(t)) for s, hb, t in cu], 'items', len(items), 'load', load)
        print('   ', ' '.join(f'{ty}{(r0)}' for ty, r0, hb, nv in items[:26]))
```

```python
import sys, os, argparse, struct, math
sys.path.insert(0, os.path.dirname(os.path.abspath(__file__)))
import plan as PL

NAME = 'standalone__varlen_attn_packed__ragged_kernel'
SLOT = 8704
KST, VST = 1056, 1088
GSTRIDE = 2304


def f2u(x):
    return struct.unpack('<I', struct.pack('<f', x))[0]


class Gen:
    def __init__(self, o):
        self.o = o
        self.L = []
        self.idx = 's8'
        self.m0save = 's9'

    def e(self, s):
        if s is None:
            return
        if isinstance(s, (list, tuple)):
            for x in s:
                self.e(x)
            return
        self.L.append('    ' + s)

    def lab(self, s):
        self.L.append(s + ':')

    def many(self, txt):
        for l in txt.strip().split('\n'):
            l = l.strip()
            if not l or l == 'None':
                continue
            if l.endswith(':'):
                self.L.append(l)
            else:
                self.e(l)

    def stamp(self, real=False):
        if not self.o.stamps:
            return
        self.e('s_memrealtime s[34:35]' if real else 's_memtime s[34:35]')
        self.e('s_waitcnt lgkmcnt(0)')
        self.stampval('s34')

    def stampval(self, s):
        if not self.o.stamps:
            return
        if self.m0save:
            self.e(f's_mov_b32 {self.m0save}, m0')
        self.e(f's_mov_b32 m0, {self.idx}')
        self.e(f's_add_u32 {self.idx}, {self.idx}, 1')
        self.e(f'v_writelane_b32 v167, {s}, m0')
        if self.m0save:
            self.e(f's_mov_b32 m0, {self.m0save}')
            self.e('s_nop 0')

    def stamp_out(self):
        if not self.o.stamps:
            return
        self.e(f's_mov_b32 {self.idx}, 62')
        self.stamp()
        self.stamp(real=True)
        self.many(f'''
            s_load_dwordx2 s[34:35], s[0:1], 48
            s_mul_i32 s3, s2, 12
            s_add_u32 s3, s3, s14
            s_lshl_b32 s3, s3, 8
            v_mbcnt_lo_u32_b32 v1, -1, 0
            v_mbcnt_hi_u32_b32 v1, -1, v1
            v_lshlrev_b32 v1, 2, v1
            v_add_u32 v1, s3, v1
            s_waitcnt lgkmcnt(0)
            global_store_dword v1, v167, s[34:35]
        ''')


O, Q, S, P, POOL = 0, 64, 96, 112, 120
vKb, vVb, vK, vV, vL, vNM, vLT, vT = 152, 153, 154, 155, 156, 157, 158, 159
FL = 160
vFA, vPA, vSW = 164, 165, 166
sC, sNC, sThr, sP, sSpin, sRem, sMaskAt, sFirst = 's16', 's17', 's18', 's19', 's20', 's21', 's22', 's23'
sE0, sE1, sE0p = 's24', 's25', 's26'
H = 28
TB = 36


def r(a, n):
    return f'v[{a}:{a + n - 1}]'


def pool(i):
    return r(POOL + 4 * i, 4)


def qk(i, c0=False):
    c = '0' if c0 else r(S, 16)
    return f'v_mfma_f32_32x32x16_bf16 {r(S, 16)}, {pool(i)}, {r(Q + 4 * i, 4)}, {c}'


def pv(slot, b, j):
    return f'v_mfma_f32_32x32x16_bf16 {r(O + 16 * b, 16)}, {pool(slot)}, {r(P + 4 * j, 4)}, {r(O + 16 * b, 16)}'


def kread(s, addr=vK):
    return f'ds_read_b128 {pool(s)}, v{addr} offset:{32 * s}'


def vread(slot, b, j):
    return [f'ds_read_b64_tr_b16 {r(POOL + 4 * slot + 2 * eh, 2)}, v{vV} offset:{(2 * j + eh) * 256 + 64 * b}'
            for eh in (0, 1)]


def F(a, b):
    return [f'v_fma_f32 v{S + i}, v{S + i}, {sC}, v{vNM}' for i in range(a, b)]


def E(a, b):
    return [f'v_exp_f32 v{S + i}, v{S + i}' for i in range(a, b)]


def A(a, b):
    return [f'v_add_f32 v{vLT}, v{S}, v{S + 1}' if i == 1 else f'v_add_f32 v{vLT}, v{vLT}, v{S + i}'
            for i in range(max(a, 1), b)]


def C(a, b):
    return [f'v_cvt_pk_bf16_f32 v{P + k}, v{S + 2 * k}, v{S + 2 * k + 1}' for k in range(a, b)]


def addr(dst, s, base):
    return f'v_mad_u32_u24 v{dst}, {s}, 1, v{base}'


def pub(g, a, val):
    if g.o.execpub:
        return ['s_mov_b64 exec, 1', f'ds_write_b32 v{a}, v{val}', 's_mov_b64 exec, -1']
    return [f'ds_write_b32 v{a}, v{val}']


def poll(g, tag, need):
    g.many(f'''
        s_cmp_gt_u32 {sP}, {need}
        s_cbranch_scc1 POLLOK_{tag}
    POLL_{tag}:
        ds_read_b128 {r(FL, 4)}, v{vFA}
        s_waitcnt lgkmcnt(0)
        v_min3_u32 v{FL}, v{FL}, v{FL + 1}, v{FL + 2}
        v_min_u32 v{FL}, v{FL}, v{FL + 3}
        s_sub_u32 {sSpin}, {sSpin}, 1
        s_cbranch_scc1 END
        v_readfirstlane_b32 {sP}, v{FL}
        s_cmp_gt_u32 {sP}, {need}
        s_cbranch_scc1 POLLOK_{tag}
        s_sleep {g.o.csleep}
        s_branch POLL_{tag}
    POLLOK_{tag}:
    ''')


def gen_loader(g, lay):
    o = g.o
    W = o.win
    nt = ' nt' if o.nt else ''
    g.idx, g.m0save = 's32', None
    g.lab('LOADER')
    g.many(f'''
        s_setprio 3
        v_mov_b32 v4, {lay['PROGA']}
        v_lshrrev_b32 v5, 4, v0
        v_and_b32 v6, 15, v0
        v_lshrrev_b32 v7, 5, v0
        v_xor_b32 v7, v7, v6
        v_lshlrev_b32 v5, 12, v5
        s_lshl_b32 s3, s14, 15
        v_add_u32 v5, s3, v5
        v_lshl_add_u32 v8, v7, 4, v5
        v_lshl_add_u32 v10, v6, 4, v5
        v_add_u32 v9, {16384 - KST}, v8
        v_add_u32 v11, {16384 - VST}, v10
        s_mul_i32 s30, s14, {2 * KST}
        s_mul_i32 s31, s14, {2 * VST}
        s_mov_b32 s19, 0x00020000
        s_mov_b32 s20, 0
        s_mov_b32 s22, 0
        s_mov_b32 s23, 0
        s_mov_b32 s24, {1000 if o.m1 else lay['RING']}
        s_mov_b32 s27, 0x40000
        s_mov_b32 s28, 0
        s_mov_b32 s29, 1
        s_waitcnt lgkmcnt(0)
    ''')
    g.stamp()
    if o.m3:
        g.e('v_mov_b32 v2, -1')
        g.e('ds_write_b32 v3, v2')
        g.e('s_waitcnt lgkmcnt(0)')
        g.e('s_barrier')
        g.e('s_branch L_END')
    g.many(f'''
        s_add_u32 s4, s4, s15
        s_addc_u32 s5, s5, 0
        s_add_u32 s6, s6, s15
        s_addc_u32 s7, s7, 0
        s_add_u32 s8, s8, s15
        s_addc_u32 s9, s9, 0
    L_NEXT:
        s_mov_b32 m0, s20
        s_cmp_ge_u32 s22, {W}
        s_movrels_b32 s25, s{TB}
        s_cbranch_scc1 L_WAIT
        s_cmp_eq_u32 s25, 0
        s_cbranch_scc1 L_DRAIN
        s_cmp_lt_u32 s20, s24
        s_cbranch_scc0 L_POLL
    L_ISSUE:
        s_and_b32 s26, s25, 0x1ffff
        s_lshl_b32 s26, s26, 8
        s_bfe_u32 s18, s25, 0x60013
        s_lshl_b32 s18, s18, 12
        s_sub_u32 s18, s18, 3840
        s_bitcmp1_b32 s25, 18
        s_cbranch_scc1 L_V
        s_add_u32 m0, s28, s30
        s_bitcmp1_b32 s25, 17
        s_cselect_b64 s[16:17], s[6:7], s[4:5]
        s_add_u32 s16, s16, s26
        s_addc_u32 s17, s17, 0
        buffer_load_dwordx4 v8, s[16:19], 0 offen{nt} lds
        buffer_load_dwordx4 v9, s[16:19], 0 offen offset:{KST}{nt} lds
        s_branch L_DONE
    L_V:
        s_add_u32 m0, s28, s31
        s_add_u32 s16, s8, s26
        s_addc_u32 s17, s9, 0
        buffer_load_dwordx4 v10, s[16:19], 0 offen{nt} lds
        buffer_load_dwordx4 v11, s[16:19], 0 offen offset:{VST}{nt} lds
    L_DONE:
        s_add_u32 s28, s28, {SLOT}
        s_add_u32 s20, s20, 1
        s_cmp_eq_u32 s28, {lay['RINGB']}
        s_cselect_b32 s28, 0, s28
        s_add_u32 s22, s22, 1
        s_branch L_NEXT
    L_POLL:
        ds_read_b128 v[24:27], v4
        ds_read_b128 v[28:31], v4 offset:16
        s_waitcnt lgkmcnt(0)
        v_min3_u32 v24, v24, v25, v26
        v_min3_u32 v27, v27, v28, v29
        v_min3_u32 v24, v24, v30, v31
        v_min_u32 v24, v24, v27
        s_nop 0
        v_readfirstlane_b32 s24, v24
        s_lshr_b32 s24, s24, 24
        s_add_u32 s24, s24, {lay['RING']}
        s_cmp_lt_u32 s20, s24
        s_cbranch_scc1 L_ISSUE
        s_cmp_gt_u32 s22, 0
        s_cbranch_scc1 L_WAIT
        s_sub_u32 s27, s27, 1
        s_cbranch_scc1 END
        s_sleep {o.lsleep}
        s_branch L_POLL
    L_DRAIN:
        s_cmp_eq_u32 s22, 0
        s_cbranch_scc1 L_END
    L_WAIT:
        s_cmp_eq_u32 s22, {W}
        s_cbranch_scc0 L_WLOW
        s_cmp_eq_u32 s29, 0
        s_cbranch_scc1 L_WFULL
        s_mov_b32 s29, 0
    ''')
    g.stamp()
    g.many(f'''
        s_barrier
    L_WFULL:
        s_waitcnt vmcnt({2 * (W - 1)})
    L_PUB:
        s_add_u32 s23, s23, 0x1000000
        v_mov_b32 v2, s23
        s_sub_u32 s22, s22, 1
    ''')
    g.e(pub(g, 3, 2))
    g.stamp()
    g.e('s_branch L_NEXT')
    g.lab('L_WLOW')
    for k in range(W - 1, 1, -1):
        g.e(f's_cmp_eq_u32 s22, {k}')
        g.e(f's_cbranch_scc0 L_W{k - 1}')
        g.e(f's_waitcnt vmcnt({2 * (k - 1)})')
        g.e('s_branch L_PUB')
        g.lab(f'L_W{k - 1}')
    g.e('s_waitcnt vmcnt(0)')
    g.e('s_branch L_PUB')
    g.lab('L_END')
    g.stamp_out()
    g.e('s_endpgm')


def gen_consumer(g, lay):
    o = g.o
    c = 128 ** -0.5 * math.log2(math.e)
    st = o.stpol
    g.idx, g.m0save = 's8', 's9'
    pr = o.prio
    g.lab('CONSUMER')
    g.many(f'''
        v_mov_b32 v{vFA}, {lay['FULLA']}
        v_mov_b32 v{vPA}, v3
        v_and_b32 v1, 7, v0
        v_mul_u32_u24 v{vKb}, {KST}, v1
        v_bfe_u32 v2, v0, 3, 2
        v_lshl_add_u32 v{vKb}, v2, 8, v{vKb}
        v_lshrrev_b32 v3, 5, v0
        v_bfe_u32 v4, v0, 4, 1
        v_xor_b32 v5, v3, v4
        v_lshl_add_u32 v{vKb}, v5, 4, v{vKb}
        v_bfe_u32 v5, v0, 2, 2
        v_lshl_add_u32 v5, v3, 2, v5
        v_mul_u32_u24 v{vVb}, {VST}, v5
        v_lshl_add_u32 v{vVb}, v4, 5, v{vVb}
        v_and_b32 v5, 1, v0
        v_lshl_add_u32 v{vVb}, v5, 4, v{vVb}
        v_bfe_u32 v5, v0, 1, 1
        v_lshl_add_u32 v{vVb}, v5, 3, v{vVb}
        v_bfe_u32 v5, v0, 2, 1
        v_lshl_add_u32 v2, v5, 4, v2
        v_and_b32 v5, 3, v0
        v_lshl_add_u32 v2, v5, 2, v2
        s_lshl_b32 s3, s14, 12
        s_add_u32 s3, s3, {lay['STG'] - 4 * 4096}
        v_xor_b32 v1, v1, v3
        v_lshlrev_b32 v1, 4, v1
        v_lshl_add_u32 v2, v2, 7, v1
        v_add_u32 v{vSW}, s3, v2
        s_mov_b32 s13, s3
        s_mov_b32 {sC}, {hex(f2u(c))}
        s_mov_b32 {sNC}, {hex(f2u(-c))}
        s_mov_b32 {sThr}, {hex(f2u(2.0 ** 24))}
        s_mov_b32 {sP}, 0
        s_mov_b32 {sSpin}, 0x40000
        s_mov_b32 m0, 0
        s_waitcnt lgkmcnt(0)
        v_mov_b32 v{vT}, s{TB + 5}
        s_mov_b32 s7, 0x00020000
        s_add_u32 s10, s10, s15
        s_addc_u32 s11, s11, 0
    ''')
    g.e(pub(g, vPA, vT))
    g.many('''
        s_waitcnt lgkmcnt(0)
        s_barrier
    ''')
    if o.stamps:
        g.e('s_mov_b32 s8, 5')
        g.e('s_mov_b32 s12, 0')
    g.stamp()
    g.lab('TASK')
    g.many(f'''
        s_movrels_b64 s[{H}:{H + 1}], s[{TB}:{TB + 1}]
        s_movrels_b64 s[{H + 2}:{H + 3}], s[{TB + 2}:{TB + 3}]
        s_movrels_b64 s[{H + 4}:{H + 5}], s[{TB + 4}:{TB + 5}]
        s_movrels_b64 s[24:25], s[{TB + 6}:{TB + 7}]
        s_add_u32 m0, m0, 8
        s_cmp_eq_u32 s{H + 1}, 0
        s_cbranch_scc1 C_END
        v_mov_b32 v{P}, 0
        v_mov_b32 v{P + 1}, 0
        v_mov_b32 v{P + 2}, 0
        v_mov_b32 v{P + 3}, 0
        v_mov_b32 v{vL}, 0
        v_mov_b32 v{vNM}, 0x7f800000
    ''')
    for b in range(4):
        g.e(f'v_mfma_f32_32x32x16_bf16 {r(O + 16 * b, 16)}, {r(P, 4)}, {r(P, 4)}, 0')
    g.many(f'''
        s_lshr_b32 {sRem}, s{H + 4}, 24
        s_cmp_eq_u32 s{H + 2}, 0
        s_cselect_b32 {sMaskAt}, -1, 0
        s_mov_b32 {sE0p}, s{H + 4}
        {addr(vV, f's{H + 3}', vKb)}
        s_mov_b32 {sFirst}, 1
    ''')
    poll(g, 'T', f's{H + 3}')
    g.stamp()
    for s in range(8):
        g.e(f'ds_read_b128 {r(Q + 4 * s, 4)}, v{vV} offset:{32 * s}')
    g.lab('FRESH')
    g.e(addr(vK, sE0p, vKb))
    g.e('s_waitcnt lgkmcnt(7)')
    for s in range(8):
        g.e(kread(s))
    g.many(f'''
        s_cmp_eq_u32 {sRem}, {sMaskAt}
        s_cbranch_scc1 FMASK
        s_waitcnt lgkmcnt(7)
        {qk(0, True)}
    F_BACK:
    ''')
    for s in range(1, 8):
        g.e(f's_waitcnt lgkmcnt({7 - s})')
        g.e(qk(s))
    t0, t1 = FL, FL + 1
    g.many(f'''
        s_nop 7
        s_nop 3
        v_max3_f32 v{t0}, v{S}, v{S + 1}, v{S + 2}
        v_max3_f32 v{t1}, v{S + 3}, v{S + 4}, v{S + 5}
        v_max3_f32 v{t0}, v{t0}, v{S + 6}, v{S + 7}
        v_max3_f32 v{t1}, v{t1}, v{S + 8}, v{S + 9}
        v_max3_f32 v{t0}, v{t0}, v{S + 10}, v{S + 11}
        v_max3_f32 v{t1}, v{t1}, v{S + 12}, v{S + 13}
        v_max3_f32 v{t0}, v{t0}, v{S + 14}, v{S + 15}
        v_max_f32 v{t0}, v{t0}, v{t1}
        v_mov_b32 v{t1}, v{t0}
        s_nop 1
        v_permlane32_swap_b32 v{t0}, v{t1}
        v_max_f32 v{t0}, v{t0}, v{t1}
        v_mul_f32 v{t0}, {sNC}, v{t0}
        v_min_f32 v{t0}, v{t0}, v{vNM}
        s_cmp_eq_u32 {sFirst}, 0
        s_cbranch_scc1 RESCALE
    R_BACK:
        v_mov_b32 v{vNM}, v{t0}
        s_mov_b32 {sFirst}, 0
    ''')
    g.e(F(0, 16) + E(0, 16) + A(1, 16) + C(0, 8))
    g.stamp()
    g.lab('LATE')
    if o.stamps:
        g.e('s_memtime s[100:101]')
        g.e('s_waitcnt lgkmcnt(0)')
    poll(g, 'L', sE0)
    if o.stamps:
        g.e('s_memtime s[34:35]')
        g.e('s_waitcnt lgkmcnt(0)')
        g.e('s_sub_u32 s34, s34, s100')
        g.e('s_add_u32 s12, s12, s34')
    g.e(addr(vK, sE0, vKb))
    g.e(addr(vV, sE1, vVb))
    for s in range(8):
        g.e(kread(s))
    g.e('s_branch CONT')
    g.L.append('.p2align 4') if o.align else None
    g.lab('LOOP')
    g.e('s_waitcnt lgkmcnt(0)')
    if pr:
        g.e(f's_setprio {pr[0]}')
    g.e(qk(0, True))
    g.lab('L_BACK')
    if pr:
        g.e(f's_setprio {pr[1]}')
    gapA = {0: [f'v_mov_b32 v{vT}, {sE1}'],
            1: pub(g, vPA, vT) + [f'v_add_f32 v{vL}, v{vL}, v{vLT}'],
            2: [f's_mov_b32 {sE0p}, {sE0}', f's_movrels_b64 s[24:25], s[{TB}:{TB + 1}]', 's_add_u32 m0, m0, 2'],
            7: [f'ds_read_b128 {r(FL, 4)}, v{vFA}', addr(vK, sE0, vKb), addr(vV, sE1, vVb)]}
    for m in range(8):
        if m > 0:
            g.e(qk(m))
        g.e(vread(m, m % 4, m // 4))
        g.e(gapA.get(m))
    mins = [f'v_min3_u32 v{FL}, v{FL}, v{FL + 1}, v{FL + 2}', f'v_min_u32 v{FL}, v{FL}, v{FL + 3}']
    rfl = [f'v_readfirstlane_b32 {sP}, v{FL}']
    cmpv = [f'v_cmp_nge_f32 vcc, {sThr}, v{vLT}']
    lo = [f's_setprio {pr[2]}'] if pr else []
    seq = ['s_waitcnt lgkmcnt(9)', pv(0, 0, 0), pv(1, 1, 0)]
    if o.sched == 1:
        seq += ['s_nop 3'] + F(0, 4) + [pv(2, 2, 0)] + F(4, 8) + [pv(3, 3, 0)]
        seq += [kread(s) for s in range(4)] + ['s_waitcnt lgkmcnt(4)', pv(4, 0, 1), kread(4)]
        seq += F(8, 12) + [pv(5, 1, 1), kread(5)] + F(12, 16) + [pv(6, 2, 1), kread(6)] + mins
        seq += [pv(7, 3, 1), kread(7)] + lo + rfl + E(0, 16) + A(1, 16) + cmpv + C(0, 8)
    elif o.sched == 2:
        seq += [kread(0), kread(1), pv(2, 2, 0), kread(2)] + F(0, 4) + [pv(3, 3, 0), kread(3)] + F(4, 8)
        seq += ['s_waitcnt lgkmcnt(4)', pv(4, 0, 1), kread(4)]
        seq += F(8, 12) + [pv(5, 1, 1), kread(5)] + F(12, 16) + [pv(6, 2, 1), kread(6)] + mins + E(0, 1)
        seq += [pv(7, 3, 1), kread(7)] + lo + rfl + E(1, 16) + A(1, 16) + cmpv + C(0, 8)
    elif o.sched == 3:
        seq += [kread(0), kread(1), pv(2, 2, 0), kread(2)] + F(0, 4) + [pv(3, 3, 0), kread(3)] + F(4, 6) + E(0, 1)
        seq += ['s_waitcnt lgkmcnt(4)', pv(4, 0, 1), kread(4)]
        seq += F(6, 8) + E(1, 2) + [pv(5, 1, 1), kread(5)] + F(8, 10) + E(2, 3) + [pv(6, 2, 1), kread(6)] + mins + E(3, 4)
        seq += [pv(7, 3, 1), kread(7)] + lo + rfl + F(10, 16) + E(4, 16) + A(1, 16) + cmpv + C(0, 8)
    g.e(seq)
    g.many(f'''
        {'s_nop 0' if o.m3 else 's_cbranch_vccnz FRESH'}
        s_cmp_gt_u32 {sP}, {sE0}
        s_cbranch_scc0 LATE
    CONT:
        s_sub_u32 {sRem}, {sRem}, 1
        s_cbranch_scc1 FINAL
        s_cmp_eq_u32 {sRem}, {sMaskAt}
        s_cbranch_scc0 LOOP
        s_mov_b32 s27, 0
    MASK:
        v_mov_b32 v{FL}, s{H + 2}
        s_mov_b32 exec_lo, 0
        v_lshrrev_b32 v{FL}, 16, v{FL}
        s_mov_b32 exec_lo, -1
    ''')
    for i in range(16):
        bit = 4 * (i % 4) + i // 4
        g.e(f'v_bfe_i32 v{S + i}, v{FL}, {bit}, 1')
    for i in range(16):
        g.e(f'v_lshlrev_b32 v{S + i}, 23, v{S + i}')
    g.many(f'''
        s_waitcnt lgkmcnt(0)
        s_cmp_eq_u32 s27, 0
        {qk(0)}
        s_cbranch_scc1 L_BACK
        s_branch F_BACK
    ''')
    g.lab('FINAL')
    g.stamp()
    order = [(b, j) for b in range(4) for j in range(2)]
    g.e('s_waitcnt lgkmcnt(4)')
    for k in range(5):
        g.e(vread(k, *order[k]))
    X = S
    vW = [vSW, X, X + 1, X + 2]
    vR = [X + 4, X + 5, X + 6, X + 7]
    vG = [X + 8, X + 9, X + 10, X + 11]
    ln = X + 12

    def mul(b):
        return [f'v_mul_f32 v{O + 16 * b + i}, v{O + 16 * b + i}, v{vL}' for i in range(16)]

    def cvw(b):
        out = []
        for gq in range(2):
            d = Q + 8 * b + 4 * gq
            for k in range(4):
                i = O + 16 * b + 8 * gq + 2 * k
                out.append(f'v_cvt_pk_bf16_f32 v{d + k}, v{i}, v{i + 1}')
            out.append(f'ds_write_b128 v{vW[2 * (b & 1) + gq]}, {r(d, 4)}')
        return out

    def rd(rnd):
        return [f'ds_read_b128 {r(O + 32 * rnd + 4 * k, 4)}, v{vR[k]} offset:{1024 * k}' for k in range(4)]

    def stv(rnd):
        out = []
        for k in range(4):
            out.append(f's_waitcnt lgkmcnt({3 - k})')
            out.append(f'buffer_store_dwordx4 {r(O + 32 * rnd + 4 * k, 4)}, v{vG[k]}, s[4:7], 0 offen offset:{128 * rnd}{st}')
        return out
    seq = []
    seq += [f'v_add_f32 v{vL}, v{vL}, v{vLT}', f's_movrels_b32 s3, s{TB + 5}', f's_add_u32 s4, s10, s{H}',
            f'v_mov_b32 v{FL + 1}, v{vL}', f's_addc_u32 s5, s11, 0', f's_mov_b32 s6, s{H + 1}',
            f'v_permlane32_swap_b32 v{vL}, v{FL + 1}', f'v_mov_b32 v{vT}, s3',
            f'v_add_f32 v{vL}, v{vL}, v{FL + 1}',
            f'v_mbcnt_lo_u32_b32 v{ln}, -1, 0', f'v_rcp_f32 v{vL}, v{vL}', f'v_mbcnt_hi_u32_b32 v{ln}, -1, v{ln}']
    seq += ['s_waitcnt lgkmcnt(8)', pv(0, *order[0])] + vread(5, *order[5])
    seq += [f'v_lshrrev_b32 v{ln + 1}, 3, v{ln}', f'v_and_b32 v{ln + 2}, 7, v{ln}', f'v_lshrrev_b32 v{ln}, 5, v{ln}']
    seq += ['s_waitcnt lgkmcnt(8)', pv(1, *order[1])] + vread(6, *order[6])
    seq += [f'v_lshlrev_b32 v{vG[0]}, 12, v{ln + 1}', f'v_xor_b32 v{ln}, v{ln}, v{ln + 2}',
            f'v_lshl_add_u32 v{vG[0]}, v{ln + 2}, 4, v{vG[0]}']
    seq += ['s_waitcnt lgkmcnt(8)', pv(2, *order[2])] + vread(7, *order[7])
    seq += [f'v_lshl_add_u32 v{vR[0]}, v{ln + 1}, 7, s13', f'v_xor_b32 v{vW[1]}, 32, v{vSW}',
            f'v_lshl_add_u32 v{vR[0]}, v{ln}, 4, v{vR[0]}']
    seq += ['s_waitcnt lgkmcnt(8)', pv(3, *order[3])]
    seq += [f'v_xor_b32 v{vW[2]}, 64, v{vSW}', f'v_xor_b32 v{vW[3]}, 0x60, v{vSW}',
            f'v_xor_b32 v{vR[1]}, 32, v{vR[0]}', f'v_xor_b32 v{vR[2]}, 64, v{vR[0]}']
    seq += ['s_waitcnt lgkmcnt(6)', pv(4, *order[4])]
    seq += [f'v_xor_b32 v{vR[3]}, 0x60, v{vR[0]}', f'v_add_u32 v{vG[1]}, 0x8000, v{vG[0]}',
            f'v_add_u32 v{vG[2]}, 0x10000, v{vG[0]}', f'v_add_u32 v{vG[3]}, 0x18000, v{vG[0]}']
    seq += ['s_waitcnt lgkmcnt(4)', pv(5, *order[5])]
    seq += mul(0)[:6]
    seq += ['s_waitcnt lgkmcnt(2)', pv(6, *order[6])]
    seq += mul(0)[6:12]
    seq += ['s_waitcnt lgkmcnt(0)', pv(7, *order[7])]
    seq += pub(g, vPA, vT)
    seq += mul(0)[12:] + cvw(0) + mul(1) + cvw(1)
    seq += mul(2)
    seq += ['s_waitcnt lgkmcnt(0)'] + rd(0)
    seq += mul(3)
    seq += stv(0)
    seq += cvw(2) + cvw(3)
    seq += ['s_waitcnt lgkmcnt(0)'] + rd(1) + stv(1)
    g.e(seq)
    g.stamp()
    g.e('s_branch TASK')
    g.lab('C_END')
    if o.stamps:
        g.e('s_waitcnt vmcnt(0)')
        g.stamp()
        g.stampval('s12')
    g.stamp_out()
    g.lab('END')
    g.e('s_endpgm')
    g.many(f'''
    FMASK:
        s_mov_b32 s27, 1
        s_branch MASK
    RESCALE:
        v_sub_f32 v{t1}, v{t0}, v{vNM}
        v_exp_f32 v{t1}, v{t1}
        s_nop 0
        v_mul_f32 v{vL}, v{vL}, v{t1}
    ''')
    for i in range(64):
        g.e(f'v_mul_f32 v{O + i}, v{O + i}, v{t1}')
    g.e('s_branch R_BACK')


def tables(plan, ring, o):
    words = []
    for cu in plan:
        items, tl, hdr = PL.build_stream(cu, ring=ring, qsplit=o.qsplit)
        w = [0] * (GSTRIDE // 4)
        assert len(items) <= 63
        for i, (ty, row0, hb, nv) in enumerate(items):
            w[i] = (row0 * 16 + hb) | ((ty == 'K') << 17) | ((ty == 'V') << 18) | (nv << 19)
        sa = lambda it: (it % ring) * SLOT
        for c in range(8):
            s = []
            for h in hdr[c]:
                s += [h['row0'] * 4096 + h['hb'] * 256, h['nvq'] * 4096 - 3840, (0xffffffff << h['nvl']) & 0xffffffff,
                      sa(h['qitem']) | (max(h['qitem'], h['k0']) << 24), sa(h['k0']) | ((h['n'] - 1) << 24),
                      min(h['qitem'], h['k0']) << 24]
                for t in range(h['n']):
                    kn, vn = tl[h['tls'] + t]
                    s += [sa(kn) | (max(kn, vn) << 24), sa(vn) | (vn << 24)]
            s += [0, 0, 0, 0, 0, 255 << 24]
            assert len(s) <= 62, len(s)
            w[64 * (c + 1):64 * (c + 1) + len(s)] = s
        words += w
    return words


def main():
    ap = argparse.ArgumentParser()
    ap.add_argument('-o', default='standalone__varlen_attn_packed__ragged.s')
    ap.add_argument('--stamps', action='store_true')
    ap.add_argument('--win', type=int, default=6)
    ap.add_argument('--ring', type=int, default=15)
    ap.add_argument('--nt', action='store_true')
    ap.add_argument('--stpol', default='nt')
    ap.add_argument('--m1', type=int, default=0)
    ap.add_argument('--m3', type=int, default=0)
    ap.add_argument('--sched', type=int, default=2)
    ap.add_argument('--prio', default='120')
    ap.add_argument('--lsleep', type=int, default=2)
    ap.add_argument('--csleep', type=int, default=1)
    ap.add_argument('--execpub', action='store_true')
    ap.add_argument('--align', action='store_true')
    ap.add_argument('--qsplit', type=int, default=1)
    ap.add_argument('--plan', default='hand')
    o = ap.parse_args()
    if o.stpol:
        o.stpol = ' ' + o.stpol
    if o.prio == 'none':
        o.prio = ''
    lay = dict(RING=o.ring, RINGB=o.ring * SLOT)
    lay['STG'] = lay['RINGB']
    lay['FULLA'] = lay['STG'] + 8 * 4096
    lay['PROGA'] = lay['FULLA'] + 16
    lds = lay['FULLA'] + 64
    assert lds <= 163840 and lay['STG'] % 128 == 0
    g = Gen(o)
    ref = open('standalone__varlen_attn_packed__ragged.s.ref').read().split('\n')
    head = [l for l in ref[:12] if l.startswith(';') and '@launch' not in l]
    out = head + [f'; @launch grid=(256,1,1) block=(768,1,1) lds={lds}',
                  '.amdgcn_target "amdgcn-amd-amdhsa--gfx950"', '.text', f'.globl {NAME}', '.p2align 8',
                  f'.type {NAME},@function', f'{NAME}:']
    g.many(f'''
        s_cmp_ge_u32 s2, 256
        s_cbranch_scc1 END
        v_lshrrev_b32 v1, 6, v0
        s_getpc_b64 s[12:13]
    PCREF:
        s_load_dwordx4 s[4:7], s[0:1], 0
        v_readfirstlane_b32 s14, v1
        s_load_dwordx2 s[8:9], s[0:1], 16
        s_lshr_b32 s3, s2, 3
        s_mul_i32 s3, s3, {GSTRIDE}
        s_sub_i32 s15, s14, 3
        s_max_i32 s15, s15, 0
        s_lshl_b32 s15, s15, 8
        s_add_u32 s3, s3, s15
        s_add_u32 s3, s3, TABLE-PCREF
        s_add_u32 s12, s12, s3
        s_addc_u32 s13, s13, 0
        s_load_dwordx16 s[36:51], s[12:13], 0
        s_load_dwordx16 s[52:67], s[12:13], 64
        s_load_dwordx16 s[68:83], s[12:13], 128
        s_load_dwordx16 s[84:99], s[12:13], 192
        s_load_dwordx2 s[10:11], s[0:1], 32
        v_lshlrev_b32 v3, 2, v1
        v_add_u32 v3, {lay['FULLA']}, v3
        s_and_b32 s15, s2, 7
        s_lshl_b32 s15, s15, 9
        v_and_b32 v0, 63, v0
    ''')
    if o.stamps:
        g.idx, g.m0save = 's32', None
        g.e('s_mov_b32 s32, 0')
        g.e('v_mov_b32 v167, 0')
        g.e('s_memrealtime s[34:35]')
        g.e('s_memtime s[100:101]')
        g.e('s_getreg_b32 s33, hwreg(HW_REG_HW_ID)')
        g.stampval('s33')
        g.e('s_getreg_b32 s33, hwreg(HW_REG_XCC_ID)')
        g.stampval('s33')
        g.e('s_waitcnt lgkmcnt(0)')
        g.stampval('s34')
        g.stampval('s100')
    g.many('''
        s_cmp_ge_u32 s14, 4
        s_cbranch_scc1 CONSUMER
        v_mov_b32 v2, 0
        ds_write_b32 v3, v2
    ''')
    gen_loader(g, lay)
    gen_consumer(g, lay)
    plan = PL.get_plan(o.plan)
    PL.check_plan(plan)
    tw = tables(plan, o.ring, o)
    g.L.append('.p2align 6')
    g.lab('TABLE')
    for i in range(0, len(tw), 8):
        g.e('.long ' + ', '.join(hex(x) for x in tw[i:i + 8]))
    out += g.L
    out += ['.section .rodata,"a"', '.p2align 6', f'.amdhsa_kernel {NAME}', '  .amdhsa_next_free_vgpr 168',
            '  .amdhsa_next_free_sgpr 102', '  .amdhsa_accum_offset 168', '  .amdhsa_group_segment_fixed_size 0',
            '  .amdhsa_kernarg_size 56', '  .amdhsa_user_sgpr_count 2', '  .amdhsa_user_sgpr_kernarg_segment_ptr 1',
            '  .amdhsa_system_sgpr_workgroup_id_x 1', '.end_amdhsa_kernel', '']
    open(o.o, 'w').write('\n'.join(out))


main()
```

```python
CU = [0, 321, 555, 878, 1299, 1551, 1670, 1878, 2181, 2351, 2646, 2810, 3248, 3471, 3811, 4169, 4391]
L = [CU[i + 1] - CU[i] for i in range(16)]
NT = [(l + 31) // 32 for l in L]
RING = 16
NCONS = 8


def pairs_with(n):
    return [(s, hb) for s in range(16) if NT[s] == n for hb in (0, 1)]


def hand_plan():
    plan = []
    W = list(range(8))

    def job(p, blocks, waves):
        assert len(blocks) == len(waves)
        return (p[0], p[1], list(zip(waves, blocks)))
    p14, p12, p11, p10, p8, p7, p6, p4 = (pairs_with(n) for n in (14, 12, 11, 10, 8, 7, 6, 4))
    for p in p14:
        plan.append([job(p, list(range(0, 7)), W[:7])])
        plan.append([job(p, list(range(7, 14)), W[:7])])
    A, B, C = [], [], []
    for p in p12:
        plan.append([job(p, list(range(8)), W)])
        A.append((p, list(range(8, 12))))
    for p in p11:
        plan.append([job(p, list(range(8)), W)])
        B.append((p, list(range(8, 11))))
    for i, p in enumerate(p10):
        cu = [job(p, list(range(8)), W)]
        if i < 2:
            cu.append(job(p4[i], list(range(4)), W[:4]))
        plan.append(cu)
        C.append((p, list(range(8, 10))))
    for i, p in enumerate(p8):
        plan.append([job(p, list(range(8)), W), job(B[i][0], B[i][1], W[:3])])
    for i in range(3):
        plan.append([job(p7[2 * i], list(range(7)), W[:7]), job(p7[2 * i + 1], list(range(7)), W[:7])])
    for i in range(2):
        plan.append([job(A[i][0], A[i][1], W[:4]), job(B[4 + i][0], B[4 + i][1], W[4:7])])
    for i in range(2):
        plan.append([job(p6[2 * i], list(range(6)), W[:6]), job(C[i][0], C[i][1], W[6:8]),
                     job(p6[2 * i + 1], list(range(6)), W[:6])])
    plan.append([job(C[2][0], C[2][1], [0, 1]), job(C[3][0], C[3][1], [2, 3])])
    assert len(plan) == 32, len(plan)
    return plan


def check_plan(plan):
    seen = set()
    for cu in plan:
        for s, hb, tasks in cu:
            for w, qb in tasks:
                assert 0 <= qb < NT[s] and (s, hb, qb) not in seen
                seen.add((s, hb, qb))
    assert len(seen) == 2 * sum(NT), len(seen)


def get_plan(name):
    if name == 'hand':
        return hand_plan()
    if name == 'h2':
        return h2_plan()
    import json
    return [[(s, hb, [tuple(x) for x in t]) for s, hb, t in cu] for cu in json.load(open(name))]


def build_stream(cu, tau=1000, gap=1200, ring=16, qsplit=0):
    RING = ring
    wave_t = [0] * NCONS
    ev = []
    for ji, (s, hb, tasks) in enumerate(cu):
        n = NT[s]
        start = min(wave_t[w] for w, _ in tasks)
        ev.append((start - 2, ji, 0, ('K', ji, 0)))
        for x, (w, qb) in enumerate(tasks):
            dl = max(start, wave_t[w] - 0) - 1
            if qsplit and dl < 0 and w >= 4:
                dl = tau // 2 + 1
            ev.append((dl, ji, 1 + x, ('Q', ji, x)))
        for t in range(n):
            if t > 0:
                ev.append((start + t * tau - tau // 2, ji, 0, ('K', ji, t)))
            ev.append((start + t * tau + (0 if t == 0 else tau // 4), ji, 50, ('V', ji, t)))
        for w, _ in tasks:
            wave_t[w] = max(wave_t[w], start) + n * tau + gap
    ev.sort(key=lambda e: (e[0] if e[0] % tau not in (tau - 1, tau - 2) else e[0] - e[0] % tau + tau - 2, e[1], e[2]))
    idx = {e[3]: i for i, e in enumerate(ev)}
    items = []
    for e in ev:
        ty, ji, x = e[3]
        s, hb, tasks = cu[ji]
        blk = tasks[x][1] if ty == 'Q' else x
        row0 = CU[s] + 32 * blk
        items.append((ty, row0, hb, min(32, CU[s + 1] - row0)))
    tl = []
    hdr = [[] for _ in range(NCONS)]
    for ji, (s, hb, tasks) in enumerate(cu):
        n = NT[s]
        tls = len(tl)
        for t in range(n):
            tl.append((idx[('K', ji, t + 1)] if t + 1 < n else 0, idx[('V', ji, t)]))
            assert idx[('K', ji, t)] < idx[('V', ji, t)]
            if t + 1 < n:
                assert idx[('V', ji, t)] < idx[('K', ji, t + 1)]
        for x, (w, qb) in enumerate(tasks):
            row0 = CU[s] + 32 * qb
            hdr[w].append(dict(row0=row0, hb=hb, nvq=min(32, CU[s + 1] - row0), n=n, qitem=idx[('Q', ji, x)],
                               k0=idx[('K', ji, 0)], tls=tls, nvl=L[s] - 32 * (n - 1)))
    for w in range(NCONS):
        last_needed = -1
        for h in hdr[w]:
            prog = min(h['qitem'], h['k0'])
            assert prog > last_needed, (prog, last_needed)
            assert max(h['qitem'], h['k0']) - prog <= RING - 1
            for t in range(h['n']):
                kn, vn = tl[h['tls'] + t]
                assert kn - prog <= RING - 1, (kn, prog)
                prog = vn
                last_needed = vn
            last_needed = max(last_needed, h['qitem'])
    assert len(items) <= 63 and len(tl) <= 64 and all(len(h) <= 3 for h in hdr), (len(items), len(tl))
    return items, tl, hdr


def h2_plan():
    plan = []
    W = list(range(8))

    def job(p, blocks, waves):
        assert len(blocks) == len(waves)
        return (p[0], p[1], list(zip(waves, blocks)))
    p14, p12, p11, p10, p8, p7, p6, p4 = (pairs_with(n) for n in (14, 12, 11, 10, 8, 7, 6, 4))
    R = lambda a, b: list(range(a, b))
    for i in range(4):
        plan.append([job(p8[i], R(0, 8), W), job(p6[i], R(0, 6), W[:6])])
    for i in range(3):
        plan.append([job(p7[2 * i], R(0, 7), W[:7]), job(p7[2 * i + 1], R(0, 7), W[:7])])
    for i in range(2):
        plan.append([job(p10[i], R(0, 8), W), job(p4[i], R(0, 4), W[:4])])
    for p in p14:
        plan.append([job(p, R(0, 7), W[:7])])
        plan.append([job(p, R(7, 14), W[:7])])
    for i in range(4):
        plan.append([job(p11[i], R(8, 11), [0, 1, 2]), job(p10[2 + i // 2], R(5 * (i % 2), 5 * (i % 2) + 5), [3, 4, 5, 6, 7])])
    for i in range(2):
        plan.append([job(p12[i], R(8, 12), W[:4]), job(p10[i], R(8, 10), [4, 5])])
    plan.append([job(p11[4], R(8, 11), [0, 1, 2]), job(p11[5], R(8, 11), [3, 4, 5])])
    for p in p12:
        plan.append([job(p, R(0, 8), W)])
    for p in p11:
        plan.append([job(p, R(0, 8), W)])
    assert len(plan) == 32, len(plan)
    return plan


def stream_from_order(cu, order, ring):
    idx = {k: i for i, k in enumerate(order)}
    items = []
    for ty, ji, x in order:
        s, hb, tasks = cu[ji]
        blk = tasks[x][1] if ty == 'Q' else x
        row0 = CU[s] + 32 * blk
        items.append((ty, row0, hb, CU[s + 1]))
    hdr = [[] for _ in range(NCONS)]
    for ji, (s, hb, tasks) in enumerate(cu):
        n = NT[s]
        tl = []
        for t in range(n):
            tl.append((idx[('K', ji, t + 1)] if t + 1 < n else 0, idx[('V', ji, t)]))
            assert idx[('K', ji, t)] < idx[('V', ji, t)]
            if t + 1 < n:
                assert idx[('V', ji, t)] < idx[('K', ji, t + 1)]
        for x, (w, qb) in enumerate(tasks):
            row0 = CU[s] + 32 * qb
            hdr[w].append(dict(row0=row0, hb=hb, nvq=min(32, CU[s + 1] - row0), n=n, qitem=idx[('Q', ji, x)],
                               k0=idx[('K', ji, 0)], tl=tl, nvl=L[s] - 32 * (n - 1)))
    for w in range(NCONS):
        last_needed = -1
        for h in hdr[w]:
            prog = min(h['qitem'], h['k0'])
            assert prog > last_needed, (prog, last_needed)
            assert max(h['qitem'], h['k0']) - prog <= ring - 1
            for kn, vn in h['tl']:
                assert max(kn, vn) - prog <= ring - 1, (kn, prog)
                prog = vn
                last_needed = vn
            last_needed = max(last_needed, h['qitem'])
    return items, hdr


if __name__ == '__main__':
    plan = hand_plan()
    check_plan(plan)
    for i, cu in enumerate(plan):
        items, tl, hdr = build_stream(cu)
        load = [0] * 4
        for s, hb, tasks in cu:
            for w, qb in tasks:
                load[w % 4] += NT[s]
        print(i, [(NT[s], len(t)) for s, hb, t in cu], 'items', len(items), 'load', load)
        print('   ', ' '.join(f'{ty}{(r0)}' for ty, r0, hb, nv in items[:26]))
```

```python
import itertools, math

P = dict(T_ISSUE0=1300, LAT0=1700, LAT=1500, R0=400, R1=280, TSW=9000, FRESH=1000, PAIR=1110, LONE=860, EPI=1500, EPIPUB=450,
         LATE=120, RING=15, W=6, ISS=90, T_BAR=2300)


def rate(t, p):
    return p['R0'] if t < p['TSW'] else p['R1']


def tasks_of(cu):
    tw = [[] for _ in range(8)]
    for ji, (n, waves) in enumerate(cu):
        for x, w in enumerate(waves):
            tw[w].append((ji, x))
    return tw


def simulate(cu, order, p=P, dt=10, ideal=False):
    idx = {k: i for i, k in enumerate(order)}
    N = len(order)
    tw = tasks_of(cu)
    land = [None] * N
    issue = [None] * N
    ni = 0
    nl = 0
    lastland = 0
    tiss = p['T_ISSUE0']
    ti = [0] * 8
    st = ['W0'] * 8
    tile = [0] * 8
    rem = [0.0] * 8
    prog = [0] * 8
    needv = [0] * 8
    need_t = {}
    endt = [0] * 8

    def start_task(w, t):
        if ti[w] >= len(tw[w]):
            st[w] = 'D'; prog[w] = 999; endt[w] = t
            return
        ji, x = tw[w][ti[w]]
        a, b = idx[('Q', ji, x)], idx[('K', ji, 0)]
        needv[w] = max(a, b)
        st[w] = 'W0'
        for k in (('Q', ji, x), ('K', ji, 0)):
            need_t[k] = min(need_t.get(k, 1e9), t)

    def first_prog(w, k):
        if k >= len(tw[w]):
            return 999
        ji, x = tw[w][k]
        return min(idx[('Q', ji, x)], idx[('K', ji, 0)])

    def want(w, t):
        ji, x = tw[w][ti[w]]
        n = cu[ji][0]
        tt = tile[w]
        keys = [('V', ji, tt)] + ([('K', ji, tt + 1)] if tt + 1 < n else [])
        needv[w] = max(idx[k] for k in keys)
        for k in keys:
            need_t[k] = min(need_t.get(k, 1e9), t)
    for w in range(8):
        prog[w] = first_prog(w, 0)
        start_task(w, p['T_BAR'])
    t = p['T_ISSUE0']
    limit = 80000
    while t < limit:
        while ni < N and t >= tiss and ni - nl < p['W'] and ni < min(prog) + p['RING']:
            issue[ni] = t
            lat = p['LAT0'] if ni == 0 else p['LAT']
            if ideal:
                l = max(t + lat, p['T_ISSUE0'] + p['LAT0'])
            else:
                l = max(t + lat, lastland + rate(t, p))
            land[ni] = l
            lastland = l
            ni += 1
            tiss = t + p['ISS']
        while nl < ni and land[nl] <= t:
            nl += 1
        done = True
        for w in range(8):
            s = st[w]
            if s == 'D':
                continue
            done = False
            if t < p['T_BAR']:
                continue
            if s == 'W0':
                if nl > needv[w]:
                    st[w] = 'F'; rem[w] = p['FRESH']; tile[w] = 0
            elif s == 'F':
                rem[w] -= dt
                if rem[w] <= 0:
                    want(w, t); st[w] = 'WT'; rem[w] = p['LATE']
            elif s == 'WT':
                if nl > needv[w]:
                    ji, x = tw[w][ti[w]]
                    n = cu[ji][0]
                    if tile[w] == n - 1:
                        st[w] = 'E'; rem[w] = p['EPI'] + rem[w]
                    else:
                        st[w] = 'I'; rem[w] = 1.0 + rem[w] / p['LONE']
                        prog[w] = idx[('V', ji, tile[w])]
                else:
                    rem[w] = p['LATE']
            elif s == 'I':
                o = st[w ^ 4]
                rem[w] -= dt / (p['PAIR'] if o == 'I' else (p['LONE'] + 60 if o in 'FE' else p['LONE']))
                if rem[w] <= 0:
                    tile[w] += 1
                    want(w, t - 300); st[w] = 'WT'; rem[w] = 0
                    if nl > needv[w]:
                        ji, x = tw[w][ti[w]]
                        n = cu[ji][0]
                        if tile[w] == n - 1:
                            st[w] = 'E'; rem[w] = p['EPI']
                        else:
                            st[w] = 'I'; rem[w] = 1.0
                            prog[w] = idx[('V', ji, tile[w])]
            elif s == 'E':
                rem[w] -= dt
                if rem[w] <= p['EPI'] - p['EPIPUB']:
                    prog[w] = first_prog(w, ti[w] + 1)
                if rem[w] <= 0:
                    ti[w] += 1
                    start_task(w, t)
        if done:
            break
        t += dt
    return (max(endt) if t < limit else 1e9), need_t, land


def fix_order(cu, keys):
    pos = {}
    for i, k in enumerate(keys):
        if k[0] != 'Q':
            pos.setdefault(k[1], []).append(i)
    out = list(keys)
    for ji, ps in pos.items():
        seq = []
        for t in range(cu[ji][0]):
            seq += [('K', ji, t), ('V', ji, t)]
        for a, k in zip(ps, seq):
            out[a] = k
    return out


def valid(cu, order, ring):
    idx = {k: i for i, k in enumerate(order)}
    tw = tasks_of(cu)
    for w in range(8):
        last = -1
        for ji, x in tw[w]:
            q, k0 = idx[('Q', ji, x)], idx[('K', ji, 0)]
            prog = min(q, k0)
            if prog <= last or max(q, k0) - prog > ring - 1:
                return False
            n = cu[ji][0]
            for t in range(n):
                kn = idx[('K', ji, t + 1)] if t + 1 < n else 0
                vn = idx[('V', ji, t)]
                if max(kn, vn) - prog > ring - 1:
                    return False
                prog = vn
                last = vn
            last = max(last, q)
    return True


def init_order(cu, tau=1000, gap=1500, qsplit=1, quant=0):
    wave_t = [0] * 8
    ev = []
    for ji, (n, waves) in enumerate(cu):
        start = sorted(wave_t[w] for w in waves)[min(quant, len(waves) - 1)]
        ev.append((start - 2, ji, 0, ('K', ji, 0)))
        for x, w in enumerate(waves):
            dl = max(start, wave_t[w]) - 1
            if qsplit and dl < 0 and w >= 4 and (w - 4) in [ww for j2 in cu for ww in j2[1]]:
                dl = tau // 2 + 1
            ev.append((dl, ji, 1 + x, ('Q', ji, x)))
        for t in range(n):
            if t > 0:
                ev.append((start + t * tau - tau // 2, ji, 0, ('K', ji, t)))
            ev.append((start + t * tau + (0 if t == 0 else tau // 4), ji, 50, ('V', ji, t)))
        for w in waves:
            wave_t[w] = max(wave_t[w], start) + n * tau + gap
    ev.sort(key=lambda e: (e[0] if e[0] % tau not in (tau - 1, tau - 2) else e[0] - e[0] % tau + tau - 2, e[1], e[2]))
    return [e[3] for e in ev]


_cache = {}


def best_order(cu, p=P, iters=6, local=0):
    key = (tuple((n, tuple(w)) for n, w in cu), tuple(sorted(p.items())))
    if key in _cache:
        return _cache[key]
    best = (1e9, None)
    for qs, quant in ((1, 0), (0, 0), (1, 2), (0, 2), (1, 7)):
        for tau, gap in ((1000, 1500), (900, 2500), (1100, 500)):
            o = init_order(cu, tau, gap, qs, quant)
            if not valid(cu, o, p['RING']):
                continue
            for it in range(iters):
                m, nt, land = simulate(cu, o, p)
                if m < best[0]:
                    best = (m, o)
                if m >= 1e9:
                    break
                pos = {k: i for i, k in enumerate(o)}
                o2 = fix_order(cu, sorted(o, key=lambda k: (nt.get(k, 1e9), pos[k])))
                if o2 == o or not valid(cu, o2, p['RING']):
                    break
                o = o2
    if local and best[1]:
        m, o = best
        improved = True
        while improved:
            improved = False
            for i in range(len(o) - 1):
                a, b = o[i], o[i + 1]
                if a[0] != 'Q' and b[0] != 'Q' and a[1] == b[1]:
                    continue
                o2 = o[:i] + [b, a] + o[i + 2:]
                if not valid(cu, o2, p['RING']):
                    continue
                m2 = simulate(cu, o2, p)[0]
                if m2 < m - 5:
                    m, o = m2, o2
                    improved = True
        best = (m, o)
    _cache[key] = best
    return best


if __name__ == '__main__':
    W = list(range(8))
    tests = {
        '14x7': [(14, W[:7])],
        '12x8': [(12, W)], '11x8': [(11, W)], '10x8+4': [(10, W), (4, W[:4])],
        '8+6': [(8, W), (6, W[:6])], '8+6b': [(8, W), (6, [0, 1, 2, 3, 4, 5])],
        '7+7': [(7, W[:7]), (7, W[:7])], '7+7b': [(7, W[:7]), (7, [0, 1, 2, 3, 5, 6, 7])], '7+7c': [(7, W[:7]), (7, [7, 0, 1, 2, 3, 5, 6])],
        '10h5+11l3': [(10, [0, 1, 2, 3, 7]), (11, [4, 5, 6])],
        '11l3+10h5': [(11, [0, 1, 2]), (10, [3, 4, 5, 6, 7])],
        '12l+10l': [(12, [0, 1, 2, 3]), (10, [4, 5])],
        '11l+11l': [(11, [0, 1, 2]), (11, [3, 4, 5])],
        '14x4+8x4': [(14, W[:4]), (8, W[4:])], '14x4+10x4': [(14, W[:4]), (10, W[4:])],
        '8+11l': [(8, W), (11, W[:3])], '6,10l,6': [(6, W[:6]), (10, [6, 7]), (6, W[:6])],
    }
    for k, cu in tests.items():
        m, o = best_order(cu, local=1)
        print(k, 'items', len(o), 'makespan', m, ' '.join(f'{a}{b}.{c}' for a, b, c in o[:44]))
```

```python
import sys, os, argparse, struct, math
sys.path.insert(0, os.path.dirname(os.path.abspath(__file__)))
import plan as PL
import sim

NAME = 'standalone__varlen_attn_packed__ragged_kernel'
SLOT = 8704
KST, VST = 1056, 1088
GSTRIDE = 2560


def f2u(x):
    return struct.unpack('<I', struct.pack('<f', x))[0]


class Gen:
    def __init__(self, o):
        self.o = o
        self.L = []
        self.idx = 's8'
        self.m0save = 's9'

    def e(self, s):
        if s is None:
            return
        if isinstance(s, (list, tuple)):
            for x in s:
                self.e(x)
            return
        self.L.append('    ' + s)

    def lab(self, s):
        self.L.append(s + ':')

    def many(self, txt):
        for l in txt.strip().split('\n'):
            l = l.strip()
            if not l or l == 'None':
                continue
            if l.endswith(':'):
                self.L.append(l)
            else:
                self.e(l)

    def stamp(self, real=False):
        if not self.o.stamps:
            return
        self.e('s_memrealtime s[34:35]' if real else 's_memtime s[34:35]')
        self.e('s_waitcnt lgkmcnt(0)')
        self.stampval('s34')

    def stampval(self, s):
        if not self.o.stamps:
            return
        if self.m0save:
            self.e(f's_mov_b32 {self.m0save}, m0')
        self.e(f's_mov_b32 m0, {self.idx}')
        self.e(f's_add_u32 {self.idx}, {self.idx}, 1')
        self.e(f'v_writelane_b32 v167, {s}, m0')
        if self.m0save:
            self.e(f's_mov_b32 m0, {self.m0save}')
            self.e('s_nop 0')

    def stamp_out(self):
        if not self.o.stamps:
            return
        self.e(f's_mov_b32 {self.idx}, 62')
        self.stamp()
        self.stamp(real=True)
        self.many(f'''
            s_load_dwordx2 s[34:35], s[0:1], 48
            s_mul_i32 s3, s2, 12
            s_add_u32 s3, s3, s14
            s_lshl_b32 s3, s3, 8
            v_mbcnt_lo_u32_b32 v1, -1, 0
            v_mbcnt_hi_u32_b32 v1, -1, v1
            v_lshlrev_b32 v1, 2, v1
            v_add_u32 v1, s3, v1
            s_waitcnt lgkmcnt(0)
            global_store_dword v1, v167, s[34:35]
        ''')


O, Q, S, P, POOL = 0, 64, 96, 112, 120
vKb, vVb, vK, vV, vL, vNM, vLT, vT = 152, 153, 154, 155, 156, 157, 158, 159
FL = 160
vFA, vPA, vSW = 164, 165, 166
sC, sNC, sThr, sP, sSpin, sRem, sMaskAt, sFirst = 's16', 's17', 's18', 's19', 's20', 's21', 's22', 's23'
sE0, sE1, sE0p = 's24', 's25', 's26'
H = 28
TB = 36


def r(a, n):
    return f'v[{a}:{a + n - 1}]'


def pool(i):
    return r(POOL + 4 * i, 4)


def qk(i, c0=False):
    c = '0' if c0 else r(S, 16)
    return f'v_mfma_f32_32x32x16_bf16 {r(S, 16)}, {pool(i)}, {r(Q + 4 * i, 4)}, {c}'


def pv(slot, b, j):
    return f'v_mfma_f32_32x32x16_bf16 {r(O + 16 * b, 16)}, {pool(slot)}, {r(P + 4 * j, 4)}, {r(O + 16 * b, 16)}'


def kread(s, addr=vK):
    return f'ds_read_b128 {pool(s)}, v{addr} offset:{32 * s}'


def vread(slot, b, j):
    return [f'ds_read_b64_tr_b16 {r(POOL + 4 * slot + 2 * eh, 2)}, v{vV} offset:{(2 * j + eh) * 256 + 64 * b}'
            for eh in (0, 1)]


def F(a, b):
    return [f'v_fma_f32 v{S + i}, v{S + i}, {sC}, v{vNM}' for i in range(a, b)]


def E(a, b):
    return [f'v_exp_f32 v{S + i}, v{S + i}' for i in range(a, b)]


def A(a, b):
    return [f'v_add_f32 v{vLT}, v{S}, v{S + 1}' if i == 1 else f'v_add_f32 v{vLT}, v{vLT}, v{S + i}'
            for i in range(max(a, 1), b)]


def C(a, b):
    return [f'v_cvt_pk_bf16_f32 v{P + k}, v{S + 2 * k}, v{S + 2 * k + 1}' for k in range(a, b)]


def addr(dst, s, base):
    return f'v_mad_u32_u24 v{dst}, {s}, 1, v{base}'


def pub(g, a, val):
    if g.o.execpub:
        return ['s_mov_b64 exec, 1', f'ds_write_b32 v{a}, v{val}', 's_mov_b64 exec, -1']
    return [f'ds_write_b32 v{a}, v{val}']


def poll(g, tag, need):
    g.many(f'''
        s_cmp_gt_u32 {sP}, {need}
        s_cbranch_scc1 POLLOK_{tag}
    POLL_{tag}:
        ds_read_b128 {r(FL, 4)}, v{vFA}
        s_waitcnt lgkmcnt(0)
        v_min3_u32 v{FL}, v{FL}, v{FL + 1}, v{FL + 2}
        v_min_u32 v{FL}, v{FL}, v{FL + 3}
        s_sub_u32 {sSpin}, {sSpin}, 1
        s_cbranch_scc1 END
        v_readfirstlane_b32 {sP}, v{FL}
        s_cmp_gt_u32 {sP}, {need}
        s_cbranch_scc1 POLLOK_{tag}
        s_sleep {g.o.csleep}
        s_branch POLL_{tag}
    POLLOK_{tag}:
    ''')


def finewaits(seq, step):
    q = ['V0', 'V0', 'V1', 'V1', 'W', 'V2', 'V2', 'V3', 'V3', 'V4', 'V4', 'V5', 'V5', 'V6', 'V6', 'FL', 'V7', 'V7']
    out = []
    k = 0
    for x in seq:
        if x.startswith('s_waitcnt lgkmcnt'):
            continue
        if x.startswith('v_mfma'):
            if k % step == 0:
                need = 'V%d' % (k + step - 1)
                last = max(i for i, n in enumerate(q) if n == need)
                out.append(f's_waitcnt lgkmcnt({min(15, len(q) - 1 - last)})')
            k += 1
        if x.startswith('ds_read'):
            q.append('K')
        out.append(x)
    return out


def gen_loader(g, lay):
    o = g.o
    nt = ' nt' if o.nt else ''
    g.idx, g.m0save = 's32', None
    g.lab('LOADER')
    g.many(f'''
        s_setprio {o.lprio}
        s_and_b32 s20, s14, 1
        s_lshr_b32 s3, s14, 1
        s_lshl_b32 s23, s20, 24
        v_mov_b32 v2, s23
        v_lshrrev_b32 v5, 4, v0
        ds_write_b32 v3, v2
        v_mov_b32 v4, {lay['PROGA']}
        v_and_b32 v6, 15, v0
        v_lshrrev_b32 v7, 5, v0
        v_xor_b32 v7, v7, v6
        v_lshlrev_b32 v5, 12, v5
        s_mul_i32 s30, s3, {4 * KST}
        s_mul_i32 s31, s3, {4 * VST}
        s_lshl_b32 s3, s3, 16
        v_add_u32 v5, s3, v5
        v_lshl_add_u32 v8, v7, 4, v5
        v_lshl_add_u32 v12, v6, 4, v5
        v_add_u32 v9, {16384 - KST}, v8
        v_add_u32 v13, {16384 - VST}, v12
        v_add_u32 v10, {2 * (16384 - KST)}, v8
        v_add_u32 v14, {2 * (16384 - VST)}, v12
        v_add_u32 v11, {3 * (16384 - KST)}, v8
        v_add_u32 v15, {3 * (16384 - VST)}, v12
        s_mov_b32 s19, 0x00020000
        s_mov_b32 s22, 0
        s_mov_b32 s26, {1000 if o.m1 else lay['RING']}
        s_mov_b32 s27, 0x40000
        s_mul_i32 s28, s20, {SLOT}
        s_mov_b32 s29, 1
        s_waitcnt lgkmcnt(0)
    ''')
    g.stamp()
    if o.m3 == 1:
        g.e('v_mov_b32 v2, -1')
        g.e('ds_write_b32 v3, v2')
        g.e('s_waitcnt lgkmcnt(0)')
        g.e('s_barrier')
        g.e('s_branch L_END')
    g.many(f'''
        s_mov_b32 m0, 0
        s_add_u32 s4, s4, s15
        s_addc_u32 s5, s5, 0
        s_add_u32 s6, s6, s15
        s_addc_u32 s7, s7, 0
        s_add_u32 s8, s8, s15
        s_addc_u32 s9, s9, 0
        s_mov_b32 s11, 0x00020000
    L_NEXT:
        s_movrels_b64 s[24:25], s[{TB}:{TB + 1}]
        s_bfe_u32 s12, s25, 0x20002
    L_CHK:
        s_cmp_ge_u32 s22, s12
        s_cbranch_scc1 L_WAIT
        s_cmp_lt_u32 s20, s26
        s_cbranch_scc0 L_POLL
    L_ISSUE:
        {'s_cmp_ge_u32 s20, 15' if o.m5 else None}
        {'s_cbranch_scc1 L_ALT' if o.m5 else None}
        s_bitcmp1_b32 s25, 0
        s_cbranch_scc1 L_V
        s_add_u32 m0, s28, s30
        s_bitcmp1_b32 s25, 1
        s_cselect_b64 s[16:17], s[6:7], s[4:5]
        s_mov_b32 s18, s25
        buffer_load_dwordx4 v8, s[16:19], s24 offen{nt} lds
        buffer_load_dwordx4 v9, s[16:19], s24 offen offset:{KST}{nt} lds
        buffer_load_dwordx4 v10, s[16:19], s24 offen offset:{2 * KST}{nt} lds
        buffer_load_dwordx4 v11, s[16:19], s24 offen offset:{3 * KST}{nt} lds
        s_branch L_DONE
    L_V:
        s_add_u32 m0, s28, s31
        s_mov_b32 s10, s25
        buffer_load_dwordx4 v12, s[8:11], s24 offen{nt} lds
        buffer_load_dwordx4 v13, s[8:11], s24 offen offset:{VST}{nt} lds
        buffer_load_dwordx4 v14, s[8:11], s24 offen offset:{2 * VST}{nt} lds
        buffer_load_dwordx4 v15, s[8:11], s24 offen offset:{3 * VST}{nt} lds
    L_DONE:
        s_add_u32 s20, s20, 2
        s_add_u32 s28, s28, {2 * SLOT}
        s_and_b32 m0, s20, -2
        s_sub_u32 s3, s28, {lay['RINGB']}
        s_cselect_b32 s28, s28, s3
        s_add_u32 s22, s22, 1
        s_branch L_NEXT
    L_POLL:
        {'s_waitcnt vmcnt(0)' if o.m3 == 2 else None}
        {'v_mov_b32 v2, -1' if o.m3 == 2 else None}
        {'ds_write_b32 v3, v2' if o.m3 == 2 else None}
        {'s_branch L_END' if o.m3 == 2 else None}
        ds_read_b128 v[24:27], v4
        ds_read_b128 v[28:31], v4 offset:16
        s_waitcnt lgkmcnt(0)
        v_min3_u32 v24, v24, v25, v26
        v_min3_u32 v27, v27, v28, v29
        v_min3_u32 v24, v24, v30, v31
        v_min_u32 v24, v24, v27
        s_nop 0
        v_readfirstlane_b32 s26, v24
        s_lshr_b32 s26, s26, 24
        s_add_u32 s26, s26, {lay['RING']}
        s_cmp_lt_u32 s20, s26
        s_cbranch_scc1 {'L_SLOW' if o.pace else 'L_ISSUE'}
        s_cmp_gt_u32 s22, 0
        s_cbranch_scc1 L_WAIT
        s_sub_u32 s27, s27, 1
        s_cbranch_scc1 END
        s_sleep {o.lsleep}
        s_branch L_POLL
    L_SLOW:
        s_bitcmp1_b32 s25, 0
        s_cbranch_scc1 L_SV
        s_add_u32 m0, s28, s30
        s_bitcmp1_b32 s25, 1
        s_cselect_b64 s[16:17], s[6:7], s[4:5]
        s_mov_b32 s18, s25
        buffer_load_dwordx4 v8, s[16:19], s24 offen{nt} lds
        s_sleep {o.pace}
        buffer_load_dwordx4 v9, s[16:19], s24 offen offset:{KST}{nt} lds
        s_sleep {o.pace}
        buffer_load_dwordx4 v10, s[16:19], s24 offen offset:{2 * KST}{nt} lds
        s_sleep {o.pace}
        buffer_load_dwordx4 v11, s[16:19], s24 offen offset:{3 * KST}{nt} lds
        s_branch L_DONE
    L_SV:
        s_add_u32 m0, s28, s31
        s_mov_b32 s10, s25
        buffer_load_dwordx4 v12, s[8:11], s24 offen{nt} lds
        s_sleep {o.pace}
        buffer_load_dwordx4 v13, s[8:11], s24 offen offset:{VST}{nt} lds
        s_sleep {o.pace}
        buffer_load_dwordx4 v14, s[8:11], s24 offen offset:{2 * VST}{nt} lds
        s_sleep {o.pace}
        buffer_load_dwordx4 v15, s[8:11], s24 offen offset:{3 * VST}{nt} lds
        s_branch L_DONE
    L_ALT:
        s_mov_b32 s10, s25
        {'buffer_load_dwordx4 v[40:43], v12, s[8:11], s24 offen' if o.m5 == 2 else None}
        {'buffer_load_dwordx4 v[44:47], v13, s[8:11], s24 offen offset:1088' if o.m5 == 2 else None}
        {'buffer_load_dwordx4 v[48:51], v14, s[8:11], s24 offen offset:2176' if o.m5 == 2 else None}
        {'buffer_load_dwordx4 v[52:55], v15, s[8:11], s24 offen offset:3264' if o.m5 == 2 else None}
        s_branch L_DONE
    L_FIRST:
        s_mov_b32 s29, 0
    ''')
    g.stamp()
    g.many(f'''
        s_barrier
    L_WAIT:
        s_cmp_lg_u32 s29, 0
        s_cbranch_scc1 L_FIRST
        s_cmp_eq_u32 s22, 3
        s_cbranch_scc0 L_W2
        s_waitcnt vmcnt(8)
    L_PUB:
        s_add_u32 s23, s23, 0x2000000
        v_mov_b32 v2, s23
        s_sub_u32 s22, s22, 1
    ''')
    g.e(pub(g, 3, 2))
    if o.lstamp:
        g.stamp()
    g.many(f'''
        s_branch L_CHK
    L_W2:
        s_cmp_eq_u32 s22, 2
        s_cbranch_scc0 L_W1
        s_waitcnt vmcnt(4)
        s_branch L_PUB
    L_W1:
        s_cmp_eq_u32 s22, 0
        s_cbranch_scc1 L_END
        s_waitcnt vmcnt(0)
        s_branch L_PUB
    L_END:
    ''')
    g.stamp_out()
    g.e('s_endpgm')


def gen_consumer(g, lay):
    o = g.o
    c = 128 ** -0.5 * math.log2(math.e)
    st = o.stpol
    g.idx, g.m0save = 's8', 's9'
    pr = o.prio
    g.lab('CONSUMER')
    g.many(f'''
        v_mov_b32 v{vFA}, {lay['FULLA']}
        v_mov_b32 v{vPA}, v3
        v_and_b32 v1, 7, v0
        v_mul_u32_u24 v{vKb}, {KST}, v1
        v_bfe_u32 v2, v0, 3, 2
        v_lshl_add_u32 v{vKb}, v2, 8, v{vKb}
        v_lshrrev_b32 v3, 5, v0
        v_bfe_u32 v4, v0, 4, 1
        v_xor_b32 v5, v3, v4
        v_lshl_add_u32 v{vKb}, v5, 4, v{vKb}
        v_bfe_u32 v5, v0, 2, 2
        v_lshl_add_u32 v5, v3, 2, v5
        v_mul_u32_u24 v{vVb}, {VST}, v5
        v_lshl_add_u32 v{vVb}, v4, 5, v{vVb}
        v_and_b32 v5, 1, v0
        v_lshl_add_u32 v{vVb}, v5, 4, v{vVb}
        v_bfe_u32 v5, v0, 1, 1
        v_lshl_add_u32 v{vVb}, v5, 3, v{vVb}
        v_bfe_u32 v5, v0, 2, 1
        v_lshl_add_u32 v2, v5, 4, v2
        v_and_b32 v5, 3, v0
        v_lshl_add_u32 v2, v5, 2, v2
        s_lshl_b32 s3, s14, 12
        s_add_u32 s3, s3, {lay['STG'] - 4 * 4096}
        v_xor_b32 v1, v1, v3
        v_lshlrev_b32 v1, 4, v1
        v_lshl_add_u32 v2, v2, 7, v1
        v_add_u32 v{vSW}, s3, v2
        s_mov_b32 s13, s3
        s_mov_b32 {sC}, {hex(f2u(c))}
        s_mov_b32 {sNC}, {hex(f2u(-c))}
        s_mov_b32 {sThr}, {hex(f2u(2.0 ** 24))}
        s_mov_b32 {sP}, 0
        s_mov_b32 {sSpin}, 0x40000
        s_mov_b32 m0, 0
        s_waitcnt lgkmcnt(0)
        v_mov_b32 v{vT}, s{TB + 5}
        s_mov_b32 s7, 0x00020000
        s_add_u32 s10, s10, s15
        s_addc_u32 s11, s11, 0
    ''')
    g.e(pub(g, vPA, vT))
    g.many('''
        s_waitcnt lgkmcnt(0)
        s_barrier
    ''')
    if o.stamps:
        g.e('s_mov_b32 s8, 5')
        g.e('s_mov_b32 s12, 0')
    g.stamp()
    g.lab('TASK')
    g.many(f'''
        s_movrels_b64 s[{H}:{H + 1}], s[{TB}:{TB + 1}]
        s_movrels_b64 s[{H + 2}:{H + 3}], s[{TB + 2}:{TB + 3}]
        s_movrels_b64 s[{H + 4}:{H + 5}], s[{TB + 4}:{TB + 5}]
        s_movrels_b64 s[24:25], s[{TB + 6}:{TB + 7}]
        s_add_u32 m0, m0, 8
        s_cmp_eq_u32 s{H + 1}, 0
        s_cbranch_scc1 C_END
        v_mov_b32 v{P}, 0
        v_mov_b32 v{P + 1}, 0
        v_mov_b32 v{P + 2}, 0
        v_mov_b32 v{P + 3}, 0
        v_mov_b32 v{vL}, 0
        v_mov_b32 v{vNM}, 0x7f800000
    ''')
    for b in range(4):
        g.e(f'v_mfma_f32_32x32x16_bf16 {r(O + 16 * b, 16)}, {r(P, 4)}, {r(P, 4)}, 0')
    g.many(f'''
        s_lshr_b32 {sRem}, s{H + 4}, 24
        s_cmp_eq_u32 s{H + 2}, 0
        s_cselect_b32 {sMaskAt}, -1, 0
        s_mov_b32 {sE0p}, s{H + 4}
        {addr(vV, f's{H + 3}', vKb)}
        s_mov_b32 {sFirst}, 1
    ''')
    poll(g, 'T', f's{H + 3}')
    g.stamp()
    for s in range(8):
        g.e(f'ds_read_b128 {r(Q + 4 * s, 4)}, v{vV} offset:{32 * s}')
    g.lab('FRESH')
    g.e(addr(vK, sE0p, vKb))
    g.e('s_waitcnt lgkmcnt(7)')
    for s in range(8):
        g.e(kread(s))
    g.many(f'''
        s_cmp_eq_u32 {sRem}, {sMaskAt}
        s_cbranch_scc1 FMASK
        s_waitcnt lgkmcnt(7)
        {qk(0, True)}
    F_BACK:
    ''')
    for s in range(1, 8):
        g.e(f's_waitcnt lgkmcnt({7 - s})')
        g.e(qk(s))
    t0, t1 = FL, FL + 1
    g.many(f'''
        s_nop 7
        s_nop 3
        v_max3_f32 v{t0}, v{S}, v{S + 1}, v{S + 2}
        v_max3_f32 v{t1}, v{S + 3}, v{S + 4}, v{S + 5}
        v_max3_f32 v{t0}, v{t0}, v{S + 6}, v{S + 7}
        v_max3_f32 v{t1}, v{t1}, v{S + 8}, v{S + 9}
        v_max3_f32 v{t0}, v{t0}, v{S + 10}, v{S + 11}
        v_max3_f32 v{t1}, v{t1}, v{S + 12}, v{S + 13}
        v_max3_f32 v{t0}, v{t0}, v{S + 14}, v{S + 15}
        v_max_f32 v{t0}, v{t0}, v{t1}
        v_mov_b32 v{t1}, v{t0}
        s_nop 1
        v_permlane32_swap_b32 v{t0}, v{t1}
        v_max_f32 v{t0}, v{t0}, v{t1}
        v_mul_f32 v{t0}, {sNC}, v{t0}
        v_min_f32 v{t0}, v{t0}, v{vNM}
        s_cmp_eq_u32 {sFirst}, 0
        s_cbranch_scc1 RESCALE
    R_BACK:
        v_mov_b32 v{vNM}, v{t0}
        s_mov_b32 {sFirst}, 0
    ''')
    g.e(F(0, 16) + E(0, 16) + A(1, 16) + C(0, 8))
    g.stamp()
    g.lab('LATE')
    if o.stamps:
        g.e('s_memtime s[100:101]')
        g.e('s_waitcnt lgkmcnt(0)')
    poll(g, 'L', sE0)
    if o.stamps:
        g.e('s_memtime s[34:35]')
        g.e('s_waitcnt lgkmcnt(0)')
        g.e('s_sub_u32 s34, s34, s100')
        g.e('s_add_u32 s12, s12, s34')
    g.e(addr(vK, sE0, vKb))
    g.e(addr(vV, sE1, vVb))
    for s in range(8):
        g.e(kread(s))
    g.e('s_branch CONT')
    g.L.append('.p2align 4') if o.align else None
    g.lab('LOOP')
    loop_start = len(g.L)
    g.e('s_waitcnt lgkmcnt(0)')
    if pr:
        g.e(f's_setprio {pr[0]}')
    g.e(qk(0, True))
    g.lab('L_BACK')
    if pr and not o.pl:
        g.e(f's_setprio {pr[1]}')
    mins = [f'v_min3_u32 v{FL}, v{FL}, v{FL + 1}, v{FL + 2}', f'v_min_u32 v{FL}, v{FL}, v{FL + 3}']
    rfl = [f'v_readfirstlane_b32 {sP}, v{FL}']
    cmpv = [f'v_cmp_nge_f32 vcc, {sThr}, v{vLT}']
    lo = [f's_setprio {pr[2]}'] if pr else []
    flr = f'ds_read_b128 {r(FL, 4)}, v{vFA}'
    if o.sched <= 3:
        gapA = {0: [f'v_mov_b32 v{vT}, {sE1}'],
                1: pub(g, vPA, vT) + [f'v_add_f32 v{vL}, v{vL}, v{vLT}'],
                2: [f's_mov_b32 {sE0p}, {sE0}', f's_movrels_b64 s[24:25], s[{TB}:{TB + 1}]', 's_add_u32 m0, m0, 2'],
                7: [flr, addr(vK, sE0, vKb), addr(vV, sE1, vVb)]}
    else:
        gapA = {0: [f'v_mov_b32 v{vT}, {sE1}'],
                1: pub(g, vPA, vT),
                2: [f'v_add_f32 v{vL}, v{vL}, v{vLT}', f's_mov_b32 {sE0p}, {sE0}'],
                3: [f's_movrels_b64 s[24:25], s[{TB}:{TB + 1}]'],
                4: ['s_add_u32 m0, m0, 2'],
                5: [addr(vK, sE0, vKb)],
                6: [flr]}
    for m in range(8):
        if m > 0:
            g.e(qk(m))
        g.e(vread(m, m % 4, m // 4))
        g.e(gapA.get(m))

    def vseg(e0, f0=16):
        out = F(f0, 16)
        acc = [vLT, vT]
        tail = []
        done = e0
        q = []
        adds = []
        for i in range(2, 16):
            adds.append((i, f'v_add_f32 v{acc[i & 1]}, v{S + i - 2}, v{S + i}' if i < 4 else f'v_add_f32 v{acc[i & 1]}, v{acc[i & 1]}, v{S + i}'))
        cv = [(2 * k + 1, C(k, k + 1)[0]) for k in range(8)]
        ai = ci = 0
        for i in range(e0, 16):
            out += E(i, i + 1)
            if ai < len(adds) and adds[ai][0] < i:
                out.append(adds[ai][1]); ai += 1
            if i % 2 and ci < 5 and cv[ci][0] < i:
                out.append(cv[ci][1]); ci += 1
            elif ai < len(adds) and adds[ai][0] < i:
                out.append(adds[ai][1]); ai += 1
        out.append(cv[ci][1]); ci += 1
        out += [a for _, a in adds[ai:]]
        out.append(f'v_add_f32 v{vLT}, v{vLT}, v{vT}')
        out += cmpv + [c_ for _, c_ in cv[ci:]]
        return out
    seq = ['s_waitcnt lgkmcnt(9)', pv(0, 0, 0)]
    if o.sched > 3:
        seq += [addr(vV, sE1, vVb)]
    seq += [pv(1, 1, 0)]
    if o.sched == 1:
        seq += ['s_nop 3'] + F(0, 4) + [pv(2, 2, 0)] + F(4, 8) + [pv(3, 3, 0)]
        seq += [kread(s) for s in range(4)] + ['s_waitcnt lgkmcnt(4)', pv(4, 0, 1), kread(4)]
        seq += F(8, 12) + [pv(5, 1, 1), kread(5)] + F(12, 16) + [pv(6, 2, 1), kread(6)] + mins
        seq += [pv(7, 3, 1), kread(7)] + lo + rfl + E(0, 16) + A(1, 16) + cmpv + C(0, 8)
    elif o.sched in (2, 4, 5):
        seq += [kread(0), kread(1), pv(2, 2, 0), kread(2)] + F(0, 4) + [pv(3, 3, 0), kread(3)] + F(4, 8 if o.sched < 4 else 7)
        seq += ['s_waitcnt lgkmcnt(4)', pv(4, 0, 1), kread(4)]
        if o.sched == 2:
            seq += F(8, 12) + [pv(5, 1, 1), kread(5)] + F(12, 16) + [pv(6, 2, 1), kread(6)] + mins + E(0, 1)
        else:
            seq += F(7, 11) + [pv(5, 1, 1), kread(5)] + F(11, 15) + [pv(6, 2, 1), kread(6)] + F(15, 16) + mins
        seq += [pv(7, 3, 1), kread(7)] + lo + rfl
        if o.sched == 2:
            seq += E(1, 16) + A(1, 16) + cmpv + C(0, 8)
        elif o.sched == 4:
            seq += E(0, 16) + A(1, 16) + cmpv + C(0, 8)
        else:
            seq += vseg(0)
    elif o.sched in (3, 6):
        seq += [kread(0), kread(1), pv(2, 2, 0), kread(2)] + F(0, 4) + [pv(3, 3, 0), kread(3)] + F(4, 6) + E(0, 1)
        seq += ['s_waitcnt lgkmcnt(4)', pv(4, 0, 1), kread(4)]
        seq += F(6, 8) + E(1, 2) + [pv(5, 1, 1), kread(5)] + F(8, 10) + E(2, 3) + [pv(6, 2, 1), kread(6)] + mins + E(3, 4)
        seq += [pv(7, 3, 1), kread(7)] + lo + rfl
        if o.sched == 3:
            seq += F(10, 16) + E(4, 16) + A(1, 16) + cmpv + C(0, 8)
        else:
            seq += vseg(4, 10)
    elif o.sched == 7:
        seq += [kread(0), kread(1), pv(2, 2, 0), kread(2)] + F(0, 3) + [pv(3, 3, 0), kread(3)] + F(3, 5)
        seq += ['s_waitcnt lgkmcnt(4)', pv(4, 0, 1), kread(4)]
        seq += F(5, 8) + [pv(5, 1, 1), kread(5)] + F(8, 11) + [pv(6, 2, 1), kread(6)] + mins
        seq += [pv(7, 3, 1), kread(7)] + lo + rfl + vseg(0, 11)
    if o.klate:
        ks = [x for x in seq if x.startswith('ds_read_b128')]
        seq = [x for x in seq if not x.startswith('ds_read_b128')]
        seq = ['s_waitcnt lgkmcnt(0)' if x == 's_waitcnt lgkmcnt(4)' else x for x in seq]
        i = seq.index(rfl[0]) + 1
        tail = seq[i:]
        seq = seq[:i]
        if o.klate == 1:
            seq += ks + tail
        else:
            for k, x in enumerate(tail):
                if k < 8:
                    seq.append(ks[k])
                seq.append(x)
    if o.fine:
        seq = finewaits(seq, o.fine)
    g.e(seq)
    if o.pl:
        lad = dict((int(a), int(b)) for a, b in (x.split(':') for x in o.pl.split(',')))
        body = g.L[loop_start:]
        del g.L[loop_start:]
        k = 0
        for x in body:
            g.L.append(x)
            if 'v_mfma' in x:
                k += 1
                if k in lad:
                    g.e(f's_setprio {lad[k]}')
    g.many(f'''
        {'s_nop 0' if o.m3 or o.m5 else 's_cbranch_vccnz FRESH'}
        s_cmp_gt_u32 {sP}, {sE0}
        s_cbranch_scc0 LATE
    CONT:
    ''')
    if o.itst:
        g.stamp()
    g.many(f'''
        s_sub_u32 {sRem}, {sRem}, 1
        s_cbranch_scc1 FINAL
        s_cmp_eq_u32 {sRem}, {sMaskAt}
        s_cbranch_scc0 LOOP
        s_mov_b32 s27, 0
    MASK:
        v_mov_b32 v{FL}, s{H + 2}
        s_mov_b32 exec_lo, 0
        v_lshrrev_b32 v{FL}, 16, v{FL}
        s_mov_b32 exec_lo, -1
    ''')
    for i in range(16):
        bit = 4 * (i % 4) + i // 4
        g.e(f'v_bfe_i32 v{S + i}, v{FL}, {bit}, 1')
    for i in range(16):
        g.e(f'v_lshlrev_b32 v{S + i}, 23, v{S + i}')
    g.many(f'''
        s_waitcnt lgkmcnt(0)
        s_cmp_eq_u32 s27, 0
        {qk(0)}
        s_cbranch_scc1 L_BACK
        s_branch F_BACK
    ''')
    g.lab('FINAL')
    g.stamp()
    order = [(b, j) for b in range(4) for j in range(2)]
    g.e('s_waitcnt lgkmcnt(4)')
    for k in range(5):
        g.e(vread(k, *order[k]))
    X = S
    vW = [vSW, X, X + 1, X + 2]
    vR = [X + 4, X + 5, X + 6, X + 7]
    vG = [X + 8, X + 9, X + 10, X + 11]
    ln = X + 12

    def mul(b):
        return [f'v_mul_f32 v{O + 16 * b + i}, v{O + 16 * b + i}, v{vL}' for i in range(16)]

    def cvw(b):
        out = []
        for gq in range(2):
            d = Q + 8 * b + 4 * gq
            for k in range(4):
                i = O + 16 * b + 8 * gq + 2 * k
                out.append(f'v_cvt_pk_bf16_f32 v{d + k}, v{i}, v{i + 1}')
            out.append(f'ds_write_b128 v{vW[2 * (b & 1) + gq]}, {r(d, 4)}')
        return out

    def rd(rnd):
        return [f'ds_read_b128 {r(O + 32 * rnd + 4 * k, 4)}, v{vR[k]} offset:{1024 * k}' for k in range(4)]

    def stv(rnd):
        out = []
        for k in range(4):
            out.append(f's_waitcnt lgkmcnt({3 - k})')
            out.append(f'buffer_store_dwordx4 {r(O + 32 * rnd + 4 * k, 4)}, v{vG[k]}, s[4:7], 0 offen offset:{128 * rnd}{st}')
        return out
    seq = []
    seq += [f'v_add_f32 v{vL}, v{vL}, v{vLT}', f's_movrels_b32 s3, s{TB + 5}', f's_add_u32 s4, s10, s{H}',
            f'v_mov_b32 v{FL + 1}, v{vL}', f's_addc_u32 s5, s11, 0', f's_mov_b32 s6, s{H + 1}',
            f'v_permlane32_swap_b32 v{vL}, v{FL + 1}', f'v_mov_b32 v{vT}, s3',
            f'v_add_f32 v{vL}, v{vL}, v{FL + 1}',
            f'v_mbcnt_lo_u32_b32 v{ln}, -1, 0', f'v_rcp_f32 v{vL}, v{vL}', f'v_mbcnt_hi_u32_b32 v{ln}, -1, v{ln}']
    seq += ['s_waitcnt lgkmcnt(8)', pv(0, *order[0])] + vread(5, *order[5])
    seq += [f'v_lshrrev_b32 v{ln + 1}, 3, v{ln}', f'v_and_b32 v{ln + 2}, 7, v{ln}', f'v_lshrrev_b32 v{ln}, 5, v{ln}']
    seq += ['s_waitcnt lgkmcnt(8)', pv(1, *order[1])] + vread(6, *order[6])
    seq += [f'v_lshlrev_b32 v{vG[0]}, 12, v{ln + 1}', f'v_xor_b32 v{ln}, v{ln}, v{ln + 2}',
            f'v_lshl_add_u32 v{vG[0]}, v{ln + 2}, 4, v{vG[0]}']
    seq += ['s_waitcnt lgkmcnt(8)', pv(2, *order[2])] + vread(7, *order[7])
    seq += [f'v_lshl_add_u32 v{vR[0]}, v{ln + 1}, 7, s13', f'v_xor_b32 v{vW[1]}, 32, v{vSW}',
            f'v_lshl_add_u32 v{vR[0]}, v{ln}, 4, v{vR[0]}']
    seq += ['s_waitcnt lgkmcnt(8)', pv(3, *order[3])]
    seq += [f'v_xor_b32 v{vW[2]}, 64, v{vSW}', f'v_xor_b32 v{vW[3]}, 0x60, v{vSW}',
            f'v_xor_b32 v{vR[1]}, 32, v{vR[0]}', f'v_xor_b32 v{vR[2]}, 64, v{vR[0]}']
    seq += ['s_waitcnt lgkmcnt(6)', pv(4, *order[4])]
    seq += [f'v_xor_b32 v{vR[3]}, 0x60, v{vR[0]}', f'v_add_u32 v{vG[1]}, 0x8000, v{vG[0]}',
            f'v_add_u32 v{vG[2]}, 0x10000, v{vG[0]}', f'v_add_u32 v{vG[3]}, 0x18000, v{vG[0]}']
    seq += ['s_waitcnt lgkmcnt(4)', pv(5, *order[5])]
    seq += mul(0)[:6]
    seq += ['s_waitcnt lgkmcnt(2)', pv(6, *order[6])]
    seq += mul(0)[6:12]
    seq += ['s_waitcnt lgkmcnt(0)', pv(7, *order[7])]
    seq += pub(g, vPA, vT)
    seq += mul(0)[12:] + cvw(0) + mul(1) + cvw(1)
    seq += mul(2)
    seq += ['s_waitcnt lgkmcnt(0)'] + rd(0)
    seq += mul(3)
    seq += stv(0)
    seq += cvw(2) + cvw(3)
    seq += ['s_waitcnt lgkmcnt(0)'] + rd(1) + stv(1)
    g.e(seq)
    g.stamp()
    g.e('s_branch TASK')
    g.lab('C_END')
    if o.stamps:
        g.e('s_waitcnt vmcnt(0)')
        g.stamp()
        g.stampval('s12')
    g.stamp_out()
    g.lab('END')
    g.e('s_endpgm')
    g.many(f'''
    FMASK:
        s_mov_b32 s27, 1
        s_branch MASK
    RESCALE:
        v_sub_f32 v{t1}, v{t0}, v{vNM}
        v_exp_f32 v{t1}, v{t1}
        s_nop 0
        v_mul_f32 v{vL}, v{vL}, v{t1}
    ''')
    for i in range(64):
        g.e(f'v_mul_f32 v{O + i}, v{O + i}, v{t1}')
    g.e('s_branch R_BACK')


def tables(plan, ring, o):
    words = []
    p = dict(sim.P)
    p['RING'] = ring
    wins = [int(x) for x in o.win.split(',')]
    for gi, cu in enumerate(plan):
        comp = [(PL.NT[s], [w for w, _ in tasks]) for s, hb, tasks in cu]
        if o.order == 'sim':
            m, order = sim.best_order(comp, p, local=1)
        else:
            order = sim.init_order(comp, 1000, 1200, o.qsplit)
        items, hdr = PL.stream_from_order(cu, order, ring)
        w = [0] * (GSTRIDE // 4)
        assert len(items) <= 62
        for i, (ty, row0, hb, end) in enumerate(items):
            win = wins[0]
            if len(wins) > 1 and gi >= wins[2] and i < wins[3]:
                win = wins[1]
            b = 64 * (i & 1) + (i >> 1) * 2
            w[b] = row0 * 4096 + hb * 256
            w[b + 1] = ((end - 1) * 4096 + 512) | (ty == 'V') | ((ty == 'K') << 1) | (win << 2)
        sa = lambda it: (it % ring) * SLOT
        for c in range(8):
            s = []
            for h in hdr[c]:
                s += [h['row0'] * 4096 + h['hb'] * 256, h['nvq'] * 4096 - 3840, (0xffffffff << h['nvl']) & 0xffffffff,
                      sa(h['qitem']) | (max(h['qitem'], h['k0']) << 24), sa(h['k0']) | ((h['n'] - 1) << 24),
                      min(h['qitem'], h['k0']) << 24]
                for kn, vn in h['tl']:
                    s += [sa(kn) | (max(kn, vn) << 24), sa(vn) | (vn << 24)]
            s += [0, 0, 0, 0, 0, 255 << 24]
            assert len(s) <= 62, len(s)
            w[64 * (c + 2):64 * (c + 2) + len(s)] = s
        words += w
    return words


def main():
    ap = argparse.ArgumentParser()
    ap.add_argument('-o', default='standalone__varlen_attn_packed__ragged.s')
    ap.add_argument('--stamps', action='store_true')
    ap.add_argument('--win', default='3', help='W or W,Wlow,first group,items')
    ap.add_argument('--order', default='sim')
    ap.add_argument('--lprio', type=int, default=3)
    ap.add_argument('--itst', action='store_true')
    ap.add_argument('--pace', type=int, default=0)
    ap.add_argument('--klate', type=int, default=0)
    ap.add_argument('--pl', default='')
    ap.add_argument('--lstamp', type=int, default=1)
    ap.add_argument('--fine', type=int, default=0)
    ap.add_argument('--m5', type=int, default=0)
    ap.add_argument('--ring', type=int, default=15)
    ap.add_argument('--nt', action='store_true')
    ap.add_argument('--stpol', default='nt')
    ap.add_argument('--m1', type=int, default=0)
    ap.add_argument('--m3', type=int, default=0)
    ap.add_argument('--sched', type=int, default=2)
    ap.add_argument('--prio', default='120')
    ap.add_argument('--lsleep', type=int, default=2)
    ap.add_argument('--csleep', type=int, default=1)
    ap.add_argument('--execpub', action='store_true')
    ap.add_argument('--align', action='store_true')
    ap.add_argument('--qsplit', type=int, default=1)
    ap.add_argument('--plan', default='h2')
    o = ap.parse_args()
    if o.stpol:
        o.stpol = ' ' + o.stpol
    if o.prio == 'none':
        o.prio = ''
    lay = dict(RING=o.ring, RINGB=o.ring * SLOT)
    lay['STG'] = lay['RINGB']
    lay['FULLA'] = lay['STG'] + 8 * 4096
    lay['PROGA'] = lay['FULLA'] + 16
    lds = lay['FULLA'] + 64
    assert lds <= 163840 and lay['STG'] % 128 == 0
    g = Gen(o)
    ref = open('standalone__varlen_attn_packed__ragged.s.ref').read().split('\n')
    head = [l for l in ref[:12] if l.startswith(';') and '@launch' not in l]
    out = head + [f'; @launch grid=(256,1,1) block=(768,1,1) lds={lds}',
                  '.amdgcn_target "amdgcn-amd-amdhsa--gfx950"', '.text', f'.globl {NAME}', '.p2align 8',
                  f'.type {NAME},@function', f'{NAME}:']
    g.many(f'''
        s_cmp_ge_u32 s2, 256
        s_cbranch_scc1 END
        v_lshrrev_b32 v1, 6, v0
        s_getpc_b64 s[12:13]
    PCREF:
        s_load_dwordx4 s[4:7], s[0:1], 0
        v_readfirstlane_b32 s14, v1
        s_load_dwordx2 s[8:9], s[0:1], 16
        s_lshr_b32 s3, s2, 3
        s_mul_i32 s3, s3, {GSTRIDE}
        s_and_b32 s15, s14, 1
        s_sub_u32 s28, s14, 2
        s_cmp_ge_u32 s14, 4
        s_cselect_b32 s15, s28, s15
        s_lshl_b32 s15, s15, 8
        s_add_u32 s3, s3, s15
        s_add_u32 s3, s3, TABLE-PCREF
        s_add_u32 s12, s12, s3
        s_addc_u32 s13, s13, 0
        s_load_dwordx16 s[36:51], s[12:13], 0
        s_load_dwordx16 s[52:67], s[12:13], 64
        s_load_dwordx16 s[68:83], s[12:13], 128
        s_load_dwordx16 s[84:99], s[12:13], 192
        s_load_dwordx2 s[10:11], s[0:1], 32
        v_lshlrev_b32 v3, 2, v1
        v_add_u32 v3, {lay['FULLA']}, v3
        s_and_b32 s15, s2, 7
        s_lshl_b32 s15, s15, 9
        v_and_b32 v0, 63, v0
    ''')
    if o.stamps:
        g.idx, g.m0save = 's32', None
        g.e('s_mov_b32 s32, 0')
        g.e('v_mov_b32 v167, 0')
        g.e('s_memrealtime s[34:35]')
        g.e('s_memtime s[100:101]')
        g.e('s_getreg_b32 s33, hwreg(HW_REG_HW_ID)')
        g.stampval('s33')
        g.e('s_getreg_b32 s33, hwreg(HW_REG_XCC_ID)')
        g.stampval('s33')
        g.e('s_waitcnt lgkmcnt(0)')
        g.stampval('s34')
        g.stampval('s100')
    g.many('''
        s_cmp_ge_u32 s14, 4
        s_cbranch_scc1 CONSUMER
    ''')
    gen_loader(g, lay)
    gen_consumer(g, lay)
    plan = PL.get_plan(o.plan)
    PL.check_plan(plan)
    tw = tables(plan, o.ring, o)
    g.L.append('.p2align 6')
    g.lab('TABLE')
    for i in range(0, len(tw), 8):
        g.e('.long ' + ', '.join(hex(x) for x in tw[i:i + 8]))
    out += g.L
    out += ['.section .rodata,"a"', '.p2align 6', f'.amdhsa_kernel {NAME}', '  .amdhsa_next_free_vgpr 168',
            '  .amdhsa_next_free_sgpr 102', '  .amdhsa_accum_offset 168', '  .amdhsa_group_segment_fixed_size 0',
            '  .amdhsa_kernarg_size 56', '  .amdhsa_user_sgpr_count 2', '  .amdhsa_user_sgpr_kernarg_segment_ptr 1',
            '  .amdhsa_system_sgpr_workgroup_id_x 1', '.end_amdhsa_kernel', '']
    open(o.o, 'w').write('\n'.join(out))


main()
```

```python
import sys, os, argparse, struct, math
sys.path.insert(0, os.path.dirname(os.path.abspath(__file__)))
import plan as PL
import sim

NAME = 'standalone__varlen_attn_packed__ragged_kernel'
SLOT = 8704
KST, VST = 1056, 1088
GSTRIDE = 2560


def f2u(x):
    return struct.unpack('<I', struct.pack('<f', x))[0]


class Gen:
    def __init__(self, o):
        self.o = o
        self.L = []
        self.idx = 's8'
        self.m0save = 's9'

    def e(self, s):
        if s is None:
            return
        if isinstance(s, (list, tuple)):
            for x in s:
                self.e(x)
            return
        self.L.append('    ' + s)

    def lab(self, s):
        self.L.append(s + ':')

    def many(self, txt):
        for l in txt.strip().split('\n'):
            l = l.strip()
            if not l or l == 'None':
                continue
            if l.endswith(':'):
                self.L.append(l)
            else:
                self.e(l)

    def stamp(self, real=False, force=False):
        if not self.o.stamps or (self.o.mini and not force):
            return
        self.e('s_memrealtime s[34:35]' if real else 's_memtime s[34:35]')
        self.e('s_waitcnt lgkmcnt(0)')
        self.stampval('s34')

    def stampval(self, s):
        if not self.o.stamps:
            return
        if self.m0save:
            self.e(f's_mov_b32 {self.m0save}, m0')
        self.e(f's_mov_b32 m0, {self.idx}')
        self.e(f's_add_u32 {self.idx}, {self.idx}, 1')
        self.e(f'v_writelane_b32 v167, {s}, m0')
        if self.m0save:
            self.e(f's_mov_b32 m0, {self.m0save}')
            self.e('s_nop 0')

    def stamp_out(self):
        if self.o.probe:
            self.np = getattr(self, 'np', 0) + 1
            self.many(f'''
                s_waitcnt vmcnt(0)
                s_mov_b32 s3, 0x100000
                s_add_u32 s100, s100, {self.o.probe}
            PRB{self.np}:
                s_memrealtime s[34:35]
                s_waitcnt lgkmcnt(0)
                s_sub_u32 s3, s3, 1
                s_cbranch_scc1 PRBX{self.np}
                s_sub_u32 s35, s34, s100
                s_cmp_lt_i32 s35, 0
                s_cbranch_scc1 PRB{self.np}
            PRBX{self.np}:
            ''')
        if not self.o.stamps:
            return
        self.e(f's_mov_b32 {self.idx}, 62')
        self.stamp(force=True)
        self.stamp(real=True, force=True)
        self.many(f'''
            s_load_dwordx2 s[34:35], s[0:1], 48
            s_mul_i32 s3, s2, 12
            s_add_u32 s3, s3, s14
            s_lshl_b32 s3, s3, 8
            v_mbcnt_lo_u32_b32 v1, -1, 0
            v_mbcnt_hi_u32_b32 v1, -1, v1
            v_lshlrev_b32 v1, 2, v1
            v_add_u32 v1, s3, v1
            s_waitcnt lgkmcnt(0)
            global_store_dword v1, v167, s[34:35]
        ''')


O, Q, S, P, POOL = 0, 64, 96, 112, 120
vKb, vVb, vK, vV, vL, vNM, vLT, vT = 152, 153, 154, 155, 156, 157, 158, 159
FL = 160
vFA, vPA, vSW = 164, 165, 166
sC, sNC, sThr, sP, sSpin, sRem, sMaskAt, sFirst = 's16', 's17', 's18', 's19', 's20', 's21', 's22', 's23'
sE0, sE1, sE0p = 's24', 's25', 's26'
H = 28
TB = 36


def r(a, n):
    return f'v[{a}:{a + n - 1}]'


def pool(i):
    return r(POOL + 4 * i, 4)


def qk(i, c0=False):
    c = '0' if c0 else r(S, 16)
    return f'v_mfma_f32_32x32x16_bf16 {r(S, 16)}, {pool(i)}, {r(Q + 4 * i, 4)}, {c}'


def pv(slot, b, j):
    return f'v_mfma_f32_32x32x16_bf16 {r(O + 16 * b, 16)}, {pool(slot)}, {r(P + 4 * j, 4)}, {r(O + 16 * b, 16)}'


def kread(s, addr=vK):
    return f'ds_read_b128 {pool(s)}, v{addr} offset:{32 * s}'


def vread(slot, b, j):
    return [f'ds_read_b64_tr_b16 {r(POOL + 4 * slot + 2 * eh, 2)}, v{vV} offset:{(2 * j + eh) * 256 + 64 * b}'
            for eh in (0, 1)]


def F(a, b):
    return [f'v_fma_f32 v{S + i}, v{S + i}, {sC}, v{vNM}' for i in range(a, b)]


def E(a, b):
    return [f'v_exp_f32 v{S + i}, v{S + i}' for i in range(a, b)]


def A(a, b):
    return [f'v_add_f32 v{vLT}, v{S}, v{S + 1}' if i == 1 else f'v_add_f32 v{vLT}, v{vLT}, v{S + i}'
            for i in range(max(a, 1), b)]


def C(a, b):
    return [f'v_cvt_pk_bf16_f32 v{P + k}, v{S + 2 * k}, v{S + 2 * k + 1}' for k in range(a, b)]


def addr(dst, s, base):
    return f'v_mad_u32_u24 v{dst}, {s}, 1, v{base}'


def pub(g, a, val):
    if g.o.execpub:
        return ['s_mov_b64 exec, 1', f'ds_write_b32 v{a}, v{val}', 's_mov_b64 exec, -1']
    return [f'ds_write_b32 v{a}, v{val}']


def poll(g, tag, need):
    g.many(f'''
        s_cmp_gt_u32 {sP}, {need}
        s_cbranch_scc1 POLLOK_{tag}
    POLL_{tag}:
        ds_read_b128 {r(FL, 4)}, v{vFA}
        s_waitcnt lgkmcnt(0)
        v_min3_u32 v{FL}, v{FL}, v{FL + 1}, v{FL + 2}
        v_min_u32 v{FL}, v{FL}, v{FL + 3}
        s_sub_u32 {sSpin}, {sSpin}, 1
        s_cbranch_scc1 END
        v_readfirstlane_b32 {sP}, v{FL}
        s_cmp_gt_u32 {sP}, {need}
        s_cbranch_scc1 POLLOK_{tag}
        s_sleep {g.o.csleep}
        s_branch POLL_{tag}
    POLLOK_{tag}:
    ''')


def finewaits(seq, step):
    q = ['V0', 'V0', 'V1', 'V1', 'W', 'V2', 'V2', 'V3', 'V3', 'V4', 'V4', 'V5', 'V5', 'V6', 'V6', 'FL', 'V7', 'V7']
    out = []
    k = 0
    for x in seq:
        if x.startswith('s_waitcnt lgkmcnt'):
            continue
        if x.startswith('v_mfma'):
            if k % step == 0:
                need = 'V%d' % (k + step - 1)
                last = max(i for i, n in enumerate(q) if n == need)
                out.append(f's_waitcnt lgkmcnt({min(15, len(q) - 1 - last)})')
            k += 1
        if x.startswith('ds_read'):
            q.append('K')
        out.append(x)
    return out


def gen_loader(g, lay):
    o = g.o
    nt = ' nt' if o.nt else ''
    g.idx, g.m0save = 's32', None
    g.lab('LOADER')
    g.many(f'''
        s_setprio {o.lprio}
        s_and_b32 s20, s14, 1
        s_lshr_b32 s3, s14, 1
        s_lshl_b32 s23, s20, 24
        v_mov_b32 v2, s23
        v_lshrrev_b32 v5, 4, v0
        ds_write_b32 v3, v2
        v_mov_b32 v4, {lay['PROGA']}
        v_and_b32 v6, 15, v0
        v_lshrrev_b32 v7, 5, v0
        v_xor_b32 v7, v7, v6
        v_lshlrev_b32 v5, 12, v5
        s_mul_i32 s30, s3, {4 * KST}
        s_mul_i32 s31, s3, {4 * VST}
        s_lshl_b32 s3, s3, 16
        v_add_u32 v5, s3, v5
        v_lshl_add_u32 v8, v7, 4, v5
        v_lshl_add_u32 v12, v6, 4, v5
        v_add_u32 v9, {16384 - KST}, v8
        v_add_u32 v13, {16384 - VST}, v12
        v_add_u32 v10, {2 * (16384 - KST)}, v8
        v_add_u32 v14, {2 * (16384 - VST)}, v12
        v_add_u32 v11, {3 * (16384 - KST)}, v8
        v_add_u32 v15, {3 * (16384 - VST)}, v12
        s_mov_b32 s19, 0x00020000
        s_mov_b32 s22, 0
        s_mov_b32 s26, {1000 if o.m1 else lay['RING']}
        s_mov_b32 s27, 0x40000
        s_mul_i32 s28, s20, {SLOT}
        s_mov_b32 s29, 1
        s_waitcnt lgkmcnt(0)
    ''')
    g.stamp()
    if o.m3 == 1:
        g.e('v_mov_b32 v2, -1')
        g.e('ds_write_b32 v3, v2')
        g.e('s_waitcnt lgkmcnt(0)')
        g.e('s_barrier')
        g.e('s_branch L_END')
    g.many(f'''
        s_mov_b32 m0, 0
        s_add_u32 s4, s4, s15
        s_addc_u32 s5, s5, 0
        s_add_u32 s6, s6, s15
        s_addc_u32 s7, s7, 0
        s_add_u32 s8, s8, s15
        s_addc_u32 s9, s9, 0
        s_mov_b32 s11, 0x00020000
    L_NEXT:
        s_movrels_b64 s[24:25], s[{TB}:{TB + 1}]
        s_bfe_u32 s12, s25, 0x20002
    L_CHK:
        s_cmp_ge_u32 s22, s12
        s_cbranch_scc1 L_WAIT
        s_cmp_lt_u32 s20, s26
        s_cbranch_scc0 L_POLL
    L_ISSUE:
        {'s_cmp_ge_u32 s20, 15' if o.m5 else None}
        {'s_cbranch_scc1 L_ALT' if o.m5 else None}
        s_bitcmp1_b32 s25, 0
        s_cbranch_scc1 L_V
        s_add_u32 m0, s28, s30
        s_bitcmp1_b32 s25, 1
        s_cselect_b64 s[16:17], s[6:7], s[4:5]
        s_mov_b32 s18, s25
        buffer_load_dwordx4 v8, s[16:19], s24 offen{nt} lds
        buffer_load_dwordx4 v9, s[16:19], s24 offen offset:{KST}{nt} lds
        buffer_load_dwordx4 v10, s[16:19], s24 offen offset:{2 * KST}{nt} lds
        buffer_load_dwordx4 v11, s[16:19], s24 offen offset:{3 * KST}{nt} lds
        s_branch L_DONE
    L_V:
        s_add_u32 m0, s28, s31
        s_mov_b32 s10, s25
        buffer_load_dwordx4 v12, s[8:11], s24 offen{nt} lds
        buffer_load_dwordx4 v13, s[8:11], s24 offen offset:{VST}{nt} lds
        buffer_load_dwordx4 v14, s[8:11], s24 offen offset:{2 * VST}{nt} lds
        buffer_load_dwordx4 v15, s[8:11], s24 offen offset:{3 * VST}{nt} lds
    L_DONE:
        s_add_u32 s20, s20, 2
        s_add_u32 s28, s28, {2 * SLOT}
        s_and_b32 m0, s20, -2
        s_sub_u32 s3, s28, {lay['RINGB']}
        s_cselect_b32 s28, s28, s3
        s_add_u32 s22, s22, 1
        s_branch L_NEXT
    L_POLL:
        {'s_waitcnt vmcnt(0)' if o.m3 == 2 else None}
        {'v_mov_b32 v2, -1' if o.m3 == 2 else None}
        {'ds_write_b32 v3, v2' if o.m3 == 2 else None}
        {'s_branch L_END' if o.m3 == 2 else None}
        ds_read_b128 v[24:27], v4
        ds_read_b128 v[28:31], v4 offset:16
        s_waitcnt lgkmcnt(0)
        v_min3_u32 v24, v24, v25, v26
        v_min3_u32 v27, v27, v28, v29
        v_min3_u32 v24, v24, v30, v31
        v_min_u32 v24, v24, v27
        s_nop 0
        v_readfirstlane_b32 s26, v24
        s_lshr_b32 s26, s26, 24
        s_add_u32 s26, s26, {lay['RING']}
        s_cmp_lt_u32 s20, s26
        s_cbranch_scc1 {'L_SLOW' if o.pace else 'L_ISSUE'}
        s_cmp_gt_u32 s22, 0
        s_cbranch_scc1 L_WAIT
        s_sub_u32 s27, s27, 1
        s_cbranch_scc1 END
        s_sleep {o.lsleep}
        s_branch L_POLL
    L_SLOW:
        s_bitcmp1_b32 s25, 0
        s_cbranch_scc1 L_SV
        s_add_u32 m0, s28, s30
        s_bitcmp1_b32 s25, 1
        s_cselect_b64 s[16:17], s[6:7], s[4:5]
        s_mov_b32 s18, s25
        buffer_load_dwordx4 v8, s[16:19], s24 offen{nt} lds
        s_sleep {o.pace}
        buffer_load_dwordx4 v9, s[16:19], s24 offen offset:{KST}{nt} lds
        s_sleep {o.pace}
        buffer_load_dwordx4 v10, s[16:19], s24 offen offset:{2 * KST}{nt} lds
        s_sleep {o.pace}
        buffer_load_dwordx4 v11, s[16:19], s24 offen offset:{3 * KST}{nt} lds
        s_branch L_DONE
    L_SV:
        s_add_u32 m0, s28, s31
        s_mov_b32 s10, s25
        buffer_load_dwordx4 v12, s[8:11], s24 offen{nt} lds
        s_sleep {o.pace}
        buffer_load_dwordx4 v13, s[8:11], s24 offen offset:{VST}{nt} lds
        s_sleep {o.pace}
        buffer_load_dwordx4 v14, s[8:11], s24 offen offset:{2 * VST}{nt} lds
        s_sleep {o.pace}
        buffer_load_dwordx4 v15, s[8:11], s24 offen offset:{3 * VST}{nt} lds
        s_branch L_DONE
    L_ALT:
        s_mov_b32 s10, s25
        {'buffer_load_dwordx4 v[40:43], v12, s[8:11], s24 offen' if o.m5 == 2 else None}
        {'buffer_load_dwordx4 v[44:47], v13, s[8:11], s24 offen offset:1088' if o.m5 == 2 else None}
        {'buffer_load_dwordx4 v[48:51], v14, s[8:11], s24 offen offset:2176' if o.m5 == 2 else None}
        {'buffer_load_dwordx4 v[52:55], v15, s[8:11], s24 offen offset:3264' if o.m5 == 2 else None}
        s_branch L_DONE
    L_FIRST:
        s_mov_b32 s29, 0
    ''')
    g.stamp()
    g.many(f'''
        s_barrier
    L_WAIT:
        s_cmp_lg_u32 s29, 0
        s_cbranch_scc1 L_FIRST
        s_cmp_eq_u32 s22, 3
        s_cbranch_scc0 L_W2
        s_waitcnt vmcnt(8)
    L_PUB:
        s_add_u32 s23, s23, 0x2000000
        v_mov_b32 v2, s23
        s_sub_u32 s22, s22, 1
    ''')
    g.e(pub(g, 3, 2))
    if o.lstamp:
        g.stamp()
    g.many(f'''
        s_branch L_CHK
    L_W2:
        s_cmp_eq_u32 s22, 2
        s_cbranch_scc0 L_W1
        s_waitcnt vmcnt(4)
        s_branch L_PUB
    L_W1:
        s_cmp_eq_u32 s22, 0
        s_cbranch_scc1 L_END
        s_waitcnt vmcnt(0)
        s_branch L_PUB
    L_END:
    ''')
    g.stamp_out()
    g.e('s_endpgm')


def gen_consumer(g, lay):
    o = g.o
    c = 128 ** -0.5 * math.log2(math.e)
    st = o.stpol
    g.idx, g.m0save = 's8', 's9'
    pr = o.prio
    g.lab('CONSUMER')
    g.many(f'''
        v_mov_b32 v{vFA}, {lay['FULLA']}
        v_mov_b32 v{vPA}, v3
        v_and_b32 v1, 7, v0
        v_mul_u32_u24 v{vKb}, {KST}, v1
        v_bfe_u32 v2, v0, 3, 2
        v_lshl_add_u32 v{vKb}, v2, 8, v{vKb}
        v_lshrrev_b32 v3, 5, v0
        v_bfe_u32 v4, v0, 4, 1
        v_xor_b32 v5, v3, v4
        v_lshl_add_u32 v{vKb}, v5, 4, v{vKb}
        v_bfe_u32 v5, v0, 2, 2
        v_lshl_add_u32 v5, v3, 2, v5
        v_mul_u32_u24 v{vVb}, {VST}, v5
        v_lshl_add_u32 v{vVb}, v4, 5, v{vVb}
        v_and_b32 v5, 1, v0
        v_lshl_add_u32 v{vVb}, v5, 4, v{vVb}
        v_bfe_u32 v5, v0, 1, 1
        v_lshl_add_u32 v{vVb}, v5, 3, v{vVb}
        v_bfe_u32 v5, v0, 2, 1
        v_lshl_add_u32 v2, v5, 4, v2
        v_and_b32 v5, 3, v0
        v_lshl_add_u32 v2, v5, 2, v2
        s_lshl_b32 s3, s14, 12
        s_add_u32 s3, s3, {lay['STG'] - 4 * 4096}
        v_xor_b32 v1, v1, v3
        v_lshlrev_b32 v1, 4, v1
        v_lshl_add_u32 v2, v2, 7, v1
        v_add_u32 v{vSW}, s3, v2
        s_mov_b32 s13, s3
        s_mov_b32 {sC}, {hex(f2u(c))}
        s_mov_b32 {sNC}, {hex(f2u(-c))}
        s_mov_b32 {sThr}, {hex(f2u(2.0 ** 24))}
        s_mov_b32 {sP}, 0
        s_mov_b32 {sSpin}, 0x40000
        s_mov_b32 m0, 0
        s_waitcnt lgkmcnt(0)
        v_mov_b32 v{vT}, s{TB + 5}
        s_mov_b32 s7, 0x00020000
        s_add_u32 s10, s10, s15
        s_addc_u32 s11, s11, 0
    ''')
    g.e(pub(g, vPA, vT))
    g.many('''
        s_waitcnt lgkmcnt(0)
        s_barrier
    ''')
    if o.stamps:
        g.e('s_mov_b32 s8, 5')
        g.e('s_mov_b32 s12, 0')
    g.stamp()
    g.lab('TASK')
    g.many(f'''
        s_movrels_b64 s[{H}:{H + 1}], s[{TB}:{TB + 1}]
        s_movrels_b64 s[{H + 2}:{H + 3}], s[{TB + 2}:{TB + 3}]
        s_movrels_b64 s[{H + 4}:{H + 5}], s[{TB + 4}:{TB + 5}]
        s_movrels_b64 s[24:25], s[{TB + 6}:{TB + 7}]
        s_add_u32 m0, m0, 8
        s_cmp_eq_u32 s{H + 1}, 0
        s_cbranch_scc1 C_END
        v_mov_b32 v{P}, 0
        v_mov_b32 v{P + 1}, 0
        v_mov_b32 v{P + 2}, 0
        v_mov_b32 v{P + 3}, 0
        v_mov_b32 v{vL}, 0
        v_mov_b32 v{vNM}, 0x7f800000
    ''')
    for b in range(4):
        g.e(f'v_mfma_f32_32x32x16_bf16 {r(O + 16 * b, 16)}, {r(P, 4)}, {r(P, 4)}, 0')
    g.many(f'''
        s_lshr_b32 {sRem}, s{H + 4}, 24
        s_cmp_eq_u32 s{H + 2}, 0
        s_cselect_b32 {sMaskAt}, -1, 0
        s_mov_b32 {sE0p}, s{H + 4}
        {addr(vV, f's{H + 3}', vKb)}
        s_mov_b32 {sFirst}, 1
    ''')
    poll(g, 'T', f's{H + 3}')
    g.stamp()
    for s in range(8):
        g.e(f'ds_read_b128 {r(Q + 4 * s, 4)}, v{vV} offset:{32 * s}')
    g.lab('FRESH')
    g.e(addr(vK, sE0p, vKb))
    g.e('s_waitcnt lgkmcnt(7)')
    for s in range(8):
        g.e(kread(s))
    g.many(f'''
        s_cmp_eq_u32 {sRem}, {sMaskAt}
        s_cbranch_scc1 FMASK
        s_waitcnt lgkmcnt(7)
        {qk(0, True)}
    F_BACK:
    ''')
    for s in range(1, 8):
        g.e(f's_waitcnt lgkmcnt({7 - s})')
        g.e(qk(s))
    t0, t1 = FL, FL + 1
    g.many(f'''
        s_nop 7
        s_nop 3
        v_max3_f32 v{t0}, v{S}, v{S + 1}, v{S + 2}
        v_max3_f32 v{t1}, v{S + 3}, v{S + 4}, v{S + 5}
        v_max3_f32 v{t0}, v{t0}, v{S + 6}, v{S + 7}
        v_max3_f32 v{t1}, v{t1}, v{S + 8}, v{S + 9}
        v_max3_f32 v{t0}, v{t0}, v{S + 10}, v{S + 11}
        v_max3_f32 v{t1}, v{t1}, v{S + 12}, v{S + 13}
        v_max3_f32 v{t0}, v{t0}, v{S + 14}, v{S + 15}
        v_max_f32 v{t0}, v{t0}, v{t1}
        v_mov_b32 v{t1}, v{t0}
        s_nop 1
        v_permlane32_swap_b32 v{t0}, v{t1}
        v_max_f32 v{t0}, v{t0}, v{t1}
        v_mul_f32 v{t0}, {sNC}, v{t0}
        v_min_f32 v{t0}, v{t0}, v{vNM}
        s_cmp_eq_u32 {sFirst}, 0
        s_cbranch_scc1 RESCALE
    R_BACK:
        v_mov_b32 v{vNM}, v{t0}
        s_mov_b32 {sFirst}, 0
    ''')
    g.e(F(0, 16) + E(0, 16) + A(1, 16) + C(0, 8))
    g.stamp()
    g.lab('LATE')
    if o.stamps and not o.mini:
        g.e('s_memtime s[100:101]')
        g.e('s_waitcnt lgkmcnt(0)')
    poll(g, 'L', sE0)
    if o.stamps and not o.mini:
        g.e('s_memtime s[34:35]')
        g.e('s_waitcnt lgkmcnt(0)')
        g.e('s_sub_u32 s34, s34, s100')
        g.e('s_add_u32 s12, s12, s34')
    g.e(addr(vK, sE0, vKb))
    g.e(addr(vV, sE1, vVb))
    for s in range(8):
        g.e(kread(s))
    g.e('s_branch CONT')
    g.L.append('.p2align 4') if o.align else None
    g.lab('LOOP')
    loop_start = len(g.L)
    g.e('s_waitcnt lgkmcnt(0)')
    if pr:
        g.e(f's_setprio {pr[0]}')
    g.e(qk(0, True))
    g.lab('L_BACK')
    if pr and not o.pl:
        g.e(f's_setprio {pr[1]}')
    mins = [f'v_min3_u32 v{FL}, v{FL}, v{FL + 1}, v{FL + 2}', f'v_min_u32 v{FL}, v{FL}, v{FL + 3}']
    rfl = [f'v_readfirstlane_b32 {sP}, v{FL}']
    cmpv = [f'v_cmp_nge_f32 vcc, {sThr}, v{vLT}']
    lo = [f's_setprio {pr[2]}'] if pr else []
    flr = f'ds_read_b128 {r(FL, 4)}, v{vFA}'
    if o.sched <= 3:
        gapA = {0: [f'v_mov_b32 v{vT}, {sE1}'],
                1: pub(g, vPA, vT) + [f'v_add_f32 v{vL}, v{vL}, v{vLT}'],
                2: [f's_mov_b32 {sE0p}, {sE0}', f's_movrels_b64 s[24:25], s[{TB}:{TB + 1}]', 's_add_u32 m0, m0, 2'],
                7: [flr, addr(vK, sE0, vKb), addr(vV, sE1, vVb)]}
    else:
        gapA = {0: [f'v_mov_b32 v{vT}, {sE1}'],
                1: pub(g, vPA, vT),
                2: [f'v_add_f32 v{vL}, v{vL}, v{vLT}', f's_mov_b32 {sE0p}, {sE0}'],
                3: [f's_movrels_b64 s[24:25], s[{TB}:{TB + 1}]'],
                4: ['s_add_u32 m0, m0, 2'],
                5: [addr(vK, sE0, vKb)],
                6: [flr]}
    for m in range(8):
        if m > 0:
            g.e(qk(m))
        g.e(vread(m, m % 4, m // 4))
        g.e(gapA.get(m))

    def vseg(e0, f0=16):
        out = F(f0, 16)
        acc = [vLT, vT]
        tail = []
        done = e0
        q = []
        adds = []
        for i in range(2, 16):
            adds.append((i, f'v_add_f32 v{acc[i & 1]}, v{S + i - 2}, v{S + i}' if i < 4 else f'v_add_f32 v{acc[i & 1]}, v{acc[i & 1]}, v{S + i}'))
        cv = [(2 * k + 1, C(k, k + 1)[0]) for k in range(8)]
        ai = ci = 0
        for i in range(e0, 16):
            out += E(i, i + 1)
            if ai < len(adds) and adds[ai][0] < i:
                out.append(adds[ai][1]); ai += 1
            if i % 2 and ci < 5 and cv[ci][0] < i:
                out.append(cv[ci][1]); ci += 1
            elif ai < len(adds) and adds[ai][0] < i:
                out.append(adds[ai][1]); ai += 1
        out.append(cv[ci][1]); ci += 1
        out += [a for _, a in adds[ai:]]
        out.append(f'v_add_f32 v{vLT}, v{vLT}, v{vT}')
        out += cmpv + [c_ for _, c_ in cv[ci:]]
        return out
    seq = ['s_waitcnt lgkmcnt(9)', pv(0, 0, 0)]
    if o.sched > 3:
        seq += [addr(vV, sE1, vVb)]
    seq += [pv(1, 1, 0)]
    if o.sched == 1:
        seq += ['s_nop 3'] + F(0, 4) + [pv(2, 2, 0)] + F(4, 8) + [pv(3, 3, 0)]
        seq += [kread(s) for s in range(4)] + ['s_waitcnt lgkmcnt(4)', pv(4, 0, 1), kread(4)]
        seq += F(8, 12) + [pv(5, 1, 1), kread(5)] + F(12, 16) + [pv(6, 2, 1), kread(6)] + mins
        seq += [pv(7, 3, 1), kread(7)] + lo + rfl + E(0, 16) + A(1, 16) + cmpv + C(0, 8)
    elif o.sched in (2, 4, 5):
        seq += [kread(0), kread(1), pv(2, 2, 0), kread(2)] + F(0, 4) + [pv(3, 3, 0), kread(3)] + F(4, 8 if o.sched < 4 else 7)
        seq += ['s_waitcnt lgkmcnt(4)', pv(4, 0, 1), kread(4)]
        if o.sched == 2:
            seq += F(8, 12) + [pv(5, 1, 1), kread(5)] + F(12, 16) + [pv(6, 2, 1), kread(6)] + mins + E(0, 1)
        else:
            seq += F(7, 11) + [pv(5, 1, 1), kread(5)] + F(11, 15) + [pv(6, 2, 1), kread(6)] + F(15, 16) + mins
        seq += [pv(7, 3, 1), kread(7)] + lo + rfl
        if o.sched == 2:
            seq += E(1, 16) + A(1, 16) + cmpv + C(0, 8)
        elif o.sched == 4:
            seq += E(0, 16) + A(1, 16) + cmpv + C(0, 8)
        else:
            seq += vseg(0)
    elif o.sched in (3, 6):
        seq += [kread(0), kread(1), pv(2, 2, 0), kread(2)] + F(0, 4) + [pv(3, 3, 0), kread(3)] + F(4, 6) + E(0, 1)
        seq += ['s_waitcnt lgkmcnt(4)', pv(4, 0, 1), kread(4)]
        seq += F(6, 8) + E(1, 2) + [pv(5, 1, 1), kread(5)] + F(8, 10) + E(2, 3) + [pv(6, 2, 1), kread(6)] + mins + E(3, 4)
        seq += [pv(7, 3, 1), kread(7)] + lo + rfl
        if o.sched == 3:
            seq += F(10, 16) + E(4, 16) + A(1, 16) + cmpv + C(0, 8)
        else:
            seq += vseg(4, 10)
    elif o.sched == 7:
        seq += [kread(0), kread(1), pv(2, 2, 0), kread(2)] + F(0, 3) + [pv(3, 3, 0), kread(3)] + F(3, 5)
        seq += ['s_waitcnt lgkmcnt(4)', pv(4, 0, 1), kread(4)]
        seq += F(5, 8) + [pv(5, 1, 1), kread(5)] + F(8, 11) + [pv(6, 2, 1), kread(6)] + mins
        seq += [pv(7, 3, 1), kread(7)] + lo + rfl + vseg(0, 11)
    if o.klate:
        ks = [x for x in seq if x.startswith('ds_read_b128')]
        seq = [x for x in seq if not x.startswith('ds_read_b128')]
        seq = ['s_waitcnt lgkmcnt(0)' if x == 's_waitcnt lgkmcnt(4)' else x for x in seq]
        i = seq.index(rfl[0]) + 1
        tail = seq[i:]
        seq = seq[:i]
        if o.klate == 1:
            seq += ks + tail
        else:
            for k, x in enumerate(tail):
                if k < 8:
                    seq.append(ks[k])
                seq.append(x)
    if o.fine:
        seq = finewaits(seq, o.fine)
    g.e(seq)
    if o.pl:
        lad = dict((int(a), int(b)) for a, b in (x.split(':') for x in o.pl.split(',')))
        body = g.L[loop_start:]
        del g.L[loop_start:]
        k = 0
        for x in body:
            g.L.append(x)
            if 'v_mfma' in x:
                k += 1
                if k in lad:
                    g.e(f's_setprio {lad[k]}')
    g.many(f'''
        {'s_nop 0' if o.m3 or o.m5 else 's_cbranch_vccnz FRESH'}
        s_cmp_gt_u32 {sP}, {sE0}
        s_cbranch_scc0 LATE
    CONT:
    ''')
    if o.itst:
        g.stamp()
    g.many(f'''
        s_sub_u32 {sRem}, {sRem}, 1
        s_cbranch_scc1 FINAL
        s_cmp_eq_u32 {sRem}, {sMaskAt}
        s_cbranch_scc0 LOOP
        s_mov_b32 s27, 0
    MASK:
        v_mov_b32 v{FL}, s{H + 2}
        s_mov_b32 exec_lo, 0
        v_lshrrev_b32 v{FL}, 16, v{FL}
        s_mov_b32 exec_lo, -1
    ''')
    for i in range(16):
        bit = 4 * (i % 4) + i // 4
        g.e(f'v_bfe_i32 v{S + i}, v{FL}, {bit}, 1')
    for i in range(16):
        g.e(f'v_lshlrev_b32 v{S + i}, 23, v{S + i}')
    g.many(f'''
        s_waitcnt lgkmcnt(0)
        s_cmp_eq_u32 s27, 0
        {qk(0)}
        s_cbranch_scc1 L_BACK
        s_branch F_BACK
    ''')
    g.lab('FINAL')
    g.stamp()
    order = [(b, j) for b in range(4) for j in range(2)]
    g.e('s_waitcnt lgkmcnt(4)')
    for k in range(5):
        g.e(vread(k, *order[k]))
    X = S
    vW = [vSW, X, X + 1, X + 2]
    vR = [X + 4, X + 5, X + 6, X + 7]
    vG = [X + 8, X + 9, X + 10, X + 11]
    ln = X + 12

    def mul(b):
        return [f'v_mul_f32 v{O + 16 * b + i}, v{O + 16 * b + i}, v{vL}' for i in range(16)]

    def cvw(b):
        out = []
        for gq in range(2):
            d = Q + 8 * b + 4 * gq
            for k in range(4):
                i = O + 16 * b + 8 * gq + 2 * k
                out.append(f'v_cvt_pk_bf16_f32 v{d + k}, v{i}, v{i + 1}')
            out.append(f'ds_write_b128 v{vW[2 * (b & 1) + gq]}, {r(d, 4)}')
        return out

    def rd(rnd):
        return [f'ds_read_b128 {r(O + 32 * rnd + 4 * k, 4)}, v{vR[k]} offset:{1024 * k}' for k in range(4)]

    def stv(rnd):
        out = []
        for k in range(4):
            out.append(f's_waitcnt lgkmcnt({3 - k})')
            out.append(f'buffer_store_dwordx4 {r(O + 32 * rnd + 4 * k, 4)}, v{vG[k]}, s[4:7], 0 offen offset:{128 * rnd}{st}')
        return out
    seq = []
    seq += [f'v_add_f32 v{vL}, v{vL}, v{vLT}', f's_movrels_b32 s3, s{TB + 5}', f's_add_u32 s4, s10, s{H}',
            f'v_mov_b32 v{FL + 1}, v{vL}', f's_addc_u32 s5, s11, 0', f's_mov_b32 s6, s{H + 1}',
            f'v_permlane32_swap_b32 v{vL}, v{FL + 1}', f'v_mov_b32 v{vT}, s3',
            f'v_add_f32 v{vL}, v{vL}, v{FL + 1}',
            f'v_mbcnt_lo_u32_b32 v{ln}, -1, 0', f'v_rcp_f32 v{vL}, v{vL}', f'v_mbcnt_hi_u32_b32 v{ln}, -1, v{ln}']
    seq += ['s_waitcnt lgkmcnt(8)', pv(0, *order[0])] + vread(5, *order[5])
    seq += [f'v_lshrrev_b32 v{ln + 1}, 3, v{ln}', f'v_and_b32 v{ln + 2}, 7, v{ln}', f'v_lshrrev_b32 v{ln}, 5, v{ln}']
    seq += ['s_waitcnt lgkmcnt(8)', pv(1, *order[1])] + vread(6, *order[6])
    seq += [f'v_lshlrev_b32 v{vG[0]}, 12, v{ln + 1}', f'v_xor_b32 v{ln}, v{ln}, v{ln + 2}',
            f'v_lshl_add_u32 v{vG[0]}, v{ln + 2}, 4, v{vG[0]}']
    seq += ['s_waitcnt lgkmcnt(8)', pv(2, *order[2])] + vread(7, *order[7])
    seq += [f'v_lshl_add_u32 v{vR[0]}, v{ln + 1}, 7, s13', f'v_xor_b32 v{vW[1]}, 32, v{vSW}',
            f'v_lshl_add_u32 v{vR[0]}, v{ln}, 4, v{vR[0]}']
    seq += ['s_waitcnt lgkmcnt(8)', pv(3, *order[3])]
    seq += [f'v_xor_b32 v{vW[2]}, 64, v{vSW}', f'v_xor_b32 v{vW[3]}, 0x60, v{vSW}',
            f'v_xor_b32 v{vR[1]}, 32, v{vR[0]}', f'v_xor_b32 v{vR[2]}, 64, v{vR[0]}']
    seq += ['s_waitcnt lgkmcnt(6)', pv(4, *order[4])]
    seq += [f'v_xor_b32 v{vR[3]}, 0x60, v{vR[0]}', f'v_add_u32 v{vG[1]}, 0x8000, v{vG[0]}',
            f'v_add_u32 v{vG[2]}, 0x10000, v{vG[0]}', f'v_add_u32 v{vG[3]}, 0x18000, v{vG[0]}']
    seq += ['s_waitcnt lgkmcnt(4)', pv(5, *order[5])]
    seq += mul(0)[:6]
    seq += ['s_waitcnt lgkmcnt(2)', pv(6, *order[6])]
    seq += mul(0)[6:12]
    seq += ['s_waitcnt lgkmcnt(0)', pv(7, *order[7])]
    seq += pub(g, vPA, vT)
    seq += mul(0)[12:] + cvw(0) + mul(1) + cvw(1)
    seq += mul(2)
    seq += ['s_waitcnt lgkmcnt(0)'] + rd(0)
    seq += mul(3)
    seq += stv(0)
    seq += cvw(2) + cvw(3)
    seq += ['s_waitcnt lgkmcnt(0)'] + rd(1) + stv(1)
    g.e(seq)
    g.stamp()
    g.e('s_branch TASK')
    g.lab('C_END')
    if o.stamps:
        g.e('s_waitcnt vmcnt(0)')
        g.stamp()
        g.stampval('s12')
    g.stamp_out()
    g.lab('END')
    g.e('s_endpgm')
    g.many(f'''
    FMASK:
        s_mov_b32 s27, 1
        s_branch MASK
    RESCALE:
        v_sub_f32 v{t1}, v{t0}, v{vNM}
        v_exp_f32 v{t1}, v{t1}
        s_nop 0
        v_mul_f32 v{vL}, v{vL}, v{t1}
    ''')
    for i in range(64):
        g.e(f'v_mul_f32 v{O + i}, v{O + i}, v{t1}')
    g.e('s_branch R_BACK')


def tables(plan, ring, o):
    words = []
    p = dict(sim.P)
    p['RING'] = ring
    wins = [int(x) for x in o.win.split(',')]
    for gi, cu in enumerate(plan):
        comp = [(PL.NT[s], [w for w, _ in tasks]) for s, hb, tasks in cu]
        if o.order == 'sim':
            m, order = sim.best_order(comp, p, local=1)
        else:
            order = sim.init_order(comp, 1000, 1200, o.qsplit)
        items, hdr = PL.stream_from_order(cu, order, ring)
        w = [0] * (GSTRIDE // 4)
        assert len(items) <= 62
        for i, (ty, row0, hb, end) in enumerate(items):
            win = wins[0]
            if len(wins) > 1 and gi >= wins[2] and i < wins[3]:
                win = wins[1]
            b = 64 * (i & 1) + (i >> 1) * 2
            w[b] = row0 * 4096 + hb * 256
            w[b + 1] = ((end - 1) * 4096 + 512) | (ty == 'V') | ((ty == 'K') << 1) | (win << 2)
        sa = lambda it: (it % ring) * SLOT
        for c in range(8):
            s = []
            for h in hdr[c]:
                s += [h['row0'] * 4096 + h['hb'] * 256, h['nvq'] * 4096 - 3840, (0xffffffff << h['nvl']) & 0xffffffff,
                      sa(h['qitem']) | (max(h['qitem'], h['k0']) << 24), sa(h['k0']) | ((h['n'] - 1) << 24),
                      min(h['qitem'], h['k0']) << 24]
                for kn, vn in h['tl']:
                    s += [sa(kn) | (max(kn, vn) << 24), sa(vn) | (vn << 24)]
            s += [0, 0, 0, 0, 0, 255 << 24]
            assert len(s) <= 62, len(s)
            w[64 * (c + 2):64 * (c + 2) + len(s)] = s
        words += w
    return words


def main():
    ap = argparse.ArgumentParser()
    ap.add_argument('-o', default='standalone__varlen_attn_packed__ragged.s')
    ap.add_argument('--stamps', action='store_true')
    ap.add_argument('--mini', action='store_true')
    ap.add_argument('--probe', type=int, default=0)
    ap.add_argument('--win', default='3', help='W or W,Wlow,first group,items')
    ap.add_argument('--order', default='sim')
    ap.add_argument('--lprio', type=int, default=3)
    ap.add_argument('--itst', action='store_true')
    ap.add_argument('--pace', type=int, default=0)
    ap.add_argument('--klate', type=int, default=0)
    ap.add_argument('--pl', default='')
    ap.add_argument('--lstamp', type=int, default=1)
    ap.add_argument('--fine', type=int, default=0)
    ap.add_argument('--m5', type=int, default=0)
    ap.add_argument('--ring', type=int, default=15)
    ap.add_argument('--nt', action='store_true')
    ap.add_argument('--stpol', default='nt')
    ap.add_argument('--m1', type=int, default=0)
    ap.add_argument('--m3', type=int, default=0)
    ap.add_argument('--sched', type=int, default=2)
    ap.add_argument('--prio', default='120')
    ap.add_argument('--lsleep', type=int, default=2)
    ap.add_argument('--csleep', type=int, default=1)
    ap.add_argument('--execpub', action='store_true')
    ap.add_argument('--align', action='store_true')
    ap.add_argument('--qsplit', type=int, default=1)
    ap.add_argument('--plan', default='h2')
    o = ap.parse_args()
    if o.stpol:
        o.stpol = ' ' + o.stpol
    if o.prio == 'none':
        o.prio = ''
    lay = dict(RING=o.ring, RINGB=o.ring * SLOT)
    lay['STG'] = lay['RINGB']
    lay['FULLA'] = lay['STG'] + 8 * 4096
    lay['PROGA'] = lay['FULLA'] + 16
    lds = lay['FULLA'] + 64
    assert lds <= 163840 and lay['STG'] % 128 == 0
    g = Gen(o)
    ref = open('standalone__varlen_attn_packed__ragged.s.ref').read().split('\n')
    head = [l for l in ref[:12] if l.startswith(';') and '@launch' not in l]
    out = head + [f'; @launch grid=(256,1,1) block=(768,1,1) lds={lds}',
                  '.amdgcn_target "amdgcn-amd-amdhsa--gfx950"', '.text', f'.globl {NAME}', '.p2align 8',
                  f'.type {NAME},@function', f'{NAME}:']
    g.many(f'''
        s_cmp_ge_u32 s2, 256
        s_cbranch_scc1 END
        v_lshrrev_b32 v1, 6, v0
        s_getpc_b64 s[12:13]
    PCREF:
        s_load_dwordx4 s[4:7], s[0:1], 0
        v_readfirstlane_b32 s14, v1
        s_load_dwordx2 s[8:9], s[0:1], 16
        s_lshr_b32 s3, s2, 3
        s_mul_i32 s3, s3, {GSTRIDE}
        s_and_b32 s15, s14, 1
        s_sub_u32 s28, s14, 2
        s_cmp_ge_u32 s14, 4
        s_cselect_b32 s15, s28, s15
        s_lshl_b32 s15, s15, 8
        s_add_u32 s3, s3, s15
        s_add_u32 s3, s3, TABLE-PCREF
        s_add_u32 s12, s12, s3
        s_addc_u32 s13, s13, 0
        s_load_dwordx16 s[36:51], s[12:13], 0
        s_load_dwordx16 s[52:67], s[12:13], 64
        s_load_dwordx16 s[68:83], s[12:13], 128
        s_load_dwordx16 s[84:99], s[12:13], 192
        s_load_dwordx2 s[10:11], s[0:1], 32
        v_lshlrev_b32 v3, 2, v1
        v_add_u32 v3, {lay['FULLA']}, v3
        s_and_b32 s15, s2, 7
        s_lshl_b32 s15, s15, 9
        v_and_b32 v0, 63, v0
    ''')
    if o.probe:
        g.e('s_memrealtime s[100:101]')
    if o.stamps:
        g.idx, g.m0save = 's32', None
        g.e('s_mov_b32 s32, 0')
        g.e('v_mov_b32 v167, 0')
        g.e('s_memrealtime s[34:35]')
        g.e('s_memtime s[100:101]')
        g.e('s_getreg_b32 s33, hwreg(HW_REG_HW_ID)')
        g.stampval('s33')
        g.e('s_getreg_b32 s33, hwreg(HW_REG_XCC_ID)')
        g.stampval('s33')
        g.e('s_waitcnt lgkmcnt(0)')
        g.stampval('s34')
        g.stampval('s100')
    g.many('''
        s_cmp_ge_u32 s14, 4
        s_cbranch_scc1 CONSUMER
    ''')
    gen_loader(g, lay)
    gen_consumer(g, lay)
    plan = PL.get_plan(o.plan)
    PL.check_plan(plan)
    tw = tables(plan, o.ring, o)
    g.L.append('.p2align 6')
    g.lab('TABLE')
    for i in range(0, len(tw), 8):
        g.e('.long ' + ', '.join(hex(x) for x in tw[i:i + 8]))
    out += g.L
    out += ['.section .rodata,"a"', '.p2align 6', f'.amdhsa_kernel {NAME}', '  .amdhsa_next_free_vgpr 168',
            '  .amdhsa_next_free_sgpr 102', '  .amdhsa_accum_offset 168', '  .amdhsa_group_segment_fixed_size 0',
            '  .amdhsa_kernarg_size 56', '  .amdhsa_user_sgpr_count 2', '  .amdhsa_user_sgpr_kernarg_segment_ptr 1',
            '  .amdhsa_system_sgpr_workgroup_id_x 1', '.end_amdhsa_kernel', '']
    open(o.o, 'w').write('\n'.join(out))


main()
```

```python
import sys, os, argparse, struct, math
sys.path.insert(0, os.path.dirname(os.path.abspath(__file__)))
import plan as PL

NAME = 'standalone__varlen_attn_packed__ragged_kernel'
SLOT = 8704
RINGB = 16 * SLOT
FULLA = RINGB
PROGA = RINGB + 16
LDS = RINGB + 64
KST, VST = 1056, 1088


def f2u(x):
    return struct.unpack('<I', struct.pack('<f', x))[0]


class Gen:
    def __init__(self, o):
        self.o = o
        self.L = []

    def e(self, s):
        self.L.append('    ' + s)

    def lab(self, s):
        self.L.append(s + ':')

    def many(self, txt):
        for l in txt.strip().split('\n'):
            l = l.strip()
            if not l:
                continue
            if l.endswith(':'):
                self.L.append(l)
            else:
                self.e(l)

    def stamp(self, real=False):
        if not self.o.stamps:
            return
        self.e('s_memrealtime s[96:97]' if real else 's_memtime s[96:97]')
        self.e('s_waitcnt lgkmcnt(0)')
        self.e('s_mov_b32 m0, s98') if False else None
        self.e('v_writelane_b32 v167, s96, s98')
        self.e('s_add_u32 s98, s98, 1')

    def stampval(self, s):
        if not self.o.stamps:
            return
        self.e(f'v_writelane_b32 v167, {s}, s98')
        self.e('s_add_u32 s98, s98, 1')

    def stamp_out(self):
        if not self.o.stamps:
            return
        self.many(f'''
            s_load_dwordx2 s[94:95], s[0:1], 48
            s_mul_i32 s96, s2, 12
            s_add_u32 s96, s96, s14
            s_lshl_b32 s96, s96, 8
            v_mbcnt_lo_u32_b32 v1, -1, 0
            v_mbcnt_hi_u32_b32 v1, -1, v1
            v_lshlrev_b32 v1, 2, v1
            v_add_u32 v1, s96, v1
            s_waitcnt lgkmcnt(0)
            global_store_dword v1, v167, s[94:95]
        ''')


O = 0
Q = 64
S = 96
P = 112
POOL = 120
vKb, vVb, vK, vV, vL, vNM, vLT, vTL = 152, 153, 154, 155, 156, 157, 158, 159
FL = 160
vFA, vPA, vOut = 164, 165, 166
sNeed, sVit, sKs, sVs, sE, sT, sP, sSpin, sFresh, sC, sNC, sThr, sFirst = \
    's36', 's37', 's38', 's39', 's40', 's41', 's42', 's43', 's44', 's45', 's46', 's47', 's48'


def r(a, n):
    return f'v[{a}:{a + n - 1}]'


def pool(i):
    return r(POOL + 4 * i, 4)


def qk(i, c0=False):
    c = '0' if c0 else r(S, 16)
    return f'v_mfma_f32_32x32x16_bf16 {r(S, 16)}, {pool(i)}, {r(Q + 4 * i, 4)}, {c}'


def pv(slot, b, j):
    return f'v_mfma_f32_32x32x16_bf16 {r(O + 16 * b, 16)}, {pool(slot)}, {r(P + 4 * j, 4)}, {r(O + 16 * b, 16)}'


def kread(slot, s, addr):
    return f'ds_read_b128 {pool(slot)}, v{addr} offset:{32 * s}'


def vread(slot, b, j):
    return [f'ds_read_b64_tr_b16 {r(POOL + 4 * slot + 2 * eh, 2)}, v{vV} offset:{(2 * j + eh) * 256 + 64 * b}'
            for eh in (0, 1)]


def fma(i):
    return f'v_fma_f32 v{S + i}, v{S + i}, {sC}, v{vNM}'


def ex(i):
    return f'v_exp_f32 v{S + i}, v{S + i}'


def add(i):
    if i == 0:
        return None
    if i == 1:
        return f'v_add_f32 v{vLT}, v{S}, v{S + 1}'
    return f'v_add_f32 v{vLT}, v{vLT}, v{S + i}'


def cvt(k):
    return f'v_cvt_pk_bf16_f32 v{P + k}, v{S + 2 * k}, v{S + 2 * k + 1}'


def lds_pub(g, addr, val):
    g.many(f'''
        s_mov_b64 exec, 1
        ds_write_b32 v{addr}, v{val}
        s_mov_b64 exec, -1
    ''')


def poll(g, tag):
    g.many(f'''
        s_cmp_gt_u32 {sP}, {sNeed}
        s_cbranch_scc1 POLLOK_{tag}
    POLL_{tag}:
        ds_read_b128 {r(FL, 4)}, v{vFA}
        s_waitcnt lgkmcnt(0)
        v_min3_u32 v{FL}, v{FL}, v{FL + 1}, v{FL + 2}
        v_min_u32 v{FL}, v{FL}, v{FL + 3}
        s_sub_u32 {sSpin}, {sSpin}, 1
        s_cbranch_scc1 END
        v_readfirstlane_b32 {sP}, v{FL}
        s_cmp_gt_u32 {sP}, {sNeed}
        s_cbranch_scc1 POLLOK_{tag}
        s_sleep 1
        s_branch POLL_{tag}
    POLLOK_{tag}:
    ''')


def gen_loader(g):
    o = g.o
    DMAX = o.dmax
    nt = ' nt' if o.nt else ''
    vKQ, vVV = 8, 16
    g.lab('LOADER')
    g.many(f'''
        s_setprio 3
        s_lshl_b32 s3, s14, 2
        s_add_u32 s3, s3, {FULLA}
        v_mov_b32 v2, s14
        v_mov_b32 v3, s3
        v_mov_b32 v4, {PROGA}
    ''')
    lds_pub(g, 3, 2)
    g.many(f'''
        v_lshrrev_b32 v5, 4, v0
        v_and_b32 v6, 15, v0
        v_lshrrev_b32 v7, 5, v0
        v_xor_b32 v7, v7, v6
        v_lshlrev_b32 v5, 12, v5
        v_lshl_add_u32 v6, v6, 4, v5
        v_lshl_add_u32 v7, v7, 4, v5
    ''')
    for p in range(8):
        g.e(f'v_add_u32 v{vKQ + p}, {p * 16384 - (p % 4) * KST}, v7')
        g.e(f'v_add_u32 v{vVV + p}, {p * 16384 - (p % 4) * VST}, v6')
    g.many(f'''
        s_mov_b32 s35, 0x00020000
        s_mov_b32 s36, 0
        s_mov_b32 s37, s14
        s_mov_b32 s38, 0
        s_mov_b32 s39, s14
        s_mov_b32 s40, 16
        s_mov_b32 s43, 0x40000
        s_mov_b32 s46, 1
        s_waitcnt lgkmcnt(0)
    ''')
    g.stamp()
    g.many(f'''
        s_add_u32 s4, s4, s15
        s_addc_u32 s5, s5, 0
        s_add_u32 s6, s6, s15
        s_addc_u32 s7, s7, 0
        s_add_u32 s8, s8, s15
        s_addc_u32 s9, s9, 0
    L_NEXT:
        s_mov_b32 m0, s36
        s_and_b32 s45, s37, 15
        s_movrels_b32 s41, s16
        s_mul_i32 s45, s45, {SLOT}
        s_cmp_eq_u32 s41, 0
        s_cbranch_scc1 L_DRAIN
    L_CHK:
        s_cmp_ge_u32 s38, {DMAX}
        s_cbranch_scc1 L_WAIT
        s_cmp_lt_u32 s37, s40
        s_cbranch_scc1 L_ISSUE
        ds_read_b128 v[24:27], v4
        ds_read_b128 v[28:31], v4 offset:16
        s_waitcnt lgkmcnt(0)
        v_min3_u32 v24, v24, v25, v26
        v_min3_u32 v27, v27, v28, v29
        v_min3_u32 v24, v24, v30, v31
        v_min_u32 v24, v24, v27
        s_nop 0
        v_readfirstlane_b32 s40, v24
        s_add_u32 s40, s40, 16
        s_cmp_lt_u32 s37, s40
        s_cbranch_scc1 L_ISSUE
        s_cmp_gt_u32 s38, 0
        s_cbranch_scc1 L_WAIT
        s_sub_u32 s43, s43, 1
        s_cbranch_scc1 END
        s_sleep 1
        s_branch L_CHK
    L_ISSUE:
        s_and_b32 s42, s41, 0x1ffff
        s_lshl_b32 s42, s42, 8
        s_bfe_u32 s34, s41, 0x60013
        s_lshl_b32 s34, s34, 12
        s_sub_u32 s34, s34, 3840
        s_mov_b32 m0, s45
        s_bitcmp1_b32 s41, 18
        s_cbranch_scc1 L_V
        s_bitcmp1_b32 s41, 17
        s_cselect_b64 s[32:33], s[6:7], s[4:5]
        s_add_u32 s32, s32, s42
        s_addc_u32 s33, s33, 0
    ''')
    for p in range(8):
        if p == 4:
            g.e(f's_add_u32 m0, s45, {4 * KST}')
            g.e('s_nop 0')
        g.e(f'buffer_load_dwordx4 v{vKQ + p}, s[32:35], 0 offen offset:{(p % 4) * KST}{nt} lds')
    g.many(f'''
        s_branch L_DONE
    L_V:
        s_add_u32 s32, s8, s42
        s_addc_u32 s33, s9, 0
    ''')
    for p in range(8):
        if p == 4:
            g.e(f's_add_u32 m0, s45, {4 * VST}')
            g.e('s_nop 0')
        g.e(f'buffer_load_dwordx4 v{vVV + p}, s[32:35], 0 offen offset:{(p % 4) * VST}{nt} lds')
    g.many(f'''
    L_DONE:
        s_add_u32 s36, s36, 1
        s_add_u32 s37, s37, 4
        s_add_u32 s38, s38, 1
        s_branch L_NEXT
    L_DRAIN:
        s_cmp_eq_u32 s38, 0
        s_cbranch_scc1 L_END
    L_WAIT:
        s_cmp_eq_u32 s46, 0
        s_cbranch_scc1 L_W0
        s_mov_b32 s46, 0
    ''')
    g.stamp()
    g.e('s_barrier')
    g.lab('L_W0')
    for k in range(1, DMAX):
        g.e(f's_cmp_eq_u32 s38, {k}')
        g.e(f's_cbranch_scc1 L_W{k}x')
    g.e(f's_waitcnt vmcnt({8 * (DMAX - 1)})')
    g.e('s_branch L_PUB')
    for k in range(DMAX - 1, 0, -1):
        g.lab(f'L_W{k}x')
        g.e(f's_waitcnt vmcnt({8 * (k - 1)})')
        if k != 1:
            g.e('s_branch L_PUB')
    g.many(f'''
    L_PUB:
        s_add_u32 s39, s39, 4
        v_mov_b32 v2, s39
    ''')
    lds_pub(g, 3, 2)
    g.e('s_sub_u32 s38, s38, 1')
    g.stamp()
    g.many(f'''
        s_cmp_eq_u32 s41, 0
        s_cbranch_scc1 L_DRAIN
        s_branch L_CHK
    L_END:
    ''')
    g.stamp_out()
    g.e('s_endpgm')


def gen_consumer(g):
    o = g.o
    c = 128 ** -0.5 * math.log2(math.e)
    st = o.stpol
    g.lab('CONSUMER')
    g.many(f'''
        v_lshlrev_b32 v1, 2, v0
        global_load_dword v{vTL}, v1, s[12:13] offset:768
        s_lshl_b32 s3, s14, 2
        s_add_u32 s3, s3, {PROGA - 16}
        v_mov_b32 v{vFA}, {FULLA}
        v_mov_b32 v{vPA}, s3
        v_and_b32 v1, 7, v0
        v_mul_u32_u24 v{vKb}, {KST}, v1
        v_bfe_u32 v2, v0, 3, 2
        v_lshl_add_u32 v{vKb}, v2, 8, v{vKb}
        v_lshrrev_b32 v3, 5, v0
        v_bfe_u32 v4, v0, 4, 1
        v_xor_b32 v5, v3, v4
        v_lshl_add_u32 v{vKb}, v5, 4, v{vKb}
        v_bfe_u32 v5, v0, 2, 2
        v_lshl_add_u32 v5, v3, 2, v5
        v_mul_u32_u24 v{vVb}, {VST}, v5
        v_lshl_add_u32 v{vVb}, v4, 5, v{vVb}
        v_and_b32 v5, 1, v0
        v_lshl_add_u32 v{vVb}, v5, 4, v{vVb}
        v_bfe_u32 v5, v0, 1, 1
        v_lshl_add_u32 v{vVb}, v5, 3, v{vVb}
        v_bfe_u32 v5, v0, 2, 1
        v_lshl_add_u32 v2, v5, 4, v2
        v_and_b32 v5, 3, v0
        v_lshl_add_u32 v2, v5, 2, v2
        v_lshlrev_b32 v2, 12, v2
        v_lshl_add_u32 v{vOut}, v3, 4, v2
        s_mov_b32 {sC}, {hex(f2u(c))}
        s_mov_b32 {sNC}, {hex(f2u(-c))}
        s_mov_b32 {sThr}, {hex(f2u(2.0 ** 24))}
        s_mov_b32 {sP}, 0
        s_mov_b32 {sSpin}, 0x40000
        s_mov_b32 s35, 0x00020000
        s_waitcnt lgkmcnt(0)
        s_lshr_b32 s3, s16, 24
        v_mov_b32 v{FL}, s3
    ''')
    lds_pub(g, vPA, FL)
    g.many(f'''
        s_add_u32 s10, s10, s15
        s_addc_u32 s11, s11, 0
        s_waitcnt vmcnt(0) lgkmcnt(0)
        s_barrier
    ''')
    if o.stamps:
        g.e('s_mov_b32 s99, 0')
    g.stamp()
    g.lab('TASK')
    g.many(f'''
        s_cmp_eq_u32 s17, 0
        s_cbranch_scc1 C_END
        v_mov_b32 v{P}, 0
        v_mov_b32 v{P + 1}, 0
        v_mov_b32 v{P + 2}, 0
        v_mov_b32 v{P + 3}, 0
        v_mov_b32 v{vL}, 0
        v_mov_b32 v{vNM}, 0x7f800000
    ''')
    for b in range(4):
        g.e(f'v_mfma_f32_32x32x16_bf16 {r(O + 16 * b, 16)}, {r(P, 4)}, {r(P, 4)}, 0')
    g.many(f'''
        s_and_b32 {sNeed}, s19, 0xff
        s_bfe_u32 {sT}, s19, 0x80008
        s_bfe_u32 {sVs}, s19, 0x80010
        s_lshr_b32 {sKs}, s19, 24
        v_lshl_add_u32 v{vV}, {sVs}, 9, v{vKb}
        v_lshl_add_u32 v{vK}, {sKs}, 9, v{vKb}
        v_readlane_b32 {sE}, v{vTL}, {sT}
        s_mov_b32 {sFirst}, 1
    ''')
    poll(g, 'T')
    g.stamp()
    for s in range(8):
        g.e(f'ds_read_b128 {r(Q + 4 * s, 4)}, v{vV} offset:{32 * s}')
    g.many(f'''
        s_and_b32 {sNeed}, {sE}, 63
        s_bfe_u32 {sVit}, {sE}, 0x80008
        s_bfe_u32 {sKs}, {sE}, 0x80010
        s_lshr_b32 {sVs}, {sE}, 24
        s_waitcnt lgkmcnt(7)
    ''')
    g.lab('FRESH')
    for s in range(8):
        g.e(kread(s, s, vK))
    g.many(f'''
        s_mov_b32 {sFresh}, 1
        s_bitcmp1_b32 {sE}, 6
        s_cbranch_scc1 MASK
        s_waitcnt lgkmcnt(7)
    ''')
    g.e(qk(0, True))
    g.lab('F_BACK')
    for s in range(1, 8):
        g.e(f's_waitcnt lgkmcnt({7 - s})')
        g.e(qk(s))
    t0, t1 = FL, FL + 1
    g.many(f'''
        s_nop 7
        s_nop 3
        v_max3_f32 v{t0}, v{S}, v{S + 1}, v{S + 2}
        v_max3_f32 v{t1}, v{S + 3}, v{S + 4}, v{S + 5}
        v_max3_f32 v{t0}, v{t0}, v{S + 6}, v{S + 7}
        v_max3_f32 v{t1}, v{t1}, v{S + 8}, v{S + 9}
        v_max3_f32 v{t0}, v{t0}, v{S + 10}, v{S + 11}
        v_max3_f32 v{t1}, v{t1}, v{S + 12}, v{S + 13}
        v_max3_f32 v{t0}, v{t0}, v{S + 14}, v{S + 15}
        v_max_f32 v{t0}, v{t0}, v{t1}
        v_mov_b32 v{t1}, v{t0}
        s_nop 1
        v_permlane32_swap_b32 v{t0}, v{t1}
        v_max_f32 v{t0}, v{t0}, v{t1}
        v_mul_f32 v{t0}, {sNC}, v{t0}
        v_min_f32 v{t0}, v{t0}, v{vNM}
        v_sub_f32 v{t1}, v{t0}, v{vNM}
        v_mov_b32 v{vNM}, v{t0}
        v_exp_f32 v{t1}, v{t1}
        s_cmp_eq_u32 {sFirst}, 0
        s_cbranch_scc1 RESCALE
    R_BACK:
        s_mov_b32 {sFirst}, 0
        v_mul_f32 v{vL}, v{vL}, v{t1}
    ''')
    for i in range(16):
        g.e(fma(i))
    for i in range(16):
        g.e(ex(i))
    for i in range(1, 16):
        g.e(add(i))
    for k in range(8):
        g.e(cvt(k))
    g.stamp()
    g.lab('LATE')
    if o.stamps:
        g.e('s_memtime s[92:93]')
        g.e('s_waitcnt lgkmcnt(0)')
    poll(g, 'L')
    if o.stamps:
        g.e('s_memtime s[96:97]')
        g.e('s_waitcnt lgkmcnt(0)')
        g.e('s_sub_u32 s96, s96, s92')
        g.e('s_add_u32 s99, s99, s96')
    g.e(f'v_lshl_add_u32 v{vV}, {sKs}, 9, v{vKb}')
    for s in range(4):
        g.e(kread(s, s, vV))
    g.lab('LOOP_CONT')
    g.many(f'''
        v_mov_b32 v{FL}, {sVit}
        v_add_f32 v{vL}, v{vL}, v{vLT}
        v_lshl_add_u32 v{vK}, {sKs}, 9, v{vKb}
        v_lshl_add_u32 v{vV}, {sVs}, 9, v{vVb}
    ''')
    lds_pub(g, vPA, FL)
    g.many(f'''
        s_bitcmp1_b32 {sE}, 7
        s_cbranch_scc1 FINAL
        s_add_u32 {sT}, {sT}, 1
    ''')
    for s in range(4, 8):
        g.e(kread(s, s, vK))
    g.many(f'''
        v_readlane_b32 {sE}, v{vTL}, {sT}
        s_mov_b32 {sFresh}, 0
        s_bitcmp1_b32 {sE}, 6
        s_cbranch_scc1 MASK
        s_waitcnt lgkmcnt(4)
    ''')
    g.e(qk(0, True))
    g.lab('L_BACK')
    for m in range(8):
        if m > 0:
            if m == 4:
                g.e('s_waitcnt lgkmcnt(8)')
            g.e(qk(m))
        for x in vread(m, m % 4, m // 4):
            g.e(x)
    g.many(f'''
        ds_read_b128 {r(FL, 4)}, v{vFA}
        s_and_b32 {sNeed}, {sE}, 63
        s_bfe_u32 {sKs}, {sE}, 0x80010
        s_waitcnt lgkmcnt(9)
        {pv(0, 0, 0)}
        v_lshl_add_u32 v{vV}, {sKs}, 9, v{vKb}
        s_bfe_u32 {sVit}, {sE}, 0x80008
        s_lshr_b32 {sVs}, {sE}, 24
        {pv(1, 1, 0)}
        s_nop 0
    ''')
    seq = []
    seq += [fma(i) for i in range(0, 4)] + [ex(i) for i in range(0, 4)]
    seq += [pv(2, 2, 0)]
    seq += [fma(i) for i in range(4, 8)] + [ex(i) for i in range(4, 8)]
    seq += [pv(3, 3, 0)]
    seq += [kread(s, s, vV) for s in range(4)]
    seq += [add(i) for i in range(1, 8)] + [cvt(k) for k in range(4)]
    seq += ['s_waitcnt lgkmcnt(4)', pv(4, 0, 1)]
    seq += [f'v_min3_u32 v{FL}, v{FL}, v{FL + 1}, v{FL + 2}', f'v_min_u32 v{FL}, v{FL}, v{FL + 3}']
    seq += [fma(i) for i in range(8, 12)] + [ex(i) for i in range(8, 12)]
    seq += [pv(5, 1, 1)]
    seq += [f'v_readfirstlane_b32 {sP}, v{FL}']
    seq += [fma(i) for i in range(12, 16)] + [ex(i) for i in range(12, 16)]
    seq += [pv(6, 2, 1)]
    seq += [add(i) for i in range(8, 16)]
    seq += [pv(7, 3, 1)]
    seq += [f'v_cmp_nge_f32 vcc, {sThr}, v{vLT}']
    seq += [cvt(k) for k in range(4, 8)]
    for x in seq:
        g.e(x)
    g.many(f'''
        s_cbranch_vccnz FRESH
        s_cmp_gt_u32 {sP}, {sNeed}
        s_cbranch_scc1 LOOP_CONT
        s_branch LATE
    ''')
    g.lab('FINAL')
    g.stamp()
    order = [(b, j) for b in range(4) for j in range(2)]
    for k in range(5):
        for x in vread(k, *order[k]):
            g.e(x)

    def mul(b):
        return [f'v_mul_f32 v{O + 16 * b + i}, v{O + 16 * b + i}, v{vL}' for i in range(16)]

    def cvst(b):
        out = []
        for gq in range(2):
            for k in range(4):
                i = O + 16 * b + 8 * gq + 2 * k
                out.append(f'v_cvt_pk_bf16_f32 v{Q + 8 * b + 4 * gq + k}, v{i}, v{i + 1}')
            out.append(f'buffer_store_dwordx4 {r(Q + 8 * b + 4 * gq, 4)}, v{vOut}, s[32:35], 0 offen offset:{64 * b + 32 * gq}{st}')
        return out
    seq = []
    seq += [f'v_mov_b32 v{FL + 1}, v{vL}', 's_and_b32 s3, s16, 0x1ffff', 's_lshl_b32 s3, s3, 8',
            f'v_permlane32_swap_b32 v{vL}, v{FL + 1}', 's_add_u32 s32, s10, s3', 's_addc_u32 s33, s11, 0',
            f'v_add_f32 v{vL}, v{vL}, v{FL + 1}', 's_mov_b32 s34, s17', 's_lshr_b32 s3, s20, 24',
            f'v_rcp_f32 v{vL}, v{vL}', f'v_mov_b32 v{FL}, s3']
    seq += ['s_waitcnt lgkmcnt(8)', pv(0, *order[0])] + vread(5, *order[5])
    seq += ['s_waitcnt lgkmcnt(8)', pv(1, *order[1])] + vread(6, *order[6])
    seq += ['s_waitcnt lgkmcnt(8)', pv(2, *order[2])] + vread(7, *order[7])
    seq += ['s_waitcnt lgkmcnt(8)', pv(3, *order[3])]
    seq += ['s_waitcnt lgkmcnt(6)', pv(4, *order[4])]
    seq += ['s_waitcnt lgkmcnt(4)', pv(5, *order[5])]
    seq += ['s_mov_b64 s[16:17], s[20:21]', 's_mov_b64 s[18:19], s[22:23]']
    seq += mul(0)
    seq += ['s_waitcnt lgkmcnt(2)', pv(6, *order[6])]
    seq += cvst(0)
    seq += ['s_waitcnt lgkmcnt(0)', pv(7, *order[7])]
    for x in seq:
        g.e(x)
    lds_pub(g, vPA, FL)
    seq = []
    seq += mul(1) + cvst(1)
    seq += ['s_mov_b64 s[20:21], s[24:25]', 's_mov_b64 s[22:23], s[26:27]']
    seq += mul(2) + cvst(2)
    seq += ['s_mov_b64 s[24:25], s[28:29]', 's_mov_b64 s[26:27], s[30:31]']
    seq += mul(3) + cvst(3)
    for x in seq:
        g.e(x)
    g.stamp()
    g.e('s_branch TASK')
    g.lab('C_END')
    if o.stamps:
        g.e('s_waitcnt vmcnt(0)')
        g.stamp()
        g.stampval('s99')
    g.stamp_out()
    g.lab('END')
    g.e('s_endpgm')
    g.lab('MASK')
    g.many(f'''
        v_mov_b32 v{FL}, s18
        s_mov_b32 exec_lo, 0
        v_lshrrev_b32 v{FL}, 16, v{FL}
        s_mov_b32 exec_lo, -1
    ''')
    for i in range(16):
        bit = 4 * (i % 4) + i // 4
        g.e(f'v_bfe_i32 v{S + i}, v{FL}, {bit}, 1')
    for i in range(16):
        g.e(f'v_lshlrev_b32 v{S + i}, 23, v{S + i}')
    g.many(f'''
        s_waitcnt lgkmcnt(4)
        s_cmp_eq_u32 {sFresh}, 0
        {qk(0)}
        s_cbranch_scc1 L_BACK
        s_branch F_BACK
    RESCALE:
    ''')
    for i in range(64):
        g.e(f'v_mul_f32 v{O + i}, v{O + i}, v{FL + 1}')
    g.e('s_branch R_BACK')


def tables(plan):
    words = []
    for cu in plan:
        items, tl, hdr = PL.build_stream(cu)
        w = [0] * 256
        for i, (ty, row0, hb, nv) in enumerate(items):
            w[(i % 4) * 16 + i // 4] = (row0 * 16 + hb) | ((ty == 'K') << 17) | ((ty == 'V') << 18) | (nv << 19)
        assert len(items) <= 60
        for c in range(8):
            base = 64 + 16 * c
            assert len(hdr[c]) <= 3
            for k, h in enumerate(hdr[c]):
                w[base + 4 * k] = (h['row0'] * 16 + h['hb']) | (min(h['qitem'], h['k0']) << 24)
                w[base + 4 * k + 1] = h['nvq'] * 4096 - 3840
                w[base + 4 * k + 2] = (0xffffffff << h['nvl']) & 0xffffffff
                w[base + 4 * k + 3] = max(h['qitem'], h['k0']) | (h['tls'] << 8) | ((h['qitem'] % 16 * 17) << 16) | \
                    ((h['k0'] % 16 * 17) << 24)
            w[base + 4 * len(hdr[c])] = 255 << 24
        lastpart = {}
        for c in range(8):
            for h in hdr[c]:
                lastpart[h['tls'] + h['n'] - 1] = h['nvl'] < 32
        for t, (kn, vn) in enumerate(tl):
            last = t in lastpart
            w[192 + t] = max(kn, vn) | ((last and lastpart[t]) << 6) | (last << 7) | (vn << 8) | \
                ((kn % 16 * 17) << 16) | ((vn % 16 * 17) << 24)
        words += w
    return words


def main():
    ap = argparse.ArgumentParser()
    ap.add_argument('-o', default='standalone__varlen_attn_packed__ragged.s')
    ap.add_argument('--stamps', action='store_true')
    ap.add_argument('--dmax', type=int, default=4)
    ap.add_argument('--nt', action='store_true')
    ap.add_argument('--stpol', default='')
    o = ap.parse_args()
    if o.stpol:
        o.stpol = ' ' + o.stpol
    g = Gen(o)
    ref = open('standalone__varlen_attn_packed__ragged.s.ref').read().split('\n')
    head = [l for l in ref if l.startswith(';') and '@launch' not in l and ref.index(l) < 12]
    out = head + [f'; @launch grid=(256,1,1) block=(768,1,1) lds={LDS}',
                  '.amdgcn_target "amdgcn-amd-amdhsa--gfx950"', '.text', f'.globl {NAME}', '.p2align 8',
                  f'.type {NAME},@function', f'{NAME}:']
    g.many(f'''
        s_cmp_ge_u32 s2, 256
        s_cbranch_scc1 END
        v_lshrrev_b32 v1, 6, v0
        s_getpc_b64 s[12:13]
    PCREF:
        s_load_dwordx4 s[4:7], s[0:1], 0
        v_readfirstlane_b32 s14, v1
        s_load_dwordx2 s[8:9], s[0:1], 16
        s_lshr_b32 s3, s2, 3
        s_lshl_b32 s3, s3, 10
        s_add_u32 s3, s3, TABLE-PCREF
        s_add_u32 s12, s12, s3
        s_addc_u32 s13, s13, 0
        s_lshl_b32 s3, s14, 6
        s_load_dwordx16 s[16:31], s[12:13], s3
        s_load_dwordx2 s[10:11], s[0:1], 32
        s_and_b32 s15, s2, 7
        s_lshl_b32 s15, s15, 9
        v_and_b32 v0, 63, v0
    ''')
    if o.stamps:
        g.e('s_mov_b32 s98, 0')
        g.e('v_mov_b32 v167, 0')
        g.e('s_memrealtime s[94:95]')
        g.e('s_memtime s[92:93]')
        g.e('s_getreg_b32 s91, hwreg(HW_REG_HW_ID)')
        g.e('s_getreg_b32 s90, hwreg(HW_REG_XCC_ID)')
        g.e('s_waitcnt lgkmcnt(0)')
        g.stampval('s91')
        g.stampval('s90')
        g.stampval('s94')
        g.stampval('s92')
    g.many('''
        s_cmp_ge_u32 s14, 4
        s_cbranch_scc1 CONSUMER
    ''')
    gen_loader(g)
    gen_consumer(g)
    plan = PL.hand_plan()
    PL.check_plan(plan)
    tw = tables(plan)
    g.L.append('.p2align 6')
    g.lab('TABLE')
    for i in range(0, len(tw), 8):
        g.e('.long ' + ', '.join(hex(x) for x in tw[i:i + 8]))
    out += g.L
    out += ['.section .rodata,"a"', '.p2align 6', f'.amdhsa_kernel {NAME}', '  .amdhsa_next_free_vgpr 168',
            '  .amdhsa_next_free_sgpr 102', '  .amdhsa_accum_offset 168', '  .amdhsa_group_segment_fixed_size 0',
            '  .amdhsa_kernarg_size 56', '  .amdhsa_user_sgpr_count 2', '  .amdhsa_user_sgpr_kernarg_segment_ptr 1',
            '  .amdhsa_system_sgpr_workgroup_id_x 1', '.end_amdhsa_kernel', '']
    open(o.o, 'w').write('\n'.join(out))


main()
```

```python
import sys, os, argparse, struct, math
sys.path.insert(0, os.path.dirname(os.path.abspath(__file__)))
import plan as PL
import sim

NAME = 'standalone__varlen_attn_packed__ragged_kernel'
SLOT = 8704
KST, VST = 1056, 1088
GSTRIDE = 2560


def f2u(x):
    return struct.unpack('<I', struct.pack('<f', x))[0]


class Gen:
    def __init__(self, o):
        self.o = o
        self.L = []
        self.idx = 's8'
        self.m0save = 's9'

    def e(self, s):
        if s is None:
            return
        if isinstance(s, (list, tuple)):
            for x in s:
                self.e(x)
            return
        self.L.append('    ' + s)

    def lab(self, s):
        self.L.append(s + ':')

    def many(self, txt):
        for l in txt.strip().split('\n'):
            l = l.strip()
            if not l or l == 'None':
                continue
            if l.endswith(':'):
                self.L.append(l)
            else:
                self.e(l)

    def stamp(self, real=False, force=False):
        if not self.o.stamps or (self.o.mini and not force):
            return
        self.e('s_memrealtime s[34:35]' if real else 's_memtime s[34:35]')
        self.e('s_waitcnt lgkmcnt(0)')
        self.stampval('s34')

    def stampval(self, s):
        if not self.o.stamps:
            return
        if self.m0save:
            self.e(f's_mov_b32 {self.m0save}, m0')
        self.e(f's_mov_b32 m0, {self.idx}')
        self.e(f's_add_u32 {self.idx}, {self.idx}, 1')
        self.e(f'v_writelane_b32 v167, {s}, m0')
        if self.m0save:
            self.e(f's_mov_b32 m0, {self.m0save}')
            self.e('s_nop 0')

    def stamp_out(self):
        if self.o.probe:
            self.np = getattr(self, 'np', 0) + 1
            self.many(f'''
                s_waitcnt vmcnt(0)
                s_mov_b32 s3, 0x100000
                s_add_u32 s100, s100, {self.o.probe}
            PRB{self.np}:
                s_memrealtime s[34:35]
                s_waitcnt lgkmcnt(0)
                s_sub_u32 s3, s3, 1
                s_cbranch_scc1 PRBX{self.np}
                s_sub_u32 s35, s34, s100
                s_cmp_lt_i32 s35, 0
                s_cbranch_scc1 PRB{self.np}
            PRBX{self.np}:
            ''')
        if not self.o.stamps:
            return
        self.e(f's_mov_b32 {self.idx}, 62')
        self.stamp(force=True)
        self.stamp(real=True, force=True)
        self.many(f'''
            s_load_dwordx2 s[34:35], s[0:1], 48
            s_mul_i32 s3, s2, 12
            s_add_u32 s3, s3, s14
            s_lshl_b32 s3, s3, 8
            v_mbcnt_lo_u32_b32 v1, -1, 0
            v_mbcnt_hi_u32_b32 v1, -1, v1
            v_lshlrev_b32 v1, 2, v1
            v_add_u32 v1, s3, v1
            s_waitcnt lgkmcnt(0)
            global_store_dword v1, v167, s[34:35]
        ''')


O, Q, S, P, POOL = 0, 64, 96, 112, 120
vKb, vVb, vK, vV, vL, vNM, vLT, vT = 152, 153, 154, 155, 156, 157, 158, 159
FL = 160
vFA, vPA, vSW = 164, 165, 166
sC, sNC, sThr, sP, sSpin, sRem, sMaskAt, sFirst = 's16', 's17', 's18', 's19', 's20', 's21', 's22', 's23'
sE0, sE1, sE0p = 's24', 's25', 's26'
H = 28
TB = 36


def r(a, n):
    return f'v[{a}:{a + n - 1}]'


def pool(i):
    return r(POOL + 4 * i, 4)


def qk(i, c0=False):
    c = '0' if c0 else r(S, 16)
    return f'v_mfma_f32_32x32x16_bf16 {r(S, 16)}, {pool(i)}, {r(Q + 4 * i, 4)}, {c}'


def pv(slot, b, j):
    return f'v_mfma_f32_32x32x16_bf16 {r(O + 16 * b, 16)}, {pool(slot)}, {r(P + 4 * j, 4)}, {r(O + 16 * b, 16)}'


def kread(s, addr=vK):
    return f'ds_read_b128 {pool(s)}, v{addr} offset:{32 * s}'


def vread(slot, b, j):
    return [f'ds_read_b64_tr_b16 {r(POOL + 4 * slot + 2 * eh, 2)}, v{vV} offset:{(2 * j + eh) * 256 + 64 * b}'
            for eh in (0, 1)]


def F(a, b):
    return [f'v_fma_f32 v{S + i}, v{S + i}, {sC}, v{vNM}' for i in range(a, b)]


def E(a, b):
    return [f'v_exp_f32 v{S + i}, v{S + i}' for i in range(a, b)]


def A(a, b):
    return [f'v_add_f32 v{vLT}, v{S}, v{S + 1}' if i == 1 else f'v_add_f32 v{vLT}, v{vLT}, v{S + i}'
            for i in range(max(a, 1), b)]


def C(a, b):
    return [f'v_cvt_pk_bf16_f32 v{P + k}, v{S + 2 * k}, v{S + 2 * k + 1}' for k in range(a, b)]


def addr(dst, s, base):
    return f'v_mad_u32_u24 v{dst}, {s}, 1, v{base}'


def pub(g, a, val):
    if g.o.execpub:
        return ['s_mov_b64 exec, 1', f'ds_write_b32 v{a}, v{val}', 's_mov_b64 exec, -1']
    return [f'ds_write_b32 v{a}, v{val}']


def poll(g, tag, need):
    g.many(f'''
        s_cmp_gt_u32 {sP}, {need}
        s_cbranch_scc1 POLLOK_{tag}
    POLL_{tag}:
        ds_read_b128 {r(FL, 4)}, v{vFA}
        s_waitcnt lgkmcnt(0)
        v_min3_u32 v{FL}, v{FL}, v{FL + 1}, v{FL + 2}
        v_min_u32 v{FL}, v{FL}, v{FL + 3}
        s_sub_u32 {sSpin}, {sSpin}, 1
        s_cbranch_scc1 END
        v_readfirstlane_b32 {sP}, v{FL}
        s_cmp_gt_u32 {sP}, {need}
        s_cbranch_scc1 POLLOK_{tag}
        s_sleep {g.o.csleep}
        s_branch POLL_{tag}
    POLLOK_{tag}:
    ''')


def finewaits(seq, step):
    q = ['V0', 'V0', 'V1', 'V1', 'W', 'V2', 'V2', 'V3', 'V3', 'V4', 'V4', 'V5', 'V5', 'V6', 'V6', 'FL', 'V7', 'V7']
    out = []
    k = 0
    for x in seq:
        if x.startswith('s_waitcnt lgkmcnt'):
            continue
        if x.startswith('v_mfma'):
            if k % step == 0:
                need = 'V%d' % (k + step - 1)
                last = max(i for i, n in enumerate(q) if n == need)
                out.append(f's_waitcnt lgkmcnt({min(15, len(q) - 1 - last)})')
            k += 1
        if x.startswith('ds_read'):
            q.append('K')
        out.append(x)
    return out


def gen_loader(g, lay):
    o = g.o
    nt = ' nt' if o.nt else ''
    g.idx, g.m0save = 's32', None
    g.lab('LOADER')
    g.many(f'''
        s_setprio {o.lprio}
        s_and_b32 s20, s14, 1
        s_lshr_b32 s3, s14, 1
        s_lshl_b32 s23, s20, 24
        v_mov_b32 v2, s23
        v_lshrrev_b32 v5, 4, v0
        ds_write_b32 v3, v2
        v_mov_b32 v4, {lay['PROGA']}
        v_and_b32 v6, 15, v0
        v_lshrrev_b32 v7, 5, v0
        v_xor_b32 v7, v7, v6
        v_lshlrev_b32 v5, 12, v5
        s_mul_i32 s30, s3, {4 * KST}
        s_mul_i32 s31, s3, {4 * VST}
        s_lshl_b32 s3, s3, 16
        v_add_u32 v5, s3, v5
        v_lshl_add_u32 v8, v7, 4, v5
        v_lshl_add_u32 v12, v6, 4, v5
        v_add_u32 v9, {16384 - KST}, v8
        v_add_u32 v13, {16384 - VST}, v12
        v_add_u32 v10, {2 * (16384 - KST)}, v8
        v_add_u32 v14, {2 * (16384 - VST)}, v12
        v_add_u32 v11, {3 * (16384 - KST)}, v8
        v_add_u32 v15, {3 * (16384 - VST)}, v12
        s_mov_b32 s19, 0x00020000
        s_mov_b32 s22, 0
        s_mov_b32 s26, {1000 if o.m1 else lay['RING']}
        s_mov_b32 s27, 0x40000
        s_mul_i32 s28, s20, {SLOT}
        s_mov_b32 s29, 1
        s_waitcnt lgkmcnt(0)
    ''')
    g.stamp()
    if o.m3 == 1:
        g.e('v_mov_b32 v2, -1')
        g.e('ds_write_b32 v3, v2')
        g.e('s_waitcnt lgkmcnt(0)')
        g.e('s_barrier')
        g.e('s_branch L_END')
    g.many(f'''
        s_mov_b32 m0, 0
        s_add_u32 s4, s4, s15
        s_addc_u32 s5, s5, 0
        s_add_u32 s6, s6, s15
        s_addc_u32 s7, s7, 0
        s_add_u32 s8, s8, s15
        s_addc_u32 s9, s9, 0
        s_mov_b32 s11, 0x00020000
    ''')
    if o.probe2:
        g.many(f'''
        s_mov_b32 s33, 0
    P1:
        s_mov_b32 m0, s33
        s_nop 0
        s_movrels_b64 s[24:25], s[{TB}:{TB + 1}]
        s_bfe_u32 s12, s25, 0x20002
        s_cmp_eq_u32 s12, 0
        s_cbranch_scc1 P1X
        s_bitcmp1_b32 s25, 0
        s_cbranch_scc1 P1V
        s_mov_b32 m0, s30
        s_bitcmp1_b32 s25, 1
        s_cselect_b64 s[16:17], s[6:7], s[4:5]
        s_mov_b32 s18, s25
        buffer_load_dwordx4 v8, s[16:19], s24 offen lds
        buffer_load_dwordx4 v9, s[16:19], s24 offen offset:{KST} lds
        buffer_load_dwordx4 v10, s[16:19], s24 offen offset:{2 * KST} lds
        buffer_load_dwordx4 v11, s[16:19], s24 offen offset:{3 * KST} lds
        s_branch P1D
    P1V:
        s_mov_b32 m0, s31
        s_mov_b32 s10, s25
        buffer_load_dwordx4 v12, s[8:11], s24 offen lds
        buffer_load_dwordx4 v13, s[8:11], s24 offen offset:{VST} lds
        buffer_load_dwordx4 v14, s[8:11], s24 offen offset:{2 * VST} lds
        buffer_load_dwordx4 v15, s[8:11], s24 offen offset:{3 * VST} lds
    P1D:
        s_add_u32 s33, s33, 2
        s_waitcnt vmcnt({o.probe2})
        s_branch P1
    P1X:
        s_waitcnt vmcnt(0)
        s_memrealtime s[34:35]
        s_waitcnt lgkmcnt(0)
        s_sub_u32 s34, s34, s100
        s_lshl_b32 s34, s34, 2
        s_add_u32 s100, s100, s34
        s_mov_b32 m0, 0
        ''')
    g.many(f'''
    L_NEXT:
        s_movrels_b64 s[24:25], s[{TB}:{TB + 1}]
        s_bfe_u32 s12, s25, 0x20002
    L_CHK:
        s_cmp_ge_u32 s22, s12
        s_cbranch_scc1 L_WAIT
        s_cmp_lt_u32 s20, s26
        s_cbranch_scc0 L_POLL
    L_ISSUE:
        {'s_cmp_ge_u32 s20, 15' if o.m5 else None}
        {'s_cbranch_scc1 L_ALT' if o.m5 else None}
        s_bitcmp1_b32 s25, 0
        s_cbranch_scc1 L_V
        s_add_u32 m0, s28, s30
        s_bitcmp1_b32 s25, 1
        s_cselect_b64 s[16:17], s[6:7], s[4:5]
        s_mov_b32 s18, s25
        buffer_load_dwordx4 v8, s[16:19], s24 offen{nt} lds
        buffer_load_dwordx4 v9, s[16:19], s24 offen offset:{KST}{nt} lds
        buffer_load_dwordx4 v10, s[16:19], s24 offen offset:{2 * KST}{nt} lds
        buffer_load_dwordx4 v11, s[16:19], s24 offen offset:{3 * KST}{nt} lds
        s_branch L_DONE
    L_V:
        s_add_u32 m0, s28, s31
        s_mov_b32 s10, s25
        buffer_load_dwordx4 v12, s[8:11], s24 offen{nt} lds
        buffer_load_dwordx4 v13, s[8:11], s24 offen offset:{VST}{nt} lds
        buffer_load_dwordx4 v14, s[8:11], s24 offen offset:{2 * VST}{nt} lds
        buffer_load_dwordx4 v15, s[8:11], s24 offen offset:{3 * VST}{nt} lds
    L_DONE:
        s_add_u32 s20, s20, 2
        s_add_u32 s28, s28, {2 * SLOT}
        s_and_b32 m0, s20, -2
        s_sub_u32 s3, s28, {lay['RINGB']}
        s_cselect_b32 s28, s28, s3
        s_add_u32 s22, s22, 1
        s_branch L_NEXT
    L_POLL:
        {'s_waitcnt vmcnt(0)' if o.m3 == 2 else None}
        {'v_mov_b32 v2, -1' if o.m3 == 2 else None}
        {'ds_write_b32 v3, v2' if o.m3 == 2 else None}
        {'s_branch L_END' if o.m3 == 2 else None}
        ds_read_b128 v[24:27], v4
        ds_read_b128 v[28:31], v4 offset:16
        s_waitcnt lgkmcnt(0)
        v_min3_u32 v24, v24, v25, v26
        v_min3_u32 v27, v27, v28, v29
        v_min3_u32 v24, v24, v30, v31
        v_min_u32 v24, v24, v27
        s_nop 0
        v_readfirstlane_b32 s26, v24
        s_lshr_b32 s26, s26, 24
        s_add_u32 s26, s26, {lay['RING']}
        s_cmp_lt_u32 s20, s26
        s_cbranch_scc1 {'L_SLOW' if o.pace else 'L_ISSUE'}
        s_cmp_gt_u32 s22, 0
        s_cbranch_scc1 L_WAIT
        s_sub_u32 s27, s27, 1
        s_cbranch_scc1 END
        s_sleep {o.lsleep}
        s_branch L_POLL
    L_SLOW:
        s_bitcmp1_b32 s25, 0
        s_cbranch_scc1 L_SV
        s_add_u32 m0, s28, s30
        s_bitcmp1_b32 s25, 1
        s_cselect_b64 s[16:17], s[6:7], s[4:5]
        s_mov_b32 s18, s25
        buffer_load_dwordx4 v8, s[16:19], s24 offen{nt} lds
        s_sleep {o.pace}
        buffer_load_dwordx4 v9, s[16:19], s24 offen offset:{KST}{nt} lds
        s_sleep {o.pace}
        buffer_load_dwordx4 v10, s[16:19], s24 offen offset:{2 * KST}{nt} lds
        s_sleep {o.pace}
        buffer_load_dwordx4 v11, s[16:19], s24 offen offset:{3 * KST}{nt} lds
        s_branch L_DONE
    L_SV:
        s_add_u32 m0, s28, s31
        s_mov_b32 s10, s25
        buffer_load_dwordx4 v12, s[8:11], s24 offen{nt} lds
        s_sleep {o.pace}
        buffer_load_dwordx4 v13, s[8:11], s24 offen offset:{VST}{nt} lds
        s_sleep {o.pace}
        buffer_load_dwordx4 v14, s[8:11], s24 offen offset:{2 * VST}{nt} lds
        s_sleep {o.pace}
        buffer_load_dwordx4 v15, s[8:11], s24 offen offset:{3 * VST}{nt} lds
        s_branch L_DONE
    L_ALT:
        s_mov_b32 s10, s25
        {'buffer_load_dwordx4 v[40:43], v12, s[8:11], s24 offen' if o.m5 == 2 else None}
        {'buffer_load_dwordx4 v[44:47], v13, s[8:11], s24 offen offset:1088' if o.m5 == 2 else None}
        {'buffer_load_dwordx4 v[48:51], v14, s[8:11], s24 offen offset:2176' if o.m5 == 2 else None}
        {'buffer_load_dwordx4 v[52:55], v15, s[8:11], s24 offen offset:3264' if o.m5 == 2 else None}
        s_branch L_DONE
    L_FIRST:
        s_mov_b32 s29, 0
    ''')
    g.stamp()
    g.many(f'''
        s_barrier
    L_WAIT:
        s_cmp_lg_u32 s29, 0
        s_cbranch_scc1 L_FIRST
        s_cmp_eq_u32 s22, 3
        s_cbranch_scc0 L_W2
        s_waitcnt vmcnt(8)
    L_PUB:
        s_add_u32 s23, s23, 0x2000000
        v_mov_b32 v2, s23
        s_sub_u32 s22, s22, 1
    ''')
    g.e(pub(g, 3, 2))
    if o.lstamp:
        g.stamp()
    g.many(f'''
        s_branch L_CHK
    L_W2:
        s_cmp_eq_u32 s22, 2
        s_cbranch_scc0 L_W1
        s_waitcnt vmcnt(4)
        s_branch L_PUB
    L_W1:
        s_cmp_eq_u32 s22, 0
        s_cbranch_scc1 L_END
        s_waitcnt vmcnt(0)
        s_branch L_PUB
    L_END:
    ''')
    g.stamp_out()
    g.e('s_endpgm')


def gen_consumer(g, lay):
    o = g.o
    c = 128 ** -0.5 * math.log2(math.e)
    st = o.stpol
    g.idx, g.m0save = 's8', 's9'
    pr = o.prio
    g.lab('CONSUMER')
    g.many(f'''
        v_mov_b32 v{vFA}, {lay['FULLA']}
        v_mov_b32 v{vPA}, v3
        v_and_b32 v1, 7, v0
        v_mul_u32_u24 v{vKb}, {KST}, v1
        v_bfe_u32 v2, v0, 3, 2
        v_lshl_add_u32 v{vKb}, v2, 8, v{vKb}
        v_lshrrev_b32 v3, 5, v0
        v_bfe_u32 v4, v0, 4, 1
        v_xor_b32 v5, v3, v4
        v_lshl_add_u32 v{vKb}, v5, 4, v{vKb}
        v_bfe_u32 v5, v0, 2, 2
        v_lshl_add_u32 v5, v3, 2, v5
        v_mul_u32_u24 v{vVb}, {VST}, v5
        v_lshl_add_u32 v{vVb}, v4, 5, v{vVb}
        v_and_b32 v5, 1, v0
        v_lshl_add_u32 v{vVb}, v5, 4, v{vVb}
        v_bfe_u32 v5, v0, 1, 1
        v_lshl_add_u32 v{vVb}, v5, 3, v{vVb}
        v_bfe_u32 v5, v0, 2, 1
        v_lshl_add_u32 v2, v5, 4, v2
        v_and_b32 v5, 3, v0
        v_lshl_add_u32 v2, v5, 2, v2
        s_lshl_b32 s3, s14, 12
        s_add_u32 s3, s3, {lay['STG'] - 4 * 4096}
        v_xor_b32 v1, v1, v3
        v_lshlrev_b32 v1, 4, v1
        v_lshl_add_u32 v2, v2, 7, v1
        v_add_u32 v{vSW}, s3, v2
        s_mov_b32 s13, s3
        s_mov_b32 {sC}, {hex(f2u(c))}
        s_mov_b32 {sNC}, {hex(f2u(-c))}
        s_mov_b32 {sThr}, {hex(f2u(2.0 ** 24))}
        s_mov_b32 {sP}, 0
        s_mov_b32 {sSpin}, 0x40000
        s_mov_b32 m0, 0
        s_waitcnt lgkmcnt(0)
        v_mov_b32 v{vT}, s{TB + 5}
        s_mov_b32 s7, 0x00020000
        s_add_u32 s10, s10, s15
        s_addc_u32 s11, s11, 0
    ''')
    g.e(pub(g, vPA, vT))
    g.many('''
        s_waitcnt lgkmcnt(0)
        s_barrier
    ''')
    if o.stamps:
        g.e('s_mov_b32 s8, 5')
        g.e('s_mov_b32 s12, 0')
    g.stamp()
    g.lab('TASK')
    g.many(f'''
        s_movrels_b64 s[{H}:{H + 1}], s[{TB}:{TB + 1}]
        s_movrels_b64 s[{H + 2}:{H + 3}], s[{TB + 2}:{TB + 3}]
        s_movrels_b64 s[{H + 4}:{H + 5}], s[{TB + 4}:{TB + 5}]
        s_movrels_b64 s[24:25], s[{TB + 6}:{TB + 7}]
        s_add_u32 m0, m0, 8
        s_cmp_eq_u32 s{H + 1}, 0
        s_cbranch_scc1 C_END
        v_mov_b32 v{P}, 0
        v_mov_b32 v{P + 1}, 0
        v_mov_b32 v{P + 2}, 0
        v_mov_b32 v{P + 3}, 0
        v_mov_b32 v{vL}, 0
        v_mov_b32 v{vNM}, 0x7f800000
    ''')
    for b in range(4):
        g.e(f'v_mfma_f32_32x32x16_bf16 {r(O + 16 * b, 16)}, {r(P, 4)}, {r(P, 4)}, 0')
    g.many(f'''
        s_lshr_b32 {sRem}, s{H + 4}, 24
        s_cmp_eq_u32 s{H + 2}, 0
        s_cselect_b32 {sMaskAt}, -1, 0
        s_mov_b32 {sE0p}, s{H + 4}
        {addr(vV, f's{H + 3}', vKb)}
        s_mov_b32 {sFirst}, 1
    ''')
    poll(g, 'T', f's{H + 3}')
    g.stamp()
    for s in range(8):
        g.e(f'ds_read_b128 {r(Q + 4 * s, 4)}, v{vV} offset:{32 * s}')
    g.lab('FRESH')
    g.e(addr(vK, sE0p, vKb))
    g.e('s_waitcnt lgkmcnt(7)')
    for s in range(8):
        g.e(kread(s))
    g.many(f'''
        s_cmp_eq_u32 {sRem}, {sMaskAt}
        s_cbranch_scc1 FMASK
        s_waitcnt lgkmcnt(7)
        {qk(0, True)}
    F_BACK:
    ''')
    for s in range(1, 8):
        g.e(f's_waitcnt lgkmcnt({7 - s})')
        g.e(qk(s))
    t0, t1 = FL, FL + 1
    g.many(f'''
        s_nop 7
        s_nop 3
        v_max3_f32 v{t0}, v{S}, v{S + 1}, v{S + 2}
        v_max3_f32 v{t1}, v{S + 3}, v{S + 4}, v{S + 5}
        v_max3_f32 v{t0}, v{t0}, v{S + 6}, v{S + 7}
        v_max3_f32 v{t1}, v{t1}, v{S + 8}, v{S + 9}
        v_max3_f32 v{t0}, v{t0}, v{S + 10}, v{S + 11}
        v_max3_f32 v{t1}, v{t1}, v{S + 12}, v{S + 13}
        v_max3_f32 v{t0}, v{t0}, v{S + 14}, v{S + 15}
        v_max_f32 v{t0}, v{t0}, v{t1}
        v_mov_b32 v{t1}, v{t0}
        s_nop 1
        v_permlane32_swap_b32 v{t0}, v{t1}
        v_max_f32 v{t0}, v{t0}, v{t1}
        v_mul_f32 v{t0}, {sNC}, v{t0}
        v_min_f32 v{t0}, v{t0}, v{vNM}
        s_cmp_eq_u32 {sFirst}, 0
        s_cbranch_scc1 RESCALE
    R_BACK:
        v_mov_b32 v{vNM}, v{t0}
        s_mov_b32 {sFirst}, 0
    ''')
    g.e(F(0, 16) + E(0, 16) + A(1, 16) + C(0, 8))
    g.stamp()
    g.lab('LATE')
    if o.stamps and not o.mini:
        g.e('s_memtime s[100:101]')
        g.e('s_waitcnt lgkmcnt(0)')
    poll(g, 'L', sE0)
    if o.stamps and not o.mini:
        g.e('s_memtime s[34:35]')
        g.e('s_waitcnt lgkmcnt(0)')
        g.e('s_sub_u32 s34, s34, s100')
        g.e('s_add_u32 s12, s12, s34')
    g.e(addr(vK, sE0, vKb))
    g.e(addr(vV, sE1, vVb))
    for s in range(8):
        g.e(kread(s))
    g.e('s_branch CONT')
    g.L.append('.p2align 4') if o.align else None
    g.lab('LOOP')
    loop_start = len(g.L)
    g.e('s_waitcnt lgkmcnt(0)')
    if pr:
        g.e(f's_setprio {pr[0]}')
    g.e(qk(0, True))
    g.lab('L_BACK')
    if pr and not o.pl:
        g.e(f's_setprio {pr[1]}')
    mins = [f'v_min3_u32 v{FL}, v{FL}, v{FL + 1}, v{FL + 2}', f'v_min_u32 v{FL}, v{FL}, v{FL + 3}']
    rfl = [f'v_readfirstlane_b32 {sP}, v{FL}']
    cmpv = [f'v_cmp_nge_f32 vcc, {sThr}, v{vLT}']
    lo = [f's_setprio {pr[2]}'] if pr else []
    flr = f'ds_read_b128 {r(FL, 4)}, v{vFA}'
    if o.sched <= 3:
        gapA = {0: [f'v_mov_b32 v{vT}, {sE1}'],
                1: pub(g, vPA, vT) + [f'v_add_f32 v{vL}, v{vL}, v{vLT}'],
                2: [f's_mov_b32 {sE0p}, {sE0}', f's_movrels_b64 s[24:25], s[{TB}:{TB + 1}]', 's_add_u32 m0, m0, 2'],
                7: [flr, addr(vK, sE0, vKb), addr(vV, sE1, vVb)]}
    else:
        gapA = {0: [f'v_mov_b32 v{vT}, {sE1}'],
                1: pub(g, vPA, vT),
                2: [f'v_add_f32 v{vL}, v{vL}, v{vLT}', f's_mov_b32 {sE0p}, {sE0}'],
                3: [f's_movrels_b64 s[24:25], s[{TB}:{TB + 1}]'],
                4: ['s_add_u32 m0, m0, 2'],
                5: [addr(vK, sE0, vKb)],
                6: [flr]}
    for m in range(8):
        if m > 0:
            g.e(qk(m))
        g.e(vread(m, m % 4, m // 4))
        g.e(gapA.get(m))

    def vseg(e0, f0=16):
        out = F(f0, 16)
        acc = [vLT, vT]
        tail = []
        done = e0
        q = []
        adds = []
        for i in range(2, 16):
            adds.append((i, f'v_add_f32 v{acc[i & 1]}, v{S + i - 2}, v{S + i}' if i < 4 else f'v_add_f32 v{acc[i & 1]}, v{acc[i & 1]}, v{S + i}'))
        cv = [(2 * k + 1, C(k, k + 1)[0]) for k in range(8)]
        ai = ci = 0
        for i in range(e0, 16):
            out += E(i, i + 1)
            if ai < len(adds) and adds[ai][0] < i:
                out.append(adds[ai][1]); ai += 1
            if i % 2 and ci < 5 and cv[ci][0] < i:
                out.append(cv[ci][1]); ci += 1
            elif ai < len(adds) and adds[ai][0] < i:
                out.append(adds[ai][1]); ai += 1
        out.append(cv[ci][1]); ci += 1
        out += [a for _, a in adds[ai:]]
        out.append(f'v_add_f32 v{vLT}, v{vLT}, v{vT}')
        out += cmpv + [c_ for _, c_ in cv[ci:]]
        return out
    seq = ['s_waitcnt lgkmcnt(9)', pv(0, 0, 0)]
    if o.sched > 3:
        seq += [addr(vV, sE1, vVb)]
    seq += [pv(1, 1, 0)]
    if o.sched == 1:
        seq += ['s_nop 3'] + F(0, 4) + [pv(2, 2, 0)] + F(4, 8) + [pv(3, 3, 0)]
        seq += [kread(s) for s in range(4)] + ['s_waitcnt lgkmcnt(4)', pv(4, 0, 1), kread(4)]
        seq += F(8, 12) + [pv(5, 1, 1), kread(5)] + F(12, 16) + [pv(6, 2, 1), kread(6)] + mins
        seq += [pv(7, 3, 1), kread(7)] + lo + rfl + E(0, 16) + A(1, 16) + cmpv + C(0, 8)
    elif o.sched in (2, 4, 5):
        seq += [kread(0), kread(1), pv(2, 2, 0), kread(2)] + F(0, 4) + [pv(3, 3, 0), kread(3)] + F(4, 8 if o.sched < 4 else 7)
        seq += ['s_waitcnt lgkmcnt(4)', pv(4, 0, 1), kread(4)]
        if o.sched == 2:
            seq += F(8, 12) + [pv(5, 1, 1), kread(5)] + F(12, 16) + [pv(6, 2, 1), kread(6)] + mins + E(0, 1)
        else:
            seq += F(7, 11) + [pv(5, 1, 1), kread(5)] + F(11, 15) + [pv(6, 2, 1), kread(6)] + F(15, 16) + mins
        seq += [pv(7, 3, 1), kread(7)] + lo + rfl
        if o.sched == 2:
            seq += E(1, 16) + A(1, 16) + cmpv + C(0, 8)
        elif o.sched == 4:
            seq += E(0, 16) + A(1, 16) + cmpv + C(0, 8)
        else:
            seq += vseg(0)
    elif o.sched in (3, 6):
        seq += [kread(0), kread(1), pv(2, 2, 0), kread(2)] + F(0, 4) + [pv(3, 3, 0), kread(3)] + F(4, 6) + E(0, 1)
        seq += ['s_waitcnt lgkmcnt(4)', pv(4, 0, 1), kread(4)]
        seq += F(6, 8) + E(1, 2) + [pv(5, 1, 1), kread(5)] + F(8, 10) + E(2, 3) + [pv(6, 2, 1), kread(6)] + mins + E(3, 4)
        seq += [pv(7, 3, 1), kread(7)] + lo + rfl
        if o.sched == 3:
            seq += F(10, 16) + E(4, 16) + A(1, 16) + cmpv + C(0, 8)
        else:
            seq += vseg(4, 10)
    elif o.sched == 7:
        seq += [kread(0), kread(1), pv(2, 2, 0), kread(2)] + F(0, 3) + [pv(3, 3, 0), kread(3)] + F(3, 5)
        seq += ['s_waitcnt lgkmcnt(4)', pv(4, 0, 1), kread(4)]
        seq += F(5, 8) + [pv(5, 1, 1), kread(5)] + F(8, 11) + [pv(6, 2, 1), kread(6)] + mins
        seq += [pv(7, 3, 1), kread(7)] + lo + rfl + vseg(0, 11)
    if o.klate:
        ks = [x for x in seq if x.startswith('ds_read_b128')]
        seq = [x for x in seq if not x.startswith('ds_read_b128')]
        seq = ['s_waitcnt lgkmcnt(0)' if x == 's_waitcnt lgkmcnt(4)' else x for x in seq]
        i = seq.index(rfl[0]) + 1
        tail = seq[i:]
        seq = seq[:i]
        if o.klate == 1:
            seq += ks + tail
        else:
            for k, x in enumerate(tail):
                if k < 8:
                    seq.append(ks[k])
                seq.append(x)
    if o.fine:
        seq = finewaits(seq, o.fine)
    g.e(seq)
    if o.pl:
        lad = dict((int(a), int(b)) for a, b in (x.split(':') for x in o.pl.split(',')))
        body = g.L[loop_start:]
        del g.L[loop_start:]
        k = 0
        for x in body:
            g.L.append(x)
            if 'v_mfma' in x:
                k += 1
                if k in lad:
                    g.e(f's_setprio {lad[k]}')
    g.many(f'''
        {'s_nop 0' if o.m3 or o.m5 else 's_cbranch_vccnz FRESH'}
        s_cmp_gt_u32 {sP}, {sE0}
        s_cbranch_scc0 LATE
    CONT:
    ''')
    if o.itst:
        g.stamp()
    g.many(f'''
        s_sub_u32 {sRem}, {sRem}, 1
        s_cbranch_scc1 FINAL
        s_cmp_eq_u32 {sRem}, {sMaskAt}
        s_cbranch_scc0 LOOP
        s_mov_b32 s27, 0
    MASK:
        v_mov_b32 v{FL}, s{H + 2}
        s_mov_b32 exec_lo, 0
        v_lshrrev_b32 v{FL}, 16, v{FL}
        s_mov_b32 exec_lo, -1
    ''')
    for i in range(16):
        bit = 4 * (i % 4) + i // 4
        g.e(f'v_bfe_i32 v{S + i}, v{FL}, {bit}, 1')
    for i in range(16):
        g.e(f'v_lshlrev_b32 v{S + i}, 23, v{S + i}')
    g.many(f'''
        s_waitcnt lgkmcnt(0)
        s_cmp_eq_u32 s27, 0
        {qk(0)}
        s_cbranch_scc1 L_BACK
        s_branch F_BACK
    ''')
    g.lab('FINAL')
    g.stamp()
    order = [(b, j) for b in range(4) for j in range(2)]
    g.e('s_waitcnt lgkmcnt(4)')
    for k in range(5):
        g.e(vread(k, *order[k]))
    X = S
    vW = [vSW, X, X + 1, X + 2]
    vR = [X + 4, X + 5, X + 6, X + 7]
    vG = [X + 8, X + 9, X + 10, X + 11]
    ln = X + 12

    def mul(b):
        return [f'v_mul_f32 v{O + 16 * b + i}, v{O + 16 * b + i}, v{vL}' for i in range(16)]

    def cvw(b):
        out = []
        for gq in range(2):
            d = Q + 8 * b + 4 * gq
            for k in range(4):
                i = O + 16 * b + 8 * gq + 2 * k
                out.append(f'v_cvt_pk_bf16_f32 v{d + k}, v{i}, v{i + 1}')
            out.append(f'ds_write_b128 v{vW[2 * (b & 1) + gq]}, {r(d, 4)}')
        return out

    def rd(rnd):
        return [f'ds_read_b128 {r(O + 32 * rnd + 4 * k, 4)}, v{vR[k]} offset:{1024 * k}' for k in range(4)]

    def stv(rnd):
        out = []
        for k in range(4):
            out.append(f's_waitcnt lgkmcnt({3 - k})')
            out.append(f'buffer_store_dwordx4 {r(O + 32 * rnd + 4 * k, 4)}, v{vG[k]}, s[4:7], 0 offen offset:{128 * rnd}{st}')
        return out
    seq = []
    seq += [f'v_add_f32 v{vL}, v{vL}, v{vLT}', f's_movrels_b32 s3, s{TB + 5}', f's_add_u32 s4, s10, s{H}',
            f'v_mov_b32 v{FL + 1}, v{vL}', f's_addc_u32 s5, s11, 0', f's_mov_b32 s6, s{H + 1}',
            f'v_permlane32_swap_b32 v{vL}, v{FL + 1}', f'v_mov_b32 v{vT}, s3',
            f'v_add_f32 v{vL}, v{vL}, v{FL + 1}',
            f'v_mbcnt_lo_u32_b32 v{ln}, -1, 0', f'v_rcp_f32 v{vL}, v{vL}', f'v_mbcnt_hi_u32_b32 v{ln}, -1, v{ln}']
    seq += ['s_waitcnt lgkmcnt(8)', pv(0, *order[0])] + vread(5, *order[5])
    seq += [f'v_lshrrev_b32 v{ln + 1}, 3, v{ln}', f'v_and_b32 v{ln + 2}, 7, v{ln}', f'v_lshrrev_b32 v{ln}, 5, v{ln}']
    seq += ['s_waitcnt lgkmcnt(8)', pv(1, *order[1])] + vread(6, *order[6])
    seq += [f'v_lshlrev_b32 v{vG[0]}, 12, v{ln + 1}', f'v_xor_b32 v{ln}, v{ln}, v{ln + 2}',
            f'v_lshl_add_u32 v{vG[0]}, v{ln + 2}, 4, v{vG[0]}']
    seq += ['s_waitcnt lgkmcnt(8)', pv(2, *order[2])] + vread(7, *order[7])
    seq += [f'v_lshl_add_u32 v{vR[0]}, v{ln + 1}, 7, s13', f'v_xor_b32 v{vW[1]}, 32, v{vSW}',
            f'v_lshl_add_u32 v{vR[0]}, v{ln}, 4, v{vR[0]}']
    seq += ['s_waitcnt lgkmcnt(8)', pv(3, *order[3])]
    seq += [f'v_xor_b32 v{vW[2]}, 64, v{vSW}', f'v_xor_b32 v{vW[3]}, 0x60, v{vSW}',
            f'v_xor_b32 v{vR[1]}, 32, v{vR[0]}', f'v_xor_b32 v{vR[2]}, 64, v{vR[0]}']
    seq += ['s_waitcnt lgkmcnt(6)', pv(4, *order[4])]
    seq += [f'v_xor_b32 v{vR[3]}, 0x60, v{vR[0]}', f'v_add_u32 v{vG[1]}, 0x8000, v{vG[0]}',
            f'v_add_u32 v{vG[2]}, 0x10000, v{vG[0]}', f'v_add_u32 v{vG[3]}, 0x18000, v{vG[0]}']
    seq += ['s_waitcnt lgkmcnt(4)', pv(5, *order[5])]
    seq += mul(0)[:6]
    seq += ['s_waitcnt lgkmcnt(2)', pv(6, *order[6])]
    seq += mul(0)[6:12]
    seq += ['s_waitcnt lgkmcnt(0)', pv(7, *order[7])]
    seq += pub(g, vPA, vT)
    seq += mul(0)[12:] + cvw(0) + mul(1) + cvw(1)
    seq += mul(2)
    seq += ['s_waitcnt lgkmcnt(0)'] + rd(0)
    seq += mul(3)
    seq += stv(0)
    seq += cvw(2) + cvw(3)
    seq += ['s_waitcnt lgkmcnt(0)'] + rd(1) + stv(1)
    g.e(seq)
    g.stamp()
    g.e('s_branch TASK')
    g.lab('C_END')
    if o.stamps:
        g.e('s_waitcnt vmcnt(0)')
        g.stamp()
        g.stampval('s12')
    g.stamp_out()
    g.lab('END')
    g.e('s_endpgm')
    g.many(f'''
    FMASK:
        s_mov_b32 s27, 1
        s_branch MASK
    RESCALE:
        v_sub_f32 v{t1}, v{t0}, v{vNM}
        v_exp_f32 v{t1}, v{t1}
        s_nop 0
        v_mul_f32 v{vL}, v{vL}, v{t1}
    ''')
    for i in range(64):
        g.e(f'v_mul_f32 v{O + i}, v{O + i}, v{t1}')
    g.e('s_branch R_BACK')


def tables(plan, ring, o):
    words = []
    p = dict(sim.P)
    p['RING'] = ring
    wins = [int(x) for x in o.win.split(',')]
    for gi, cu in enumerate(plan):
        comp = [(PL.NT[s], [w for w, _ in tasks]) for s, hb, tasks in cu]
        if o.order == 'sim':
            m, order = sim.best_order(comp, p, local=1)
        else:
            order = sim.init_order(comp, 1000, 1200, o.qsplit)
        items, hdr = PL.stream_from_order(cu, order, ring)
        w = [0] * (GSTRIDE // 4)
        assert len(items) <= 62
        for i, (ty, row0, hb, end) in enumerate(items):
            win = wins[0]
            if len(wins) > 1 and gi >= wins[2] and i < wins[3]:
                win = wins[1]
            b = 64 * (i & 1) + (i >> 1) * 2
            w[b] = row0 * 4096 + hb * 256
            w[b + 1] = ((end - 1) * 4096 + 512) | (ty == 'V') | ((ty == 'K') << 1) | (win << 2)
        sa = lambda it: (it % ring) * SLOT
        for c in range(8):
            s = []
            for h in hdr[c]:
                s += [h['row0'] * 4096 + h['hb'] * 256, h['nvq'] * 4096 - 3840, (0xffffffff << h['nvl']) & 0xffffffff,
                      sa(h['qitem']) | (max(h['qitem'], h['k0']) << 24), sa(h['k0']) | ((h['n'] - 1) << 24),
                      min(h['qitem'], h['k0']) << 24]
                for kn, vn in h['tl']:
                    s += [sa(kn) | (max(kn, vn) << 24), sa(vn) | (vn << 24)]
            s += [0, 0, 0, 0, 0, 255 << 24]
            assert len(s) <= 62, len(s)
            w[64 * (c + 2):64 * (c + 2) + len(s)] = s
        words += w
    return words


def main():
    ap = argparse.ArgumentParser()
    ap.add_argument('-o', default='standalone__varlen_attn_packed__ragged.s')
    ap.add_argument('--stamps', action='store_true')
    ap.add_argument('--mini', action='store_true')
    ap.add_argument('--probe', type=int, default=0)
    ap.add_argument('--probe2', type=int, default=0)
    ap.add_argument('--win', default='3', help='W or W,Wlow,first group,items')
    ap.add_argument('--order', default='sim')
    ap.add_argument('--lprio', type=int, default=3)
    ap.add_argument('--itst', action='store_true')
    ap.add_argument('--pace', type=int, default=0)
    ap.add_argument('--klate', type=int, default=0)
    ap.add_argument('--pl', default='')
    ap.add_argument('--lstamp', type=int, default=1)
    ap.add_argument('--fine', type=int, default=0)
    ap.add_argument('--m5', type=int, default=0)
    ap.add_argument('--ring', type=int, default=15)
    ap.add_argument('--nt', action='store_true')
    ap.add_argument('--stpol', default='nt')
    ap.add_argument('--m1', type=int, default=0)
    ap.add_argument('--m3', type=int, default=0)
    ap.add_argument('--sched', type=int, default=2)
    ap.add_argument('--prio', default='120')
    ap.add_argument('--lsleep', type=int, default=2)
    ap.add_argument('--csleep', type=int, default=1)
    ap.add_argument('--execpub', action='store_true')
    ap.add_argument('--align', action='store_true')
    ap.add_argument('--qsplit', type=int, default=1)
    ap.add_argument('--plan', default='h2')
    o = ap.parse_args()
    if o.stpol:
        o.stpol = ' ' + o.stpol
    if o.prio == 'none':
        o.prio = ''
    lay = dict(RING=o.ring, RINGB=o.ring * SLOT)
    lay['STG'] = lay['RINGB']
    lay['FULLA'] = lay['STG'] + 8 * 4096
    lay['PROGA'] = lay['FULLA'] + 16
    lds = lay['FULLA'] + 64
    assert lds <= 163840 and lay['STG'] % 128 == 0
    g = Gen(o)
    ref = open('standalone__varlen_attn_packed__ragged.s.ref').read().split('\n')
    head = [l for l in ref[:12] if l.startswith(';') and '@launch' not in l]
    out = head + [f'; @launch grid=(256,1,1) block=(768,1,1) lds={lds}',
                  '.amdgcn_target "amdgcn-amd-amdhsa--gfx950"', '.text', f'.globl {NAME}', '.p2align 8',
                  f'.type {NAME},@function', f'{NAME}:']
    g.many(f'''
        s_cmp_ge_u32 s2, 256
        s_cbranch_scc1 END
        v_lshrrev_b32 v1, 6, v0
        s_getpc_b64 s[12:13]
    PCREF:
        s_load_dwordx4 s[4:7], s[0:1], 0
        v_readfirstlane_b32 s14, v1
        s_load_dwordx2 s[8:9], s[0:1], 16
        s_lshr_b32 s3, s2, 3
        s_mul_i32 s3, s3, {GSTRIDE}
        s_and_b32 s15, s14, 1
        s_sub_u32 s28, s14, 2
        s_cmp_ge_u32 s14, 4
        s_cselect_b32 s15, s28, s15
        s_lshl_b32 s15, s15, 8
        s_add_u32 s3, s3, s15
        s_add_u32 s3, s3, TABLE-PCREF
        s_add_u32 s12, s12, s3
        s_addc_u32 s13, s13, 0
        s_load_dwordx16 s[36:51], s[12:13], 0
        s_load_dwordx16 s[52:67], s[12:13], 64
        s_load_dwordx16 s[68:83], s[12:13], 128
        s_load_dwordx16 s[84:99], s[12:13], 192
        s_load_dwordx2 s[10:11], s[0:1], 32
        v_lshlrev_b32 v3, 2, v1
        v_add_u32 v3, {lay['FULLA']}, v3
        s_and_b32 s15, s2, 7
        s_lshl_b32 s15, s15, 9
        v_and_b32 v0, 63, v0
    ''')
    if o.probe:
        g.e('s_memrealtime s[100:101]')
    if o.stamps:
        g.idx, g.m0save = 's32', None
        g.e('s_mov_b32 s32, 0')
        g.e('v_mov_b32 v167, 0')
        g.e('s_memrealtime s[34:35]')
        g.e('s_memtime s[100:101]')
        g.e('s_getreg_b32 s33, hwreg(HW_REG_HW_ID)')
        g.stampval('s33')
        g.e('s_getreg_b32 s33, hwreg(HW_REG_XCC_ID)')
        g.stampval('s33')
        g.e('s_waitcnt lgkmcnt(0)')
        g.stampval('s34')
        g.stampval('s100')
    g.many('''
        s_cmp_ge_u32 s14, 4
        s_cbranch_scc1 CONSUMER
    ''')
    gen_loader(g, lay)
    gen_consumer(g, lay)
    plan = PL.get_plan(o.plan)
    PL.check_plan(plan)
    tw = tables(plan, o.ring, o)
    g.L.append('.p2align 6')
    g.lab('TABLE')
    for i in range(0, len(tw), 8):
        g.e('.long ' + ', '.join(hex(x) for x in tw[i:i + 8]))
    out += g.L
    out += ['.section .rodata,"a"', '.p2align 6', f'.amdhsa_kernel {NAME}', '  .amdhsa_next_free_vgpr 168',
            '  .amdhsa_next_free_sgpr 102', '  .amdhsa_accum_offset 168', '  .amdhsa_group_segment_fixed_size 0',
            '  .amdhsa_kernarg_size 56', '  .amdhsa_user_sgpr_count 2', '  .amdhsa_user_sgpr_kernarg_segment_ptr 1',
            '  .amdhsa_system_sgpr_workgroup_id_x 1', '.end_amdhsa_kernel', '']
    open(o.o, 'w').write('\n'.join(out))


main()
```

```python
CU = [0, 321, 555, 878, 1299, 1551, 1670, 1878, 2181, 2351, 2646, 2810, 3248, 3471, 3811, 4169, 4391]
L = [CU[i + 1] - CU[i] for i in range(16)]
NT = [(l + 31) // 32 for l in L]
RING = 16
NCONS = 8


def pairs_with(n):
    return [(s, hb) for s in range(16) if NT[s] == n for hb in (0, 1)]


def hand_plan():
    plan = []
    W = list(range(8))

    def job(p, blocks, waves):
        assert len(blocks) == len(waves)
        return (p[0], p[1], list(zip(waves, blocks)))
    p14, p12, p11, p10, p8, p7, p6, p4 = (pairs_with(n) for n in (14, 12, 11, 10, 8, 7, 6, 4))
    for p in p14:
        plan.append([job(p, list(range(0, 7)), W[:7])])
        plan.append([job(p, list(range(7, 14)), W[:7])])
    A, B, C = [], [], []
    for p in p12:
        plan.append([job(p, list(range(8)), W)])
        A.append((p, list(range(8, 12))))
    for p in p11:
        plan.append([job(p, list(range(8)), W)])
        B.append((p, list(range(8, 11))))
    for i, p in enumerate(p10):
        cu = [job(p, list(range(8)), W)]
        if i < 2:
            cu.append(job(p4[i], list(range(4)), W[:4]))
        plan.append(cu)
        C.append((p, list(range(8, 10))))
    for i, p in enumerate(p8):
        plan.append([job(p, list(range(8)), W), job(B[i][0], B[i][1], W[:3])])
    for i in range(3):
        plan.append([job(p7[2 * i], list(range(7)), W[:7]), job(p7[2 * i + 1], list(range(7)), W[:7])])
    for i in range(2):
        plan.append([job(A[i][0], A[i][1], W[:4]), job(B[4 + i][0], B[4 + i][1], W[4:7])])
    for i in range(2):
        plan.append([job(p6[2 * i], list(range(6)), W[:6]), job(C[i][0], C[i][1], W[6:8]),
                     job(p6[2 * i + 1], list(range(6)), W[:6])])
    plan.append([job(C[2][0], C[2][1], [0, 1]), job(C[3][0], C[3][1], [2, 3])])
    assert len(plan) == 32, len(plan)
    return plan


def check_plan(plan):
    seen = set()
    for cu in plan:
        for job in cu:
            s, hb, tasks = job[:3]
            if len(job) > 3:
                assert sorted(job[3]) == list(range(NT[s]))
            for w, qb in tasks:
                assert 0 <= qb < NT[s] and (s, hb, qb) not in seen
                seen.add((s, hb, qb))
    assert len(seen) == 2 * sum(NT), len(seen)


def get_plan(name):
    if name == 'hand':
        return hand_plan()
    if name == 'h2':
        return h2_plan()
    if name == 'h2r':
        return h2r_plan()
    import json
    return [[(j[0], j[1], [tuple(x) for x in j[2]]) + tuple(j[3:]) for j in cu] for cu in json.load(open(name))]


def perm_of(job):
    return list(job[3]) if len(job) > 3 else list(range(NT[job[0]]))


def local_rot(n, k, g):
    out = []
    for b in range(0, n, g):
        blk = list(range(b, min(n, b + g)))
        r = k % len(blk)
        out += blk[r:] + blk[:r]
    return out


def h2r_plan():
    plan = h2_plan()
    for gi in range(9, 17):
        s, hb, t = plan[gi][0]
        plan[gi] = [(s, hb, t, local_rot(14, (gi - 9) & 1, 2) if gi < 13 else local_rot(14, 7 * ((gi - 9) & 1), 14))]
    return plan


def build_stream(cu, tau=1000, gap=1200, ring=16, qsplit=0):
    RING = ring
    wave_t = [0] * NCONS
    ev = []
    for ji, (s, hb, tasks) in enumerate(cu):
        n = NT[s]
        start = min(wave_t[w] for w, _ in tasks)
        ev.append((start - 2, ji, 0, ('K', ji, 0)))
        for x, (w, qb) in enumerate(tasks):
            dl = max(start, wave_t[w] - 0) - 1
            if qsplit and dl < 0 and w >= 4:
                dl = tau // 2 + 1
            ev.append((dl, ji, 1 + x, ('Q', ji, x)))
        for t in range(n):
            if t > 0:
                ev.append((start + t * tau - tau // 2, ji, 0, ('K', ji, t)))
            ev.append((start + t * tau + (0 if t == 0 else tau // 4), ji, 50, ('V', ji, t)))
        for w, _ in tasks:
            wave_t[w] = max(wave_t[w], start) + n * tau + gap
    ev.sort(key=lambda e: (e[0] if e[0] % tau not in (tau - 1, tau - 2) else e[0] - e[0] % tau + tau - 2, e[1], e[2]))
    idx = {e[3]: i for i, e in enumerate(ev)}
    items = []
    for e in ev:
        ty, ji, x = e[3]
        s, hb, tasks = cu[ji]
        blk = tasks[x][1] if ty == 'Q' else x
        row0 = CU[s] + 32 * blk
        items.append((ty, row0, hb, min(32, CU[s + 1] - row0)))
    tl = []
    hdr = [[] for _ in range(NCONS)]
    for ji, (s, hb, tasks) in enumerate(cu):
        n = NT[s]
        tls = len(tl)
        for t in range(n):
            tl.append((idx[('K', ji, t + 1)] if t + 1 < n else 0, idx[('V', ji, t)]))
            assert idx[('K', ji, t)] < idx[('V', ji, t)]
            if t + 1 < n:
                assert idx[('V', ji, t)] < idx[('K', ji, t + 1)]
        for x, (w, qb) in enumerate(tasks):
            row0 = CU[s] + 32 * qb
            hdr[w].append(dict(row0=row0, hb=hb, nvq=min(32, CU[s + 1] - row0), n=n, qitem=idx[('Q', ji, x)],
                               k0=idx[('K', ji, 0)], tls=tls, nvl=L[s] - 32 * (n - 1)))
    for w in range(NCONS):
        last_needed = -1
        for h in hdr[w]:
            prog = min(h['qitem'], h['k0'])
            assert prog > last_needed, (prog, last_needed)
            assert max(h['qitem'], h['k0']) - prog <= RING - 1
            for t in range(h['n']):
                kn, vn = tl[h['tls'] + t]
                assert kn - prog <= RING - 1, (kn, prog)
                prog = vn
                last_needed = vn
            last_needed = max(last_needed, h['qitem'])
    assert len(items) <= 63 and len(tl) <= 64 and all(len(h) <= 3 for h in hdr), (len(items), len(tl))
    return items, tl, hdr


def h2_plan():
    plan = []
    W = list(range(8))

    def job(p, blocks, waves):
        assert len(blocks) == len(waves)
        return (p[0], p[1], list(zip(waves, blocks)))
    p14, p12, p11, p10, p8, p7, p6, p4 = (pairs_with(n) for n in (14, 12, 11, 10, 8, 7, 6, 4))
    R = lambda a, b: list(range(a, b))
    for i in range(4):
        plan.append([job(p8[i], R(0, 8), W), job(p6[i], R(0, 6), W[:6])])
    for i in range(3):
        plan.append([job(p7[2 * i], R(0, 7), W[:7]), job(p7[2 * i + 1], R(0, 7), W[:7])])
    for i in range(2):
        plan.append([job(p10[i], R(0, 8), W), job(p4[i], R(0, 4), W[:4])])
    for p in p14:
        plan.append([job(p, R(0, 7), W[:7])])
        plan.append([job(p, R(7, 14), W[:7])])
    for i in range(4):
        plan.append([job(p11[i], R(8, 11), [0, 1, 2]), job(p10[2 + i // 2], R(5 * (i % 2), 5 * (i % 2) + 5), [3, 4, 5, 6, 7])])
    for i in range(2):
        plan.append([job(p12[i], R(8, 12), W[:4]), job(p10[i], R(8, 10), [4, 5])])
    plan.append([job(p11[4], R(8, 11), [0, 1, 2]), job(p11[5], R(8, 11), [3, 4, 5])])
    for p in p12:
        plan.append([job(p, R(0, 8), W)])
    for p in p11:
        plan.append([job(p, R(0, 8), W)])
    assert len(plan) == 32, len(plan)
    return plan


def stream_from_order(cu, order, ring):
    idx = {k: i for i, k in enumerate(order)}
    items = []
    for ty, ji, x in order:
        s, hb, tasks = cu[ji][:3]
        blk = tasks[x][1] if ty == 'Q' else perm_of(cu[ji])[x]
        row0 = CU[s] + 32 * blk
        items.append((ty, row0, hb, CU[s + 1]))
    hdr = [[] for _ in range(NCONS)]
    for ji, job in enumerate(cu):
        s, hb, tasks = job[:3]
        n = NT[s]
        mpos = perm_of(job).index(n - 1)
        tl = []
        for t in range(n):
            tl.append((idx[('K', ji, t + 1)] if t + 1 < n else 0, idx[('V', ji, t)]))
            assert idx[('K', ji, t)] < idx[('V', ji, t)]
            if t + 1 < n:
                assert idx[('V', ji, t)] < idx[('K', ji, t + 1)]
        for x, (w, qb) in enumerate(tasks):
            row0 = CU[s] + 32 * qb
            hdr[w].append(dict(row0=row0, hb=hb, nvq=min(32, CU[s + 1] - row0), n=n, qitem=idx[('Q', ji, x)],
                               k0=idx[('K', ji, 0)], tl=tl, nvl=L[s] - 32 * (n - 1), mpos=mpos))
    for w in range(NCONS):
        last_needed = -1
        for h in hdr[w]:
            prog = min(h['qitem'], h['k0'])
            assert prog > last_needed, (prog, last_needed)
            assert max(h['qitem'], h['k0']) - prog <= ring - 1
            for kn, vn in h['tl']:
                assert max(kn, vn) - prog <= ring - 1, (kn, prog)
                prog = vn
                last_needed = vn
            last_needed = max(last_needed, h['qitem'])
    return items, hdr


if __name__ == '__main__':
    plan = hand_plan()
    check_plan(plan)
    for i, cu in enumerate(plan):
        items, tl, hdr = build_stream(cu)
        load = [0] * 4
        for s, hb, tasks in cu:
            for w, qb in tasks:
                load[w % 4] += NT[s]
        print(i, [(NT[s], len(t)) for s, hb, t in cu], 'items', len(items), 'load', load)
        print('   ', ' '.join(f'{ty}{(r0)}' for ty, r0, hb, nv in items[:26]))
```

```python
import sys, os, argparse, struct, math
sys.path.insert(0, os.path.dirname(os.path.abspath(__file__)))
import plan as PL
import sim

NAME = 'standalone__varlen_attn_packed__ragged_kernel'
SLOT = 8704
KST, VST = 1056, 1088
GSTRIDE = 2560


def f2u(x):
    return struct.unpack('<I', struct.pack('<f', x))[0]


class Gen:
    def __init__(self, o):
        self.o = o
        self.L = []
        self.idx = 's8'
        self.m0save = 's9'

    def e(self, s):
        if s is None:
            return
        if isinstance(s, (list, tuple)):
            for x in s:
                self.e(x)
            return
        self.L.append('    ' + s)

    def lab(self, s):
        self.L.append(s + ':')

    def many(self, txt):
        for l in txt.strip().split('\n'):
            l = l.strip()
            if not l or l == 'None':
                continue
            if l.endswith(':'):
                self.L.append(l)
            else:
                self.e(l)

    def stamp(self, real=False, force=False):
        if not self.o.stamps or (self.o.mini and not force):
            return
        self.e('s_memrealtime s[34:35]' if real else 's_memtime s[34:35]')
        self.e('s_waitcnt lgkmcnt(0)')
        self.stampval('s34')

    def stampval(self, s):
        if not self.o.stamps:
            return
        if self.m0save:
            self.e(f's_mov_b32 {self.m0save}, m0')
        self.e(f's_mov_b32 m0, {self.idx}')
        self.e(f's_add_u32 {self.idx}, {self.idx}, 1')
        self.e(f'v_writelane_b32 v167, {s}, m0')
        if self.m0save:
            self.e(f's_mov_b32 m0, {self.m0save}')
            self.e('s_nop 0')

    def stamp_out(self):
        if self.o.probe:
            self.np = getattr(self, 'np', 0) + 1
            self.many(f'''
                s_waitcnt vmcnt(0)
                s_mov_b32 s3, 0x100000
                s_add_u32 s100, s100, {self.o.probe}
            PRB{self.np}:
                s_memrealtime s[34:35]
                s_waitcnt lgkmcnt(0)
                s_sub_u32 s3, s3, 1
                s_cbranch_scc1 PRBX{self.np}
                s_sub_u32 s35, s34, s100
                s_cmp_lt_i32 s35, 0
                s_cbranch_scc1 PRB{self.np}
            PRBX{self.np}:
            ''')
        if not self.o.stamps:
            return
        self.e(f's_mov_b32 {self.idx}, 62')
        self.stamp(force=True)
        self.stamp(real=True, force=True)
        self.many(f'''
            s_load_dwordx2 s[34:35], s[0:1], 48
            s_mul_i32 s3, s2, 12
            s_add_u32 s3, s3, s14
            s_lshl_b32 s3, s3, 8
            v_mbcnt_lo_u32_b32 v1, -1, 0
            v_mbcnt_hi_u32_b32 v1, -1, v1
            v_lshlrev_b32 v1, 2, v1
            v_add_u32 v1, s3, v1
            s_waitcnt lgkmcnt(0)
            global_store_dword v1, v167, s[34:35]
        ''')


O, Q, S, P, POOL = 0, 64, 96, 112, 120
vKb, vVb, vK, vV, vL, vNM, vLT, vT = 152, 153, 154, 155, 156, 157, 158, 159
FL = 160
vFA, vPA, vSW = 164, 165, 166
sC, sNC, sThr, sP, sSpin, sRem, sMaskAt, sFirst = 's16', 's17', 's18', 's19', 's20', 's21', 's22', 's23'
sE0, sE1, sE0p = 's24', 's25', 's26'
H = 28
TB = 36


def r(a, n):
    return f'v[{a}:{a + n - 1}]'


def pool(i):
    return r(POOL + 4 * i, 4)


def qk(i, c0=False):
    c = '0' if c0 else r(S, 16)
    return f'v_mfma_f32_32x32x16_bf16 {r(S, 16)}, {pool(i)}, {r(Q + 4 * i, 4)}, {c}'


def pv(slot, b, j):
    return f'v_mfma_f32_32x32x16_bf16 {r(O + 16 * b, 16)}, {pool(slot)}, {r(P + 4 * j, 4)}, {r(O + 16 * b, 16)}'


def kread(s, addr=vK):
    return f'ds_read_b128 {pool(s)}, v{addr} offset:{32 * s}'


def vread(slot, b, j):
    return [f'ds_read_b64_tr_b16 {r(POOL + 4 * slot + 2 * eh, 2)}, v{vV} offset:{(2 * j + eh) * 256 + 64 * b}'
            for eh in (0, 1)]


def F(a, b):
    return [f'v_fma_f32 v{S + i}, v{S + i}, {sC}, v{vNM}' for i in range(a, b)]


def E(a, b):
    return [f'v_exp_f32 v{S + i}, v{S + i}' for i in range(a, b)]


def A(a, b):
    return [f'v_add_f32 v{vLT}, v{S}, v{S + 1}' if i == 1 else f'v_add_f32 v{vLT}, v{vLT}, v{S + i}'
            for i in range(max(a, 1), b)]


def C(a, b):
    return [f'v_cvt_pk_bf16_f32 v{P + k}, v{S + 2 * k}, v{S + 2 * k + 1}' for k in range(a, b)]


def addr(dst, s, base):
    return f'v_mad_u32_u24 v{dst}, {s}, 1, v{base}'


def pub(g, a, val):
    if g.o.execpub:
        return ['s_mov_b64 exec, 1', f'ds_write_b32 v{a}, v{val}', 's_mov_b64 exec, -1']
    return [f'ds_write_b32 v{a}, v{val}']


def poll(g, tag, need):
    g.many(f'''
        s_cmp_gt_u32 {sP}, {need}
        s_cbranch_scc1 POLLOK_{tag}
    POLL_{tag}:
        ds_read_b128 {r(FL, 4)}, v{vFA}
        s_waitcnt lgkmcnt(0)
        v_min3_u32 v{FL}, v{FL}, v{FL + 1}, v{FL + 2}
        v_min_u32 v{FL}, v{FL}, v{FL + 3}
        s_sub_u32 {sSpin}, {sSpin}, 1
        s_cbranch_scc1 END
        v_readfirstlane_b32 {sP}, v{FL}
        s_cmp_gt_u32 {sP}, {need}
        s_cbranch_scc1 POLLOK_{tag}
        s_sleep {g.o.csleep}
        s_branch POLL_{tag}
    POLLOK_{tag}:
    ''')


def finewaits(seq, step):
    q = ['V0', 'V0', 'V1', 'V1', 'W', 'V2', 'V2', 'V3', 'V3', 'V4', 'V4', 'V5', 'V5', 'V6', 'V6', 'FL', 'V7', 'V7']
    out = []
    k = 0
    for x in seq:
        if x.startswith('s_waitcnt lgkmcnt'):
            continue
        if x.startswith('v_mfma'):
            if k % step == 0:
                need = 'V%d' % (k + step - 1)
                last = max(i for i, n in enumerate(q) if n == need)
                out.append(f's_waitcnt lgkmcnt({min(15, len(q) - 1 - last)})')
            k += 1
        if x.startswith('ds_read'):
            q.append('K')
        out.append(x)
    return out


def gen_loader(g, lay):
    o = g.o
    g.idx, g.m0save = 's32', None
    g.lab('LOADER')
    g.many(f'''
        s_setprio {o.lprio}
        s_and_b32 s20, s14, 1
        s_lshr_b32 s3, s14, 1
        s_lshl_b32 s23, s20, 24
        v_mov_b32 v2, s23
        v_lshrrev_b32 v5, 4, v0
        ds_write_b32 v3, v2
        v_mov_b32 v4, {lay['PROGA']}
        v_and_b32 v6, 15, v0
        v_lshrrev_b32 v7, 5, v0
        v_xor_b32 v7, v7, v6
        v_lshlrev_b32 v5, 12, v5
        s_mul_i32 s30, s3, {4 * KST}
        s_mul_i32 s31, s3, {4 * VST}
        s_lshl_b32 s3, s3, 16
        v_add_u32 v5, s3, v5
        v_lshl_add_u32 v8, v7, 4, v5
        v_lshl_add_u32 v12, v6, 4, v5
        v_add_u32 v9, {16384 - KST}, v8
        v_add_u32 v13, {16384 - VST}, v12
        v_add_u32 v10, {2 * (16384 - KST)}, v8
        v_add_u32 v14, {2 * (16384 - VST)}, v12
        v_add_u32 v11, {3 * (16384 - KST)}, v8
        v_add_u32 v15, {3 * (16384 - VST)}, v12
        s_mov_b32 s19, 0x00020000
        s_mov_b32 s22, 0
        s_mov_b32 s26, {1000 if o.m1 else lay['RING']}
        s_mov_b32 s27, 0x40000
        s_mul_i32 s28, s20, {SLOT}
        s_mov_b32 s29, 1
        s_waitcnt lgkmcnt(0)
    ''')
    g.stamp()
    if o.m3 == 1:
        g.e('v_mov_b32 v2, -1')
        g.e('ds_write_b32 v3, v2')
        g.e('s_waitcnt lgkmcnt(0)')
        g.e('s_barrier')
        g.e('s_branch L_END')
    g.many(f'''
        s_mov_b32 m0, 0
        s_add_u32 s4, s4, s15
        s_addc_u32 s5, s5, 0
        s_add_u32 s6, s6, s15
        s_addc_u32 s7, s7, 0
        s_add_u32 s8, s8, s15
        s_addc_u32 s9, s9, 0
        s_mov_b32 s11, 0x00020000
    ''')
    if o.probe2:
        g.many(f'''
        s_mov_b32 s33, 0
        s_cmp_ge_u32 s2, {o.p1max * 8}
        s_cbranch_scc1 P1X
    P1:
        s_mov_b32 m0, s33
        s_nop 0
        s_movrels_b64 s[24:25], s[{TB}:{TB + 1}]
        s_bfe_u32 s12, s25, 0x20002
        s_cmp_eq_u32 s12, 0
        s_cbranch_scc1 P1X
        {'s_lshr_b32 s3, s25, 3' if o.probe3 else None}
        {'s_add_u32 s3, s3, s15' if o.probe3 else None}
        {'s_and_b32 s3, s3, 0xe00' if o.probe3 else None}
        {'s_sub_u32 s3, s3, s15' if o.probe3 else None}
        {'s_add_u32 s24, s24, s3' if o.probe3 else None}
        s_bitcmp1_b32 s25, 0
        s_cbranch_scc1 P1V
        s_add_u32 m0, s30, {lay['STG']}
        s_bitcmp1_b32 s25, 1
        s_cselect_b64 s[16:17], s[6:7], s[4:5]
        s_mov_b32 s18, s25
        buffer_load_dwordx4 v8, s[16:19], s24 offen lds
        buffer_load_dwordx4 v9, s[16:19], s24 offen offset:{KST} lds
        buffer_load_dwordx4 v10, s[16:19], s24 offen offset:{2 * KST} lds
        buffer_load_dwordx4 v11, s[16:19], s24 offen offset:{3 * KST} lds
        s_branch P1D
    P1V:
        s_add_u32 m0, s31, {lay['STG']}
        s_mov_b32 s10, s25
        buffer_load_dwordx4 v12, s[8:11], s24 offen lds
        buffer_load_dwordx4 v13, s[8:11], s24 offen offset:{VST} lds
        buffer_load_dwordx4 v14, s[8:11], s24 offen offset:{2 * VST} lds
        buffer_load_dwordx4 v15, s[8:11], s24 offen offset:{3 * VST} lds
    P1D:
        s_add_u32 s33, s33, 2
        s_waitcnt vmcnt({o.probe2})
        ''')
        g.stamp(force=True)
        g.many(f'''
        s_branch P1
    P1X:
        s_waitcnt vmcnt(0)
        ''')
        g.stamp(force=True)
        if o.stamps:
            g.many('''
        s_mov_b32 s3, 0x10000
    P1W:
        s_sleep 8
        s_memtime s[34:35]
        s_waitcnt lgkmcnt(0)
        s_sub_u32 s3, s3, 1
        s_cbranch_scc1 P1WX
        s_sub_u32 s34, s34, s100
        s_cmp_lt_u32 s34, 32000
        s_cbranch_scc1 P1W
    P1WX:
            ''')
        g.many(f'''
        s_memrealtime s[34:35]
        s_waitcnt lgkmcnt(0)
        s_sub_u32 s34, s34, s100
        s_lshl_b32 s34, s34, 2
        s_mov_b32 m0, 0
        s_add_u32 s100, s100, s34
        s_nop 1
        ''')
    g.many(f'''
    L_NEXT:
        s_movrels_b64 s[24:25], s[{TB}:{TB + 1}]
        s_bfe_u32 s12, s25, 0x20002
    L_CHK:
        s_cmp_ge_u32 s22, s12
        s_cbranch_scc1 L_WAIT
        s_cmp_lt_u32 s20, s26
        s_cbranch_scc0 L_POLL
    L_ISSUE:
        s_bitcmp1_b32 s25, 0
        s_cbranch_scc1 L_V
        s_add_u32 m0, s28, s30
        s_bitcmp1_b32 s25, 1
        s_cselect_b64 s[16:17], s[6:7], s[4:5]
        s_mov_b32 s18, s25
        {'s_bitcmp1_b32 s25, 4' if o.nt else None}
        {'s_cbranch_scc1 L_KN' if o.nt else None}
        buffer_load_dwordx4 v8, s[16:19], s24 offen lds
        buffer_load_dwordx4 v9, s[16:19], s24 offen offset:{KST} lds
        buffer_load_dwordx4 v10, s[16:19], s24 offen offset:{2 * KST} lds
        buffer_load_dwordx4 v11, s[16:19], s24 offen offset:{3 * KST} lds
        s_branch L_DONE
    L_KN:
        buffer_load_dwordx4 v8, s[16:19], s24 offen nt lds
        buffer_load_dwordx4 v9, s[16:19], s24 offen offset:{KST} nt lds
        buffer_load_dwordx4 v10, s[16:19], s24 offen offset:{2 * KST} nt lds
        buffer_load_dwordx4 v11, s[16:19], s24 offen offset:{3 * KST} nt lds
        s_branch L_DONE
    L_VN:
        buffer_load_dwordx4 v12, s[8:11], s24 offen nt lds
        buffer_load_dwordx4 v13, s[8:11], s24 offen offset:{VST} nt lds
        buffer_load_dwordx4 v14, s[8:11], s24 offen offset:{2 * VST} nt lds
        buffer_load_dwordx4 v15, s[8:11], s24 offen offset:{3 * VST} nt lds
        s_branch L_DONE
    L_V:
        s_add_u32 m0, s28, s31
        s_mov_b32 s10, s25
        {'s_bitcmp1_b32 s25, 4' if o.nt else None}
        {'s_cbranch_scc1 L_VN' if o.nt else None}
        buffer_load_dwordx4 v12, s[8:11], s24 offen lds
        buffer_load_dwordx4 v13, s[8:11], s24 offen offset:{VST} lds
        buffer_load_dwordx4 v14, s[8:11], s24 offen offset:{2 * VST} lds
        buffer_load_dwordx4 v15, s[8:11], s24 offen offset:{3 * VST} lds
    L_DONE:
        s_add_u32 s20, s20, 2
        s_add_u32 s28, s28, {2 * SLOT}
        s_and_b32 m0, s20, -2
        s_sub_u32 s3, s28, {lay['RINGB']}
        s_cselect_b32 s28, s28, s3
        s_add_u32 s22, s22, 1
        s_branch L_NEXT
    L_POLL:
        {'s_waitcnt vmcnt(0)' if o.m3 == 2 else None}
        {'v_mov_b32 v2, -1' if o.m3 == 2 else None}
        {'ds_write_b32 v3, v2' if o.m3 == 2 else None}
        {'s_branch L_END' if o.m3 == 2 else None}
        ds_read_b128 v[24:27], v4
        ds_read_b128 v[28:31], v4 offset:16
        s_waitcnt lgkmcnt(0)
        v_min3_u32 v24, v24, v25, v26
        v_min3_u32 v27, v27, v28, v29
        v_min3_u32 v24, v24, v30, v31
        v_min_u32 v24, v24, v27
        s_nop 0
        v_readfirstlane_b32 s26, v24
        s_lshr_b32 s26, s26, 24
        s_add_u32 s26, s26, {lay['RING']}
        s_cmp_lt_u32 s20, s26
        s_cbranch_scc1 L_ISSUE
        s_cmp_gt_u32 s22, 0
        s_cbranch_scc1 L_WAIT
        s_sub_u32 s27, s27, 1
        s_cbranch_scc1 END
        s_sleep {o.lsleep}
        s_branch L_POLL
    L_FIRST:
        s_mov_b32 s29, 0
    ''')
    g.stamp()
    g.many(f'''
        s_barrier
    L_WAIT:
        s_cmp_lg_u32 s29, 0
        s_cbranch_scc1 L_FIRST
        s_cmp_eq_u32 s22, 3
        s_cbranch_scc0 L_W2
        s_waitcnt vmcnt(8)
    L_PUB:
        s_add_u32 s23, s23, 0x2000000
        v_mov_b32 v2, s23
        s_sub_u32 s22, s22, 1
    ''')
    g.e(pub(g, 3, 2))
    if o.lstamp:
        g.stamp()
    g.many(f'''
        s_branch L_CHK
    L_W2:
        s_cmp_eq_u32 s22, 2
        s_cbranch_scc0 L_W1
        s_waitcnt vmcnt(4)
        s_branch L_PUB
    L_W1:
        s_cmp_eq_u32 s22, 0
        s_cbranch_scc1 L_END
        s_waitcnt vmcnt(0)
        s_branch L_PUB
    L_END:
    ''')
    g.stamp_out()
    g.e('s_endpgm')


def gen_consumer(g, lay):
    o = g.o
    c = 128 ** -0.5 * math.log2(math.e)
    st = o.stpol
    g.idx, g.m0save = 's8', 's9'
    pr = o.prio
    g.lab('CONSUMER')
    g.many(f'''
        v_mov_b32 v{vFA}, {lay['FULLA']}
        v_mov_b32 v{vPA}, v3
        v_and_b32 v1, 7, v0
        v_mul_u32_u24 v{vKb}, {KST}, v1
        v_bfe_u32 v2, v0, 3, 2
        v_lshl_add_u32 v{vKb}, v2, 8, v{vKb}
        v_lshrrev_b32 v3, 5, v0
        v_bfe_u32 v4, v0, 4, 1
        v_xor_b32 v5, v3, v4
        v_lshl_add_u32 v{vKb}, v5, 4, v{vKb}
        v_bfe_u32 v5, v0, 2, 2
        v_lshl_add_u32 v5, v3, 2, v5
        v_mul_u32_u24 v{vVb}, {VST}, v5
        v_lshl_add_u32 v{vVb}, v4, 5, v{vVb}
        v_and_b32 v5, 1, v0
        v_lshl_add_u32 v{vVb}, v5, 4, v{vVb}
        v_bfe_u32 v5, v0, 1, 1
        v_lshl_add_u32 v{vVb}, v5, 3, v{vVb}
        v_bfe_u32 v5, v0, 2, 1
        v_lshl_add_u32 v2, v5, 4, v2
        v_and_b32 v5, 3, v0
        v_lshl_add_u32 v2, v5, 2, v2
        s_lshl_b32 s3, s14, 12
        s_add_u32 s3, s3, {lay['STG'] - 4 * 4096}
        v_xor_b32 v1, v1, v3
        v_lshlrev_b32 v1, 4, v1
        v_lshl_add_u32 v2, v2, 7, v1
        v_add_u32 v{vSW}, s3, v2
        s_mov_b32 s13, s3
        s_mov_b32 {sC}, {hex(f2u(c))}
        s_mov_b32 {sNC}, {hex(f2u(-c))}
        s_mov_b32 {sThr}, {hex(f2u(2.0 ** 24))}
        s_mov_b32 {sP}, 0
        s_mov_b32 {sSpin}, 0x40000
        s_mov_b32 m0, 0
        s_waitcnt lgkmcnt(0)
        v_mov_b32 v{vT}, s{TB + 5}
        s_mov_b32 s7, 0x00020000
        s_add_u32 s10, s10, s15
        s_addc_u32 s11, s11, 0
    ''')
    g.e(pub(g, vPA, vT))
    g.many('''
        s_waitcnt lgkmcnt(0)
        s_barrier
    ''')
    if o.stamps:
        g.e('s_mov_b32 s8, 5')
        g.e('s_mov_b32 s12, 0')
    g.stamp()
    g.lab('TASK')
    g.many(f'''
        s_movrels_b64 s[{H}:{H + 1}], s[{TB}:{TB + 1}]
        s_movrels_b64 s[{H + 2}:{H + 3}], s[{TB + 2}:{TB + 3}]
        s_movrels_b64 s[{H + 4}:{H + 5}], s[{TB + 4}:{TB + 5}]
        s_movrels_b64 s[24:25], s[{TB + 6}:{TB + 7}]
        s_add_u32 m0, m0, 8
        s_cmp_eq_u32 s{H + 1}, 0
        s_cbranch_scc1 C_END
        v_mov_b32 v{P}, 0
        v_mov_b32 v{P + 1}, 0
        v_mov_b32 v{P + 2}, 0
        v_mov_b32 v{P + 3}, 0
        v_mov_b32 v{vL}, 0
        v_mov_b32 v{vNM}, 0x7f800000
    ''')
    for b in range(4):
        g.e(f'v_mfma_f32_32x32x16_bf16 {r(O + 16 * b, 16)}, {r(P, 4)}, {r(P, 4)}, 0')
    g.many(f'''
        s_lshr_b32 {sRem}, s{H + 4}, 24
        s_and_b32 {sMaskAt}, s{H + 5}, 0xff
        s_mov_b32 {sE0p}, s{H + 4}
        {addr(vV, f's{H + 3}', vKb)}
        s_mov_b32 {sFirst}, 1
    ''')
    poll(g, 'T', f's{H + 3}')
    g.stamp()
    for s in range(8):
        g.e(f'ds_read_b128 {r(Q + 4 * s, 4)}, v{vV} offset:{32 * s}')
    g.lab('FRESH')
    g.e(addr(vK, sE0p, vKb))
    g.e('s_waitcnt lgkmcnt(7)')
    for s in range(8):
        g.e(kread(s))
    g.many(f'''
        s_cmp_eq_u32 {sRem}, {sMaskAt}
        s_cbranch_scc1 FMASK
        s_waitcnt lgkmcnt(7)
        {qk(0, True)}
    F_BACK:
        ds_read_b128 {r(FL, 4)}, v{vFA}
    ''')
    for s in range(1, 8):
        g.e(f's_waitcnt lgkmcnt({8 - s})')
        g.e(qk(s))
    t0, t1 = FL, FL + 1
    g.many(f'''
        s_waitcnt lgkmcnt(0)
        v_min3_u32 v{FL}, v{FL}, v{FL + 1}, v{FL + 2}
        v_mov_b32 v{vT}, {sE1}
        v_min_u32 v{FL}, v{FL}, v{FL + 3}
        ds_write_b32 v{vPA}, v{vT}
        {addr(vK, sE0, vKb)}
        v_readfirstlane_b32 {sP}, v{FL}
        {addr(vV, sE1, vVb)}
        s_cmp_gt_u32 {sP}, {sE0}
        s_cbranch_scc0 F_NOK
    ''')
    for s in range(8):
        g.e(kread(s))
    g.many(f'''
    F_NOK:
        s_nop 3
        v_max3_f32 v{t0}, v{S}, v{S + 1}, v{S + 2}
        v_max3_f32 v{t1}, v{S + 3}, v{S + 4}, v{S + 5}
        v_max3_f32 v{t0}, v{t0}, v{S + 6}, v{S + 7}
        v_max3_f32 v{t1}, v{t1}, v{S + 8}, v{S + 9}
        v_max3_f32 v{t0}, v{t0}, v{S + 10}, v{S + 11}
        v_max3_f32 v{t1}, v{t1}, v{S + 12}, v{S + 13}
        v_max3_f32 v{t0}, v{t0}, v{S + 14}, v{S + 15}
        v_max_f32 v{t0}, v{t0}, v{t1}
        v_mov_b32 v{t1}, v{t0}
        s_nop 1
        v_permlane32_swap_b32 v{t0}, v{t1}
        v_max_f32 v{t0}, v{t0}, v{t1}
        v_mul_f32 v{t0}, {sNC}, v{t0}
        v_min_f32 v{t0}, v{t0}, v{vNM}
        s_cmp_eq_u32 {sFirst}, 0
        s_cbranch_scc1 RESCALE
    R_BACK:
        v_mov_b32 v{vNM}, v{t0}
        s_mov_b32 {sFirst}, 0
    ''')
    g.e(F(0, 16) + E(0, 16) + A(1, 16) + C(0, 8))
    g.stamp()
    g.e(f's_cmp_gt_u32 {sP}, {sE0}')
    g.e('s_cbranch_scc1 CONT')
    g.lab('LATE')
    if o.stamps and not o.mini:
        g.e('s_memtime s[100:101]')
        g.e('s_waitcnt lgkmcnt(0)')
    poll(g, 'L', sE0)
    if o.stamps and not o.mini:
        g.e('s_memtime s[34:35]')
        g.e('s_waitcnt lgkmcnt(0)')
        g.e('s_sub_u32 s34, s34, s100')
        g.e('s_add_u32 s12, s12, s34')
    for s in range(8):
        g.e(kread(s))
    g.e('s_branch CONT')
    g.L.append('.p2align 4') if o.align else None
    g.lab('LOOP')
    loop_start = len(g.L)
    g.e('s_waitcnt lgkmcnt(0)')
    if pr:
        g.e(f's_setprio {pr[0]}')
    g.e(qk(0, True))
    g.lab('L_BACK')
    if pr and not o.pl:
        g.e(f's_setprio {pr[1]}')
    mins = [f'v_min3_u32 v{FL}, v{FL}, v{FL + 1}, v{FL + 2}', f'v_min_u32 v{FL}, v{FL}, v{FL + 3}']
    rfl = [f'v_readfirstlane_b32 {sP}, v{FL}']
    cmpv = [f'v_cmp_nge_f32 vcc, {sThr}, v{vLT}']
    lo = [f's_setprio {pr[2]}'] if pr else []
    flr = f'ds_read_b128 {r(FL, 4)}, v{vFA}'
    if o.sched <= 3:
        gapA = {0: [f'v_mov_b32 v{vT}, {sE1}'],
                1: pub(g, vPA, vT) + [f'v_add_f32 v{vL}, v{vL}, v{vLT}'],
                2: [f's_mov_b32 {sE0p}, {sE0}', f's_movrels_b64 s[24:25], s[{TB}:{TB + 1}]', 's_add_u32 m0, m0, 2'],
                7: [flr, addr(vK, sE0, vKb), addr(vV, sE1, vVb)]}
    else:
        gapA = {0: [f'v_mov_b32 v{vT}, {sE1}'],
                1: pub(g, vPA, vT),
                2: [f'v_add_f32 v{vL}, v{vL}, v{vLT}', f's_mov_b32 {sE0p}, {sE0}'],
                3: [f's_movrels_b64 s[24:25], s[{TB}:{TB + 1}]'],
                4: ['s_add_u32 m0, m0, 2'],
                5: [addr(vK, sE0, vKb)],
                6: [flr]}
    for m in range(8):
        if m > 0:
            g.e(qk(m))
        g.e(vread(m, m % 4, m // 4))
        g.e(gapA.get(m))

    def vseg(e0, f0=16):
        out = F(f0, 16)
        acc = [vLT, vT]
        tail = []
        done = e0
        q = []
        adds = []
        for i in range(2, 16):
            adds.append((i, f'v_add_f32 v{acc[i & 1]}, v{S + i - 2}, v{S + i}' if i < 4 else f'v_add_f32 v{acc[i & 1]}, v{acc[i & 1]}, v{S + i}'))
        cv = [(2 * k + 1, C(k, k + 1)[0]) for k in range(8)]
        ai = ci = 0
        for i in range(e0, 16):
            out += E(i, i + 1)
            if ai < len(adds) and adds[ai][0] < i:
                out.append(adds[ai][1]); ai += 1
            if i % 2 and ci < 5 and cv[ci][0] < i:
                out.append(cv[ci][1]); ci += 1
            elif ai < len(adds) and adds[ai][0] < i:
                out.append(adds[ai][1]); ai += 1
        out.append(cv[ci][1]); ci += 1
        out += [a for _, a in adds[ai:]]
        out.append(f'v_add_f32 v{vLT}, v{vLT}, v{vT}')
        out += cmpv + [c_ for _, c_ in cv[ci:]]
        return out
    seq = ['s_waitcnt lgkmcnt(9)', pv(0, 0, 0)]
    if o.sched > 3:
        seq += [addr(vV, sE1, vVb)]
    seq += [pv(1, 1, 0)]
    if o.sched == 1:
        seq += ['s_nop 3'] + F(0, 4) + [pv(2, 2, 0)] + F(4, 8) + [pv(3, 3, 0)]
        seq += [kread(s) for s in range(4)] + ['s_waitcnt lgkmcnt(4)', pv(4, 0, 1), kread(4)]
        seq += F(8, 12) + [pv(5, 1, 1), kread(5)] + F(12, 16) + [pv(6, 2, 1), kread(6)] + mins
        seq += [pv(7, 3, 1), kread(7)] + lo + rfl + E(0, 16) + A(1, 16) + cmpv + C(0, 8)
    elif o.sched in (2, 4, 5):
        seq += [kread(0), kread(1), pv(2, 2, 0), kread(2)] + F(0, 4) + [pv(3, 3, 0), kread(3)] + F(4, 8 if o.sched < 4 else 7)
        seq += ['s_waitcnt lgkmcnt(4)', pv(4, 0, 1), kread(4)]
        if o.sched == 2:
            seq += F(8, 12) + [pv(5, 1, 1), kread(5)] + F(12, 16) + [pv(6, 2, 1), kread(6)] + mins + E(0, 1)
        else:
            seq += F(7, 11) + [pv(5, 1, 1), kread(5)] + F(11, 15) + [pv(6, 2, 1), kread(6)] + F(15, 16) + mins
        seq += [pv(7, 3, 1), kread(7)] + lo + rfl
        if o.sched == 2:
            seq += E(1, 16) + A(1, 16) + cmpv + C(0, 8)
        elif o.sched == 4:
            seq += E(0, 16) + A(1, 16) + cmpv + C(0, 8)
        else:
            seq += vseg(0)
    elif o.sched in (3, 6):
        seq += [kread(0), kread(1), pv(2, 2, 0), kread(2)] + F(0, 4) + [pv(3, 3, 0), kread(3)] + F(4, 6) + E(0, 1)
        seq += ['s_waitcnt lgkmcnt(4)', pv(4, 0, 1), kread(4)]
        seq += F(6, 8) + E(1, 2) + [pv(5, 1, 1), kread(5)] + F(8, 10) + E(2, 3) + [pv(6, 2, 1), kread(6)] + mins + E(3, 4)
        seq += [pv(7, 3, 1), kread(7)] + lo + rfl
        if o.sched == 3:
            seq += F(10, 16) + E(4, 16) + A(1, 16) + cmpv + C(0, 8)
        else:
            seq += vseg(4, 10)
    elif o.sched == 7:
        seq += [kread(0), kread(1), pv(2, 2, 0), kread(2)] + F(0, 3) + [pv(3, 3, 0), kread(3)] + F(3, 5)
        seq += ['s_waitcnt lgkmcnt(4)', pv(4, 0, 1), kread(4)]
        seq += F(5, 8) + [pv(5, 1, 1), kread(5)] + F(8, 11) + [pv(6, 2, 1), kread(6)] + mins
        seq += [pv(7, 3, 1), kread(7)] + lo + rfl + vseg(0, 11)
    if o.klate:
        ks = [x for x in seq if x.startswith('ds_read_b128')]
        seq = [x for x in seq if not x.startswith('ds_read_b128')]
        seq = ['s_waitcnt lgkmcnt(0)' if x == 's_waitcnt lgkmcnt(4)' else x for x in seq]
        i = seq.index(rfl[0]) + 1
        tail = seq[i:]
        seq = seq[:i]
        if o.klate == 1:
            seq += ks + tail
        else:
            for k, x in enumerate(tail):
                if k < 8:
                    seq.append(ks[k])
                seq.append(x)
    if o.fine:
        seq = finewaits(seq, o.fine)
    g.e(seq)
    if o.pl:
        lad = dict((int(a), int(b)) for a, b in (x.split(':') for x in o.pl.split(',')))
        body = g.L[loop_start:]
        del g.L[loop_start:]
        k = 0
        for x in body:
            g.L.append(x)
            if 'v_mfma' in x:
                k += 1
                if k in lad:
                    g.e(f's_setprio {lad[k]}')
    g.many(f'''
        {'s_nop 0' if o.m3 or o.m5 else 's_cbranch_vccnz FRESH'}
        s_cmp_gt_u32 {sP}, {sE0}
        s_cbranch_scc0 LATE
    CONT:
    ''')
    if o.itst:
        g.stamp()
    g.many(f'''
        s_sub_u32 {sRem}, {sRem}, 1
        s_cbranch_scc1 FINAL
        s_cmp_eq_u32 {sRem}, {sMaskAt}
        s_cbranch_scc0 LOOP
        s_mov_b32 s27, 0
    MASK:
        v_mov_b32 v{FL}, s{H + 2}
        s_mov_b32 exec_lo, 0
        v_lshrrev_b32 v{FL}, 16, v{FL}
        s_mov_b32 exec_lo, -1
    ''')
    for i in range(16):
        bit = 4 * (i % 4) + i // 4
        g.e(f'v_bfe_i32 v{S + i}, v{FL}, {bit}, 1')
    for i in range(16):
        g.e(f'v_lshlrev_b32 v{S + i}, 23, v{S + i}')
    g.many(f'''
        s_waitcnt lgkmcnt(0)
        s_cmp_eq_u32 s27, 0
        {qk(0)}
        s_cbranch_scc1 L_BACK
        s_branch F_BACK
    ''')
    g.lab('FINAL')
    g.stamp()
    order = [(b, j) for b in range(4) for j in range(2)]
    g.e('s_waitcnt lgkmcnt(4)')
    for k in range(5):
        g.e(vread(k, *order[k]))
    X = S
    vW = [vSW, X, X + 1, X + 2]
    vR = [X + 4, X + 5, X + 6, X + 7]
    vG = [X + 8, X + 9, X + 10, X + 11]
    ln = X + 12

    def mul(b):
        if o.pk:
            return [f'v_pk_mul_f32 {r(O + 16 * b + i, 2)}, {r(O + 16 * b + i, 2)}, {r(vL, 2)} op_sel_hi:[1,0]' for i in range(0, 16, 2)]
        return [f'v_mul_f32 v{O + 16 * b + i}, v{O + 16 * b + i}, v{vL}' for i in range(16)]

    def blk(b):
        m = mul(b)
        h = len(m) // 2
        out = []
        for gq in range(2):
            d = Q + 8 * b + 4 * gq
            out += m[gq * h:(gq + 1) * h]
            for k in range(4):
                i = O + 16 * b + 8 * gq + 2 * k
                out.append(f'v_cvt_pk_bf16_f32 v{d + k}, v{i}, v{i + 1}')
            out.append(f'ds_write_b128 v{vW[2 * (b & 1) + gq]}, {r(d, 4)}')
        return out

    def rd(rnd):
        return [f'ds_read_b128 {r(O + 32 * rnd + 4 * k, 4)}, v{vR[k]} offset:{1024 * k}' for k in range(4)]

    def stv(rnd, extra):
        out = []
        for k in range(4):
            out.append(f's_waitcnt lgkmcnt({3 - k + extra})')
            out.append(f'buffer_store_dwordx4 {r(O + 32 * rnd + 4 * k, 4)}, v{vG[k]}, s[4:7], 0 offen offset:{128 * rnd}{st}')
        return out
    seq = []
    seq += [f'v_add_f32 v{vL}, v{vL}, v{vLT}', f's_movrels_b32 s3, s{TB + 5}', f's_add_u32 s4, s10, s{H}',
            f'v_mov_b32 v{FL + 1}, v{vL}', f's_addc_u32 s5, s11, 0', f's_mov_b32 s6, s{H + 1}',
            f'v_permlane32_swap_b32 v{vL}, v{FL + 1}', f'v_mov_b32 v{vT}, s3',
            f'v_add_f32 v{vL}, v{vL}, v{FL + 1}',
            f'v_mbcnt_lo_u32_b32 v{ln}, -1, 0', f'v_rcp_f32 v{vL}, v{vL}', f'v_mbcnt_hi_u32_b32 v{ln}, -1, v{ln}']
    if o.eprio:
        seq += [f's_setprio {o.eprio[0]}']
    seq += ['s_waitcnt lgkmcnt(8)', pv(0, *order[0])] + vread(5, *order[5])
    seq += [f'v_lshrrev_b32 v{ln + 1}, 3, v{ln}', f'v_and_b32 v{ln + 2}, 7, v{ln}', f'v_lshrrev_b32 v{ln}, 5, v{ln}']
    seq += ['s_waitcnt lgkmcnt(8)', pv(1, *order[1])] + vread(6, *order[6])
    seq += [f'v_xor_b32 v{ln}, v{ln}, v{ln + 2}', f'v_lshl_add_u32 v{vR[0]}, v{ln + 1}, 7, s13', f'v_xor_b32 v{vW[1]}, 32, v{vSW}']
    seq += ['s_waitcnt lgkmcnt(8)', pv(2, *order[2])] + vread(7, *order[7])
    seq += [f'v_lshl_add_u32 v{vR[0]}, v{ln}, 4, v{vR[0]}', f'v_xor_b32 v{vW[2]}, 64, v{vSW}', f'v_xor_b32 v{vW[3]}, 0x60, v{vSW}']
    b0 = blk(0)
    k = 5
    seq += ['s_waitcnt lgkmcnt(8)', pv(3, *order[3])] + b0[:k]
    nw = lambda x: sum(1 for i in x if i.startswith('ds_write'))
    seq += [f's_waitcnt lgkmcnt({6 + nw(b0[:k])})', pv(4, *order[4])] + b0[k:2 * k]
    seq += [f's_waitcnt lgkmcnt({4 + nw(b0[:2 * k])})', pv(5, *order[5])] + b0[2 * k:3 * k]
    seq += [f's_waitcnt lgkmcnt({2 + nw(b0[:3 * k])})', pv(6, *order[6])] + b0[3 * k:4 * k]
    seq += [f's_waitcnt lgkmcnt({nw(b0[:4 * k])})', pv(7, *order[7])]
    seq += pub(g, vPA, vT)
    if o.eprio:
        seq += [f's_setprio {o.eprio[1]}']
    seq += b0[4 * k:] + blk(1)
    seq += [f'v_xor_b32 v{vR[1]}, 32, v{vR[0]}', f'v_xor_b32 v{vR[2]}, 64, v{vR[0]}', f'v_xor_b32 v{vR[3]}, 0x60, v{vR[0]}']
    seq += rd(0)
    seq += [f'v_lshlrev_b32 v{vG[0]}, 12, v{ln + 1}', f'v_lshl_add_u32 v{vG[0]}, v{ln + 2}, 4, v{vG[0]}',
            f'v_add_u32 v{vG[1]}, 0x8000, v{vG[0]}', f'v_add_u32 v{vG[2]}, 0x10000, v{vG[0]}', f'v_add_u32 v{vG[3]}, 0x18000, v{vG[0]}']
    seq += blk(2)
    seq += stv(0, 2)
    seq += blk(3) + rd(1) + stv(1, 0)
    if o.eprio:
        seq += [f's_setprio {o.eprio[2]}']
    g.e(seq)
    g.stamp()
    g.e('s_branch TASK')
    g.lab('C_END')
    if o.stamps:
        g.e('s_waitcnt vmcnt(0)')
        g.stamp()
        g.stampval('s12')
    g.stamp_out()
    g.lab('END')
    g.e('s_endpgm')
    g.many(f'''
    FMASK:
        s_mov_b32 s27, 1
        s_branch MASK
    RESCALE:
        v_sub_f32 v{t1}, v{t0}, v{vNM}
        v_exp_f32 v{t1}, v{t1}
        s_nop 0
        v_mul_f32 v{vL}, v{vL}, v{t1}
    ''')
    for i in range(64):
        g.e(f'v_mul_f32 v{O + i}, v{O + i}, v{t1}')
    g.e('s_branch R_BACK')


def tables(plan, ring, o):
    words = []
    p = dict(sim.P)
    p['RING'] = ring
    wins = [int(x) for x in o.win.split(',')]
    users = {}
    for cu in plan:
        for j in cu:
            users[(j[0], j[1])] = users.get((j[0], j[1]), 0) + 1
    for gi, cu in enumerate(plan):
        comp = [(PL.NT[j[0]], [w for w, _ in j[2]]) for j in cu]
        if o.order == 'sim':
            m, order = sim.best_order(comp, p, local=1)
        else:
            order = sim.init_order(comp, 1000, 1200, o.qsplit)
        items, hdr = PL.stream_from_order(cu, order, ring)
        w = [0] * (GSTRIDE // 4)
        assert len(items) <= 62
        for i, (ty, row0, hb, end) in enumerate(items):
            win = wins[0]
            if len(wins) > 1 and gi >= wins[2] and i < wins[3]:
                win = wins[1]
            b = 64 * (i & 1) + (i >> 1) * 2
            w[b] = row0 * 4096 + hb * 256
            w[b + 1] = ((end - 1) * 4096 + 512) | (ty == 'V') | ((ty == 'K') << 1) | (win << 2)
            j = cu[order[i][1]]
            if (o.nt >= 1 and ty == 'Q') or (o.nt >= 2 and users[(j[0], j[1])] == 1):
                w[b + 1] |= 16
        sa = lambda it: (it % ring) * SLOT
        for c in range(8):
            s = []
            for h in hdr[c]:
                s += [h['row0'] * 4096 + h['hb'] * 256, h['nvq'] * 4096 - 3840, (0xffffffff << h['nvl']) & 0xffffffff,
                      sa(h['qitem']) | (max(h['qitem'], h['k0']) << 24), sa(h['k0']) | ((h['n'] - 1) << 24),
                      (min(h['qitem'], h['k0']) << 24) | (h['n'] - 1 - h['mpos'] if h['nvl'] < 32 else 255)]
                for kn, vn in h['tl']:
                    s += [sa(kn) | (max(kn, vn) << 24), sa(vn) | (vn << 24)]
            s += [0, 0, 0, 0, 0, 255 << 24]
            assert len(s) <= 62, len(s)
            w[64 * (c + 2):64 * (c + 2) + len(s)] = s
        words += w
    return words


def main():
    ap = argparse.ArgumentParser()
    ap.add_argument('-o', default='standalone__varlen_attn_packed__ragged.s')
    ap.add_argument('--stamps', action='store_true')
    ap.add_argument('--mini', action='store_true')
    ap.add_argument('--probe', type=int, default=0)
    ap.add_argument('--probe2', type=int, default=0)
    ap.add_argument('--probe3', type=int, default=0)
    ap.add_argument('--p1max', type=int, default=32)
    ap.add_argument('--pk', action='store_true')
    ap.add_argument('--eprio', default='')
    ap.add_argument('--win', default='3', help='W or W,Wlow,first group,items')
    ap.add_argument('--order', default='sim')
    ap.add_argument('--lprio', type=int, default=3)
    ap.add_argument('--itst', action='store_true')
    ap.add_argument('--pace', type=int, default=0)
    ap.add_argument('--klate', type=int, default=0)
    ap.add_argument('--pl', default='')
    ap.add_argument('--lstamp', type=int, default=1)
    ap.add_argument('--fine', type=int, default=0)
    ap.add_argument('--m5', type=int, default=0)
    ap.add_argument('--ring', type=int, default=15)
    ap.add_argument('--nt', type=int, default=0, help='1: Q, 2: Q + unshared KV')
    ap.add_argument('--stpol', default='nt')
    ap.add_argument('--m1', type=int, default=0)
    ap.add_argument('--m3', type=int, default=0)
    ap.add_argument('--sched', type=int, default=2)
    ap.add_argument('--prio', default='120')
    ap.add_argument('--lsleep', type=int, default=2)
    ap.add_argument('--csleep', type=int, default=1)
    ap.add_argument('--execpub', action='store_true')
    ap.add_argument('--align', action='store_true')
    ap.add_argument('--qsplit', type=int, default=1)
    ap.add_argument('--plan', default='h2')
    o = ap.parse_args()
    if o.stpol:
        o.stpol = ' ' + o.stpol.replace('_', ' ')
    if o.prio == 'none':
        o.prio = ''
    lay = dict(RING=o.ring, RINGB=o.ring * SLOT)
    lay['STG'] = lay['RINGB']
    lay['FULLA'] = lay['STG'] + 8 * 4096
    lay['PROGA'] = lay['FULLA'] + 16
    lds = lay['FULLA'] + 64
    assert lds <= 163840 and lay['STG'] % 128 == 0
    g = Gen(o)
    ref = open('standalone__varlen_attn_packed__ragged.s.ref').read().split('\n')
    head = [l for l in ref[:12] if l.startswith(';') and '@launch' not in l]
    out = head + [f'; @launch grid=(256,1,1) block=(768,1,1) lds={lds}',
                  '.amdgcn_target "amdgcn-amd-amdhsa--gfx950"', '.text', f'.globl {NAME}', '.p2align 8',
                  f'.type {NAME},@function', f'{NAME}:']
    g.many(f'''
        s_cmp_ge_u32 s2, 256
        s_cbranch_scc1 END
        v_lshrrev_b32 v1, 6, v0
        s_getpc_b64 s[12:13]
    PCREF:
        s_load_dwordx4 s[4:7], s[0:1], 0
        v_readfirstlane_b32 s14, v1
        s_load_dwordx2 s[8:9], s[0:1], 16
        s_lshr_b32 s3, s2, 3
        s_mul_i32 s3, s3, {GSTRIDE}
        s_and_b32 s15, s14, 1
        s_sub_u32 s28, s14, 2
        s_cmp_ge_u32 s14, 4
        s_cselect_b32 s15, s28, s15
        s_lshl_b32 s15, s15, 8
        s_add_u32 s3, s3, s15
        s_add_u32 s3, s3, TABLE-PCREF
        s_add_u32 s12, s12, s3
        s_addc_u32 s13, s13, 0
        s_load_dwordx16 s[36:51], s[12:13], 0
        s_load_dwordx16 s[52:67], s[12:13], 64
        s_load_dwordx16 s[68:83], s[12:13], 128
        s_load_dwordx16 s[84:99], s[12:13], 192
        s_load_dwordx2 s[10:11], s[0:1], 32
        v_lshlrev_b32 v3, 2, v1
        v_add_u32 v3, {lay['FULLA']}, v3
        s_and_b32 s15, s2, 7
        s_lshl_b32 s15, s15, 9
        v_and_b32 v0, 63, v0
    ''')
    if o.probe and not o.stamps:
        g.e('s_memrealtime s[100:101]')
    if o.stamps:
        g.idx, g.m0save = 's32', None
        g.e('s_mov_b32 s32, 0')
        g.e('v_mov_b32 v167, 0')
        g.e('s_memrealtime s[34:35]')
        g.e('s_memtime s[100:101]')
        g.e('s_getreg_b32 s33, hwreg(HW_REG_HW_ID)')
        g.stampval('s33')
        g.e('s_getreg_b32 s33, hwreg(HW_REG_XCC_ID)')
        g.stampval('s33')
        g.e('s_waitcnt lgkmcnt(0)')
        g.stampval('s34')
        g.stampval('s100')
    g.many('''
        s_cmp_ge_u32 s14, 4
        s_cbranch_scc1 CONSUMER
    ''')
    gen_loader(g, lay)
    gen_consumer(g, lay)
    plan = PL.get_plan(o.plan)
    PL.check_plan(plan)
    tw = tables(plan, o.ring, o)
    g.L.append('.p2align 6')
    g.lab('TABLE')
    for i in range(0, len(tw), 8):
        g.e('.long ' + ', '.join(hex(x) for x in tw[i:i + 8]))
    out += g.L
    out += ['.section .rodata,"a"', '.p2align 6', f'.amdhsa_kernel {NAME}', '  .amdhsa_next_free_vgpr 168',
            '  .amdhsa_next_free_sgpr 102', '  .amdhsa_accum_offset 168', '  .amdhsa_group_segment_fixed_size 0',
            '  .amdhsa_kernarg_size 56', '  .amdhsa_user_sgpr_count 2', '  .amdhsa_user_sgpr_kernarg_segment_ptr 1',
            '  .amdhsa_system_sgpr_workgroup_id_x 1', '.end_amdhsa_kernel', '']
    open(o.o, 'w').write('\n'.join(out))


main()
```

```python
import sys, os, argparse, struct, math
sys.path.insert(0, os.path.dirname(os.path.abspath(__file__)))
import plan as PL
import sim

NAME = 'standalone__varlen_attn_packed__ragged_kernel'
SLOT = 8704
KST, VST = 1056, 1088
GSTRIDE = 2560


def f2u(x):
    return struct.unpack('<I', struct.pack('<f', x))[0]


class Gen:
    def __init__(self, o):
        self.o = o
        self.L = []
        self.idx = 's8'
        self.m0save = 's9'

    def e(self, s):
        if s is None:
            return
        if isinstance(s, (list, tuple)):
            for x in s:
                self.e(x)
            return
        self.L.append('    ' + s)

    def lab(self, s):
        self.L.append(s + ':')

    def many(self, txt):
        for l in txt.strip().split('\n'):
            l = l.strip()
            if not l or l == 'None':
                continue
            if l.endswith(':'):
                self.L.append(l)
            else:
                self.e(l)

    def stamp(self, real=False, force=False):
        if not self.o.stamps or (self.o.mini and not force):
            return
        self.e('s_memrealtime s[34:35]' if real else 's_memtime s[34:35]')
        self.e('s_waitcnt lgkmcnt(0)')
        self.stampval('s34')

    def stampval(self, s):
        if not self.o.stamps:
            return
        if self.m0save:
            self.e(f's_mov_b32 {self.m0save}, m0')
        self.e(f's_mov_b32 m0, {self.idx}')
        self.e(f's_add_u32 {self.idx}, {self.idx}, 1')
        self.e(f'v_writelane_b32 v167, {s}, m0')
        if self.m0save:
            self.e(f's_mov_b32 m0, {self.m0save}')
            self.e('s_nop 0')

    def stamp_out(self):
        if self.o.probe:
            self.np = getattr(self, 'np', 0) + 1
            self.many(f'''
                s_waitcnt vmcnt(0)
                s_mov_b32 s3, 0x100000
                s_add_u32 s100, s100, {self.o.probe}
            PRB{self.np}:
                s_memrealtime s[34:35]
                s_waitcnt lgkmcnt(0)
                s_sub_u32 s3, s3, 1
                s_cbranch_scc1 PRBX{self.np}
                s_sub_u32 s35, s34, s100
                s_cmp_lt_i32 s35, 0
                s_cbranch_scc1 PRB{self.np}
            PRBX{self.np}:
            ''')
        if not self.o.stamps:
            return
        self.e(f's_mov_b32 {self.idx}, 62')
        self.stamp(force=True)
        self.stamp(real=True, force=True)
        self.many(f'''
            s_load_dwordx2 s[34:35], s[0:1], 48
            s_mul_i32 s3, s2, 12
            s_add_u32 s3, s3, s14
            s_lshl_b32 s3, s3, 8
            v_mbcnt_lo_u32_b32 v1, -1, 0
            v_mbcnt_hi_u32_b32 v1, -1, v1
            v_lshlrev_b32 v1, 2, v1
            v_add_u32 v1, s3, v1
            s_waitcnt lgkmcnt(0)
            global_store_dword v1, v167, s[34:35]
        ''')


O, Q, S, P, POOL = 0, 64, 96, 112, 120
vKb, vVb, vK, vV, vL, vNM, vLT, vT = 152, 153, 154, 155, 156, 157, 158, 159
FL = 160
vFA, vPA, vSW = 164, 165, 166
sC, sNC, sThr, sP, sSpin, sRem, sMaskAt, sFirst = 's16', 's17', 's18', 's19', 's20', 's21', 's22', 's23'
sE0, sE1, sE0p = 's24', 's25', 's26'
H = 28
TB = 36


def r(a, n):
    return f'v[{a}:{a + n - 1}]'


def pool(i):
    return r(POOL + 4 * i, 4)


def qk(i, c0=False):
    c = '0' if c0 else r(S, 16)
    return f'v_mfma_f32_32x32x16_bf16 {r(S, 16)}, {pool(i)}, {r(Q + 4 * i, 4)}, {c}'


def pv(slot, b, j):
    return f'v_mfma_f32_32x32x16_bf16 {r(O + 16 * b, 16)}, {pool(slot)}, {r(P + 4 * j, 4)}, {r(O + 16 * b, 16)}'


def kread(s, addr=vK):
    return f'ds_read_b128 {pool(s)}, v{addr} offset:{32 * s}'


def vread(slot, b, j):
    return [f'ds_read_b64_tr_b16 {r(POOL + 4 * slot + 2 * eh, 2)}, v{vV} offset:{(2 * j + eh) * 256 + 64 * b}'
            for eh in (0, 1)]


def F(a, b):
    return [f'v_fma_f32 v{S + i}, v{S + i}, {sC}, v{vNM}' for i in range(a, b)]


def E(a, b):
    return [f'v_exp_f32 v{S + i}, v{S + i}' for i in range(a, b)]


def A(a, b):
    return [f'v_add_f32 v{vLT}, v{S}, v{S + 1}' if i == 1 else f'v_add_f32 v{vLT}, v{vLT}, v{S + i}'
            for i in range(max(a, 1), b)]


def C(a, b):
    return [f'v_cvt_pk_bf16_f32 v{P + k}, v{S + 2 * k}, v{S + 2 * k + 1}' for k in range(a, b)]


def addr(dst, s, base):
    return f'v_mad_u32_u24 v{dst}, {s}, 1, v{base}'


def pub(g, a, val):
    if g.o.execpub:
        return ['s_mov_b64 exec, 1', f'ds_write_b32 v{a}, v{val}', 's_mov_b64 exec, -1']
    return [f'ds_write_b32 v{a}, v{val}']


def poll(g, tag, need):
    g.many(f'''
        s_cmp_gt_u32 {sP}, {need}
        s_cbranch_scc1 POLLOK_{tag}
    POLL_{tag}:
        ds_read_b128 {r(FL, 4)}, v{vFA}
        s_waitcnt lgkmcnt(0)
        v_min3_u32 v{FL}, v{FL}, v{FL + 1}, v{FL + 2}
        v_min_u32 v{FL}, v{FL}, v{FL + 3}
        s_sub_u32 {sSpin}, {sSpin}, 1
        s_cbranch_scc1 END
        v_readfirstlane_b32 {sP}, v{FL}
        s_cmp_gt_u32 {sP}, {need}
        s_cbranch_scc1 POLLOK_{tag}
        s_sleep {g.o.csleep}
        s_branch POLL_{tag}
    POLLOK_{tag}:
    ''')


def finewaits(seq, step, epub=0):
    q = ['V0', 'V0', 'V1', 'V1', 'W', 'V2', 'V2', 'V3', 'V3', 'V4', 'V4', 'V5', 'V5', 'V6', 'V6', 'FL', 'V7', 'V7']
    if epub:
        q.remove('W')
    out = []
    k = 0
    for x in seq:
        if x.startswith('s_waitcnt lgkmcnt'):
            continue
        if x.startswith('v_mfma'):
            if k % step == 0:
                need = 'V%d' % (k + step - 1)
                last = max(i for i, n in enumerate(q) if n == need)
                out.append(f's_waitcnt lgkmcnt({min(15, len(q) - 1 - last)})')
            k += 1
        if x.startswith('ds_read'):
            q.append('K')
        out.append(x)
    return out


def gen_loader(g, lay):
    o = g.o
    g.idx, g.m0save = 's32', None
    g.lab('LOADER')
    g.many(f'''
        s_setprio {o.lprio}
        s_and_b32 s20, s14, 1
        s_lshr_b32 s3, s14, 1
        s_lshl_b32 s23, s20, 24
        v_mov_b32 v2, s23
        v_lshrrev_b32 v5, 4, v0
        ds_write_b32 v3, v2
        v_and_b32 v4, 7, v0
        v_lshrrev_b32 v16, 3, v0
        v_lshlrev_b32 v4, 2, v4
        v_lshlrev_b32 v16, 1, v16
        v_add_u32 v4, {lay['PROGA']}, v4
        v_subrev_u32 v16, {lay['RING'] - 1}, v16
        v_mov_b32 v18, 0x2000000
        v_lshlrev_b32 v19, 4, v0
        v_add_u32 v19, {lay['STG'] + 7 * 4096}, v19
        v_and_b32 v6, 15, v0
        v_lshrrev_b32 v7, 5, v0
        v_xor_b32 v7, v7, v6
        v_lshlrev_b32 v5, 12, v5
        s_mul_i32 s30, s3, {4 * KST}
        s_mul_i32 s31, s3, {4 * VST}
        s_lshl_b32 s3, s3, 16
        v_add_u32 v5, s3, v5
        v_lshl_add_u32 v8, v7, 4, v5
        v_lshl_add_u32 v12, v6, 4, v5
        v_add_u32 v9, {16384 - KST}, v8
        v_add_u32 v13, {16384 - VST}, v12
        v_add_u32 v10, {2 * (16384 - KST)}, v8
        v_add_u32 v14, {2 * (16384 - VST)}, v12
        v_add_u32 v11, {3 * (16384 - KST)}, v8
        v_add_u32 v15, {3 * (16384 - VST)}, v12
        s_mov_b32 s19, 0x00020000
        s_mov_b32 s22, 0
        s_mov_b32 s26, {1000 if o.m1 else lay['RING']}
        s_mov_b32 s27, 0x40000
        s_mul_i32 s28, s20, {SLOT}
        s_mov_b32 s21, 0
        s_mov_b32 s13, 0
        s_waitcnt lgkmcnt(0)
    ''')
    g.stamp()
    if o.m3 == 1:
        g.e('v_mov_b32 v2, -1')
        g.e('ds_write_b32 v3, v2')
        g.e('s_waitcnt lgkmcnt(0)')
        g.e('s_barrier')
        g.e('s_branch L_END')
    g.many(f'''
        s_mov_b32 m0, 0
        s_add_u32 s4, s4, s15
        s_addc_u32 s5, s5, 0
        s_add_u32 s6, s6, s15
        s_addc_u32 s7, s7, 0
        s_add_u32 s8, s8, s15
        s_addc_u32 s9, s9, 0
        s_mov_b32 s11, 0x00020000
    ''')
    if o.probe2:
        g.many(f'''
        s_mov_b32 s33, 0
        s_cmp_ge_u32 s2, {o.p1max * 8}
        s_cbranch_scc1 P1X
    P1:
        s_mov_b32 m0, s33
        s_nop 0
        s_movrels_b64 s[24:25], s[{TB}:{TB + 1}]
        s_bfe_u32 s12, s25, 0x20002
        s_cmp_eq_u32 s12, 0
        s_cbranch_scc1 P1X
        {'s_lshr_b32 s3, s25, 3' if o.probe3 else None}
        {'s_add_u32 s3, s3, s15' if o.probe3 else None}
        {'s_and_b32 s3, s3, 0xe00' if o.probe3 else None}
        {'s_sub_u32 s3, s3, s15' if o.probe3 else None}
        {'s_add_u32 s24, s24, s3' if o.probe3 else None}
        s_bitcmp1_b32 s25, 0
        s_cbranch_scc1 P1V
        s_add_u32 m0, s30, {lay['STG']}
        s_bitcmp1_b32 s25, 1
        s_cselect_b64 s[16:17], s[6:7], s[4:5]
        s_mov_b32 s18, s25
        buffer_load_dwordx4 v8, s[16:19], s24 offen lds
        buffer_load_dwordx4 v9, s[16:19], s24 offen offset:{KST} lds
        buffer_load_dwordx4 v10, s[16:19], s24 offen offset:{2 * KST} lds
        buffer_load_dwordx4 v11, s[16:19], s24 offen offset:{3 * KST} lds
        s_branch P1D
    P1V:
        s_add_u32 m0, s31, {lay['STG']}
        s_mov_b32 s10, s25
        buffer_load_dwordx4 v12, s[8:11], s24 offen lds
        buffer_load_dwordx4 v13, s[8:11], s24 offen offset:{VST} lds
        buffer_load_dwordx4 v14, s[8:11], s24 offen offset:{2 * VST} lds
        buffer_load_dwordx4 v15, s[8:11], s24 offen offset:{3 * VST} lds
    P1D:
        s_add_u32 s33, s33, 2
        s_waitcnt vmcnt({o.probe2})
        ''')
        g.stamp(force=True)
        g.many(f'''
        s_branch P1
    P1X:
        s_waitcnt vmcnt(0)
        ''')
        g.stamp(force=True)
        if o.stamps:
            g.many('''
        s_mov_b32 s3, 0x10000
    P1W:
        s_sleep 8
        s_memtime s[34:35]
        s_waitcnt lgkmcnt(0)
        s_sub_u32 s3, s3, 1
        s_cbranch_scc1 P1WX
        s_sub_u32 s34, s34, s100
        s_cmp_lt_u32 s34, 32000
        s_cbranch_scc1 P1W
    P1WX:
            ''')
        g.many(f'''
        s_memrealtime s[34:35]
        s_waitcnt lgkmcnt(0)
        s_sub_u32 s34, s34, s100
        s_lshl_b32 s34, s34, 2
        s_mov_b32 m0, 0
        s_add_u32 s100, s100, s34
        s_nop 1
        ''')
    nt = o.nt

    def dup(a, srd, st):
        if o.dup == 1:
            return '\n' + '\n'.join(f'buffer_load_dwordx4 v{a + i}, {srd}, s24 offen offset:{i * st} lds' for i in range(4))
        if o.dup == 2:
            return '\n' + '\n'.join(f'buffer_load_dwordx4 v[{32 + 4 * i}:{35 + 4 * i}], v{a + i}, {srd}, s24 offen offset:{i * st}' for i in range(4))
        if o.dup == 3:
            return '\n' + '\n'.join(f'ds_write_b128 v19, v[{32 + 4 * i}:{35 + 4 * i}] offset:{i * 1024}' for i in range(4))
        return ''

    sep = ['\n']

    def kload(n=''):
        return sep[0].join(f'buffer_load_dwordx4 v{8 + i}, s[16:19], s24 offen offset:{i * KST}{n} lds' for i in range(4)) + dup(8, 's[16:19]', KST)

    def vload(n=''):
        return sep[0].join(f'buffer_load_dwordx4 v{12 + i}, s[8:11], s24 offen offset:{i * VST}{n} lds' for i in range(4)) + dup(12, 's[8:11]', VST)

    def done(nxt):
        st = ''
        if o.sst:
            st = f'''
            s_memtime s[34:35]
            s_and_b32 m0, s20, -2
            s_waitcnt lgkmcnt(0)
            s_movreld_b32 s{TB}, s34
            '''
        return st + f'''
        s_add_u32 s20, s20, 2
        s_add_u32 s28, s28, {2 * SLOT}
        s_and_b32 m0, s20, -2
        s_sub_u32 s3, s28, {lay['RINGB']}
        s_cselect_b32 s28, s28, s3
        s_add_u32 s22, s22, 1
        s_branch {nxt}
        '''

    def trick(x):
        l = x.split('\n')
        return '\n'.join([l[0], l[1], 's_waitcnt vmcnt(1)', l[2], 's_waitcnt vmcnt(1)', l[3]])

    def issue(p, nxt):
        return f'''
        s_bitcmp1_b32 s25, 0
        s_cbranch_scc1 {p}_V
        s_add_u32 m0, s28, s30
        s_bitcmp1_b32 s25, 1
        s_cselect_b64 s[16:17], s[6:7], s[4:5]
        s_mov_b32 s18, s25
        {'s_bitcmp1_b32 s25, 4' if nt else None}
        {f's_cbranch_scc1 {p}_KN' if nt else None}
        {'s_bitcmp1_b32 s25, 5' if o.trick else None}
        {f's_cbranch_scc1 {p}_KT' if o.trick else None}
        {kload()}
    {p}_DONE:
        {done(nxt)}
    {p}_V:
        s_add_u32 m0, s28, s31
        s_mov_b32 s10, s25
        {'s_bitcmp1_b32 s25, 4' if nt else None}
        {f's_cbranch_scc1 {p}_VN' if nt else None}
        {'s_bitcmp1_b32 s25, 5' if o.trick else None}
        {f's_cbranch_scc1 {p}_VT' if o.trick else None}
        {vload()}
        {done(nxt)}
        ''' + (f'''
    {p}_KN:
        {kload(' nt')}
        s_branch {p}_DONE
    {p}_VN:
        {vload(' nt')}
        s_branch {p}_DONE
        ''' if nt else '') + (f'''
    {p}_KT:
        {trick(kload())}
        s_branch {p}_DONE
    {p}_VT:
        {trick(vload())}
        s_branch {p}_DONE
        ''' if o.trick else '')
    if o.nb:
        fail = f'''
        s_lshl_b32 s13, s22, 2
        s_mov_b32 s29, {o.nb - 1}
    L_F1:
        s_getreg_b32 s3, hwreg(HW_REG_IB_STS, 0, 4)
        s_add_u32 s3, s3, 4
        s_cmp_le_u32 s3, s13
        s_cbranch_scc1 L_WAIT
        s_sleep 1
        s_sub_u32 s29, s29, 1
        s_cbranch_scc0 L_F1
        s_sub_u32 s27, s27, 1
        s_cbranch_scc0 L_POLL
        s_branch END
        '''
    else:
        fail = f'''
        s_cmp_gt_u32 s22, 0
        s_cbranch_scc1 L_WAIT
        s_sub_u32 s27, s27, 1
        s_cbranch_scc1 END
        s_sleep {o.lsleep}
        s_branch L_POLL
        '''
    g.many(f'''
    S_NEXT:
        s_movrels_b64 s[24:25], s[{TB}:{TB + 1}]
        s_bfe_u32 s12, s25, 0x20002
        s_cmp_ge_u32 s22, s12
        s_cbranch_scc1 L_FIRST
        {issue('S', 'S_NEXT')}
    L_FIRST:
    ''')
    g.stamp()
    if o.pace:
        sep[0] = f'\ns_sleep {o.pace}\n'
    g.many(f'''
        s_barrier
        s_branch L_WAIT
    L_NEXT:
        s_movrels_b64 s[24:25], s[{TB}:{TB + 1}]
        s_bfe_u32 s12, s25, 0x20002
        s_cmp_lt_u32 s22, s12
        s_cbranch_scc1 L_CHK
    L_WAIT:
        s_cmp_eq_u32 s22, 3
        s_cbranch_scc0 L_W2
        s_waitcnt vmcnt({16 if o.dup in (1, 2) else 8})
    L_PUB:
        s_mov_b64 exec, 1
        ds_add_u32 v3, v18
        s_mov_b64 exec, -1
        s_sub_u32 s22, s22, 1
    ''')
    if o.lstamp:
        g.stamp()
    if o.sst:
        g.many(f'''
        s_memtime s[34:35]
        s_mov_b32 m0, s21
        s_add_u32 s21, s21, 2
        s_waitcnt lgkmcnt(0)
        s_movreld_b32 s{TB + 1}, s34
        ''')
    g.many(f'''
        s_cmp_ge_u32 s22, s12
        s_cbranch_scc1 L_WAIT
    L_CHK:
        s_cmp_lt_u32 s20, s26
        s_cbranch_scc1 L_ISSUE
    L_POLL:
        ds_read_b32 v24, v4
        {f's_setprio {o.pprio}' if o.pprio != o.lprio else None}
        v_add_u32 v17, s20, v16
        s_waitcnt lgkmcnt(0)
        v_cmp_gt_u32_sdwa vcc, v17, v24 src0_sel:DWORD src1_sel:BYTE_3
        {f's_setprio {o.lprio}' if o.pprio != o.lprio else None}
        s_ff1_i32_b64 s3, vcc
        s_min_u32 s3, s3, 64
        s_lshr_b32 s3, s3, 3
        s_cbranch_scc0 L_FAIL
        s_lshl1_add_u32 s26, s3, s20
    L_ISSUE:
        {issue('L', 'L_NEXT')}
    L_FAIL:
        {fail}
    L_W2:
        s_cmp_eq_u32 s22, 2
        s_cbranch_scc0 L_W1
        s_waitcnt vmcnt({8 if o.dup in (1, 2) else 4})
        s_branch L_PUB
    L_W1:
        s_cmp_eq_u32 s22, 0
        s_cbranch_scc1 L_END
        s_waitcnt vmcnt(0)
        s_branch L_PUB
    L_END:
    ''')
    if o.sst:
        for i in range(56):
            g.e(f'v_writelane_b32 v167, s{TB + i}, {6 + i}')
    g.stamp_out()
    g.e('s_endpgm')


def gen_consumer(g, lay):
    o = g.o
    c = 128 ** -0.5 * math.log2(math.e)
    st = o.stpol
    g.idx, g.m0save = 's8', 's9'
    pr = o.prio
    g.lab('CONSUMER')
    g.many(f'''
        v_mov_b32 v{vFA}, {lay['FULLA']}
        v_mov_b32 v{vPA}, v3
        v_and_b32 v1, 7, v0
        v_mul_u32_u24 v{vKb}, {KST}, v1
        v_bfe_u32 v2, v0, 3, 2
        v_lshl_add_u32 v{vKb}, v2, 8, v{vKb}
        v_lshrrev_b32 v3, 5, v0
        v_bfe_u32 v4, v0, 4, 1
        v_xor_b32 v5, v3, v4
        v_lshl_add_u32 v{vKb}, v5, 4, v{vKb}
        v_bfe_u32 v5, v0, 2, 2
        v_lshl_add_u32 v5, v3, 2, v5
        v_mul_u32_u24 v{vVb}, {VST}, v5
        v_lshl_add_u32 v{vVb}, v4, 5, v{vVb}
        v_and_b32 v5, 1, v0
        v_lshl_add_u32 v{vVb}, v5, 4, v{vVb}
        v_bfe_u32 v5, v0, 1, 1
        v_lshl_add_u32 v{vVb}, v5, 3, v{vVb}
        v_bfe_u32 v5, v0, 2, 1
        v_lshl_add_u32 v2, v5, 4, v2
        v_and_b32 v5, 3, v0
        v_lshl_add_u32 v2, v5, 2, v2
        s_lshl_b32 s3, s14, 12
        s_add_u32 s3, s3, {lay['STG'] - 4 * 4096}
        v_xor_b32 v1, v1, v3
        v_lshlrev_b32 v1, 4, v1
        v_lshl_add_u32 v2, v2, 7, v1
        v_add_u32 v{vSW}, s3, v2
        s_mov_b32 s13, s3
        s_mov_b32 {sC}, {hex(f2u(c))}
        s_mov_b32 {sNC}, {hex(f2u(-c))}
        s_mov_b32 {sThr}, {hex(f2u(2.0 ** 24))}
        s_mov_b32 {sP}, 0
        s_mov_b32 {sSpin}, 0x40000
        s_mov_b32 m0, 0
        s_waitcnt lgkmcnt(0)
        v_mov_b32 v{vT}, s{TB + 5}
        s_mov_b32 s7, 0x00020000
        s_add_u32 s10, s10, s15
        s_addc_u32 s11, s11, 0
    ''')
    g.e(pub(g, vPA, vT))
    g.many('''
        s_waitcnt lgkmcnt(0)
        s_barrier
    ''')
    if o.stamps:
        g.e('s_mov_b32 s8, 5')
        g.e('s_mov_b32 s12, 0')
    g.stamp()
    g.lab('TASK')
    g.many(f'''
        s_movrels_b64 s[{H}:{H + 1}], s[{TB}:{TB + 1}]
        s_movrels_b64 s[{H + 2}:{H + 3}], s[{TB + 2}:{TB + 3}]
        s_movrels_b64 s[{H + 4}:{H + 5}], s[{TB + 4}:{TB + 5}]
        s_movrels_b64 s[24:25], s[{TB + 6}:{TB + 7}]
        s_add_u32 m0, m0, 8
        s_cmp_eq_u32 s{H + 1}, 0
        s_cbranch_scc1 C_END
        v_mov_b32 v{P}, 0
        v_mov_b32 v{P + 1}, 0
        v_mov_b32 v{P + 2}, 0
        v_mov_b32 v{P + 3}, 0
        v_mov_b32 v{vL}, 0
        v_mov_b32 v{vNM}, 0x7f800000
    ''')
    zero = [f'v_mfma_f32_32x32x16_bf16 {r(O + 16 * b, 16)}, {r(P, 4)}, {r(P, 4)}, 0' for b in range(4)]
    if not o.zf:
        g.e(zero)
    g.many(f'''
        s_lshr_b32 {sRem}, s{H + 4}, 24
        s_and_b32 {sMaskAt}, s{H + 5}, 0xff
        s_mov_b32 {sE0p}, s{H + 4}
        {addr(vV, f's{H + 3}', vKb)}
        s_mov_b32 {sFirst}, 1
    ''')
    poll(g, 'T', f's{H + 3}')
    g.stamp()
    for s in range(8):
        g.e(f'ds_read_b128 {r(Q + 4 * s, 4)}, v{vV} offset:{32 * s}')
    g.lab('FRESH')
    g.e(addr(vK, sE0p, vKb))
    g.e('s_waitcnt lgkmcnt(7)')
    for s in range(8):
        g.e(kread(s))
    g.many(f'''
        s_cmp_eq_u32 {sRem}, {sMaskAt}
        s_cbranch_scc1 FMASK
        s_waitcnt lgkmcnt(7)
        {qk(0, True)}
    F_BACK:
        ds_read_b128 {r(FL, 4)}, v{vFA}
    ''')
    for s in range(1, 8):
        g.e(f's_waitcnt lgkmcnt({8 - s})')
        g.e(qk(s))
    if o.zf:
        g.e(f's_cmp_eq_u32 {sFirst}, 0')
        g.e('s_cbranch_scc1 F_NZ')
        g.e(zero)
        g.lab('F_NZ')
    t0, t1 = FL, FL + 1
    g.many(f'''
        s_waitcnt lgkmcnt(0)
        v_min3_u32 v{FL}, v{FL}, v{FL + 1}, v{FL + 2}
        v_mov_b32 v{vT}, {sE1}
        v_min_u32 v{FL}, v{FL}, v{FL + 3}
        ds_write_b32 v{vPA}, v{vT}
        {addr(vK, sE0, vKb)}
        v_readfirstlane_b32 {sP}, v{FL}
        {addr(vV, sE1, vVb)}
        s_cmp_gt_u32 {sP}, {sE0}
        s_cbranch_scc0 F_NOK
    ''')
    for s in range(8):
        g.e(kread(s))
    g.many(f'''
    F_NOK:
        s_nop 3
        v_max3_f32 v{t0}, v{S}, v{S + 1}, v{S + 2}
        v_max3_f32 v{t1}, v{S + 3}, v{S + 4}, v{S + 5}
        v_max3_f32 v{t0}, v{t0}, v{S + 6}, v{S + 7}
        v_max3_f32 v{t1}, v{t1}, v{S + 8}, v{S + 9}
        v_max3_f32 v{t0}, v{t0}, v{S + 10}, v{S + 11}
        v_max3_f32 v{t1}, v{t1}, v{S + 12}, v{S + 13}
        v_max3_f32 v{t0}, v{t0}, v{S + 14}, v{S + 15}
        v_max_f32 v{t0}, v{t0}, v{t1}
        v_mov_b32 v{t1}, v{t0}
        s_nop 1
        v_permlane32_swap_b32 v{t0}, v{t1}
        v_max_f32 v{t0}, v{t0}, v{t1}
        v_mul_f32 v{t0}, {sNC}, v{t0}
        v_min_f32 v{t0}, v{t0}, v{vNM}
        s_cmp_eq_u32 {sFirst}, 0
        s_cbranch_scc1 RESCALE
    R_BACK:
        v_mov_b32 v{vNM}, v{t0}
        s_mov_b32 {sFirst}, 0
    ''')
    g.e(F(0, 16) + E(0, 16) + A(1, 16) + C(0, 8))
    g.stamp()
    if o.epub:
        g.e('s_waitcnt lgkmcnt(0)')
    g.e(f's_cmp_gt_u32 {sP}, {sE0}')
    g.e('s_cbranch_scc1 CONT')
    g.lab('LATE')
    if o.stamps and not o.mini:
        g.e('s_memtime s[100:101]')
        g.e('s_waitcnt lgkmcnt(0)')
    poll(g, 'L', sE0)
    if o.stamps and not o.mini:
        g.e('s_memtime s[34:35]')
        g.e('s_waitcnt lgkmcnt(0)')
        g.e('s_sub_u32 s34, s34, s100')
        g.e('s_add_u32 s12, s12, s34')
    for s in range(8):
        g.e(kread(s))
    if o.epub:
        g.e('s_waitcnt lgkmcnt(0)')
    g.e('s_branch CONT')
    g.L.append('.p2align 4') if o.align else None
    g.lab('LOOP')
    loop_start = len(g.L)
    g.e(f's_waitcnt lgkmcnt({1 if o.epub else 0})')
    if pr:
        g.e(f's_setprio {pr[0]}')
    g.e(qk(0, True))
    g.lab('L_BACK')
    if pr and not o.pl:
        g.e(f's_setprio {pr[1]}')
    mins = [f'v_min3_u32 v{FL}, v{FL}, v{FL + 1}, v{FL + 2}', f'v_min_u32 v{FL}, v{FL}, v{FL + 3}']
    rfl = [f'v_readfirstlane_b32 {sP}, v{FL}'] + ([f'v_mov_b32 v{FL + 1}, {sE1}'] if o.epub else [])
    cmpv = [f'v_cmp_nge_f32 vcc, {sThr}, v{vLT}']
    lo = [f's_setprio {pr[2]}'] if pr else []
    flr = f'ds_read_b128 {r(FL, 4)}, v{vFA}'
    if o.sched <= 3:
        gapA = {0: [f'v_mov_b32 v{vT}, {sE1}'],
                1: pub(g, vPA, vT) + [f'v_add_f32 v{vL}, v{vL}, v{vLT}'],
                2: [f's_mov_b32 {sE0p}, {sE0}', f's_movrels_b64 s[24:25], s[{TB}:{TB + 1}]', 's_add_u32 m0, m0, 2'],
                7: [flr, addr(vK, sE0, vKb), addr(vV, sE1, vVb)]}
    else:
        gapA = {0: [f'v_mov_b32 v{vT}, {sE1}'] if not o.epub else [],
                1: pub(g, vPA, vT) if not o.epub else [],
                2: [f'v_add_f32 v{vL}, v{vL}, v{vLT}', f's_mov_b32 {sE0p}, {sE0}'],
                3: [f's_movrels_b64 s[24:25], s[{TB}:{TB + 1}]'],
                4: ['s_add_u32 m0, m0, 2'],
                5: [addr(vK, sE0, vKb)],
                6: [flr]}
    for m in range(8):
        if m > 0:
            g.e(qk(m))
        g.e(vread(m, m % 4, m // 4))
        g.e(gapA.get(m))

    def vseg(e0, f0=16):
        out = F(f0, 16)
        acc = [vLT, vT]
        tail = []
        done = e0
        q = []
        adds = []
        for i in range(2, 16):
            adds.append((i, f'v_add_f32 v{acc[i & 1]}, v{S + i - 2}, v{S + i}' if i < 4 else f'v_add_f32 v{acc[i & 1]}, v{acc[i & 1]}, v{S + i}'))
        cv = [(2 * k + 1, C(k, k + 1)[0]) for k in range(8)]
        ai = ci = 0
        for i in range(e0, 16):
            out += E(i, i + 1)
            if ai < len(adds) and adds[ai][0] < i:
                out.append(adds[ai][1]); ai += 1
            if i % 2 and ci < 5 and cv[ci][0] < i:
                out.append(cv[ci][1]); ci += 1
            elif ai < len(adds) and adds[ai][0] < i:
                out.append(adds[ai][1]); ai += 1
        out.append(cv[ci][1]); ci += 1
        out += [a for _, a in adds[ai:]]
        out.append(f'v_add_f32 v{vLT}, v{vLT}, v{vT}')
        out += cmpv + [c_ for _, c_ in cv[ci:]]
        return out
    seq = ['s_waitcnt lgkmcnt(9)', pv(0, 0, 0)]
    if o.sched > 3:
        seq += [addr(vV, sE1, vVb)]
    seq += [pv(1, 1, 0)]
    if o.sched == 1:
        seq += ['s_nop 3'] + F(0, 4) + [pv(2, 2, 0)] + F(4, 8) + [pv(3, 3, 0)]
        seq += [kread(s) for s in range(4)] + ['s_waitcnt lgkmcnt(4)', pv(4, 0, 1), kread(4)]
        seq += F(8, 12) + [pv(5, 1, 1), kread(5)] + F(12, 16) + [pv(6, 2, 1), kread(6)] + mins
        seq += [pv(7, 3, 1), kread(7)] + lo + rfl + E(0, 16) + A(1, 16) + cmpv + C(0, 8)
    elif o.sched in (2, 4, 5):
        seq += [kread(0), kread(1), pv(2, 2, 0), kread(2)] + F(0, 4) + [pv(3, 3, 0), kread(3)] + F(4, 8 if o.sched < 4 else 7)
        seq += ['s_waitcnt lgkmcnt(4)', pv(4, 0, 1), kread(4)]
        if o.sched == 2:
            seq += F(8, 12) + [pv(5, 1, 1), kread(5)] + F(12, 16) + [pv(6, 2, 1), kread(6)] + mins + E(0, 1)
        else:
            seq += F(7, 11) + [pv(5, 1, 1), kread(5)] + F(11, 15) + [pv(6, 2, 1), kread(6)] + F(15, 16) + mins
        seq += [pv(7, 3, 1), kread(7)] + lo + rfl
        if o.sched == 2:
            seq += E(1, 16) + A(1, 16) + cmpv + C(0, 8)
        elif o.sched == 4:
            seq += E(0, 16) + A(1, 16) + cmpv + C(0, 8)
        else:
            seq += vseg(0)
    elif o.sched in (3, 6):
        seq += [kread(0), kread(1), pv(2, 2, 0), kread(2)] + F(0, 4) + [pv(3, 3, 0), kread(3)] + F(4, 6) + E(0, 1)
        seq += ['s_waitcnt lgkmcnt(4)', pv(4, 0, 1), kread(4)]
        seq += F(6, 8) + E(1, 2) + [pv(5, 1, 1), kread(5)] + F(8, 10) + E(2, 3) + [pv(6, 2, 1), kread(6)] + mins + E(3, 4)
        seq += [pv(7, 3, 1), kread(7)] + lo + rfl
        if o.sched == 3:
            seq += F(10, 16) + E(4, 16) + A(1, 16) + cmpv + C(0, 8)
        else:
            seq += vseg(4, 10)
    elif o.sched == 7:
        seq += [kread(0), kread(1), pv(2, 2, 0), kread(2)] + F(0, 3) + [pv(3, 3, 0), kread(3)] + F(3, 5)
        seq += ['s_waitcnt lgkmcnt(4)', pv(4, 0, 1), kread(4)]
        seq += F(5, 8) + [pv(5, 1, 1), kread(5)] + F(8, 11) + [pv(6, 2, 1), kread(6)] + mins
        seq += [pv(7, 3, 1), kread(7)] + lo + rfl + vseg(0, 11)
    if o.klate:
        ks = [x for x in seq if x.startswith('ds_read_b128')]
        seq = [x for x in seq if not x.startswith('ds_read_b128')]
        seq = ['s_waitcnt lgkmcnt(0)' if x == 's_waitcnt lgkmcnt(4)' else x for x in seq]
        i = seq.index(rfl[0]) + 1
        tail = seq[i:]
        seq = seq[:i]
        if o.klate == 1:
            seq += ks + tail
        else:
            for k, x in enumerate(tail):
                if k < 8:
                    seq.append(ks[k])
                seq.append(x)
    if o.fine:
        seq = finewaits(seq, o.fine, o.epub)
    g.e(seq)
    if o.pl:
        lad = dict((int(a), int(b)) for a, b in (x.split(':') for x in o.pl.split(',')))
        body = g.L[loop_start:]
        del g.L[loop_start:]
        k = 0
        for x in body:
            g.L.append(x)
            if 'v_mfma' in x:
                k += 1
                if k in lad:
                    g.e(f's_setprio {lad[k]}')
    g.many(f'''
        {'s_nop 0' if o.m3 or o.m5 else 's_cbranch_vccnz FRESH'}
        {f'ds_write_b32 v{vPA}, v{FL + 1}' if o.epub else None}
        s_cmp_gt_u32 {sP}, {sE0}
        s_cbranch_scc0 LATE
    CONT:
    ''')
    if o.itst:
        g.stamp()
    g.many(f'''
        s_sub_u32 {sRem}, {sRem}, 1
        s_cbranch_scc1 FINAL
        s_cmp_eq_u32 {sRem}, {sMaskAt}
        s_cbranch_scc0 LOOP
        s_mov_b32 s27, 0
    MASK:
        v_mov_b32 v{FL}, s{H + 2}
        s_mov_b32 exec_lo, 0
        v_lshrrev_b32 v{FL}, 16, v{FL}
        s_mov_b32 exec_lo, -1
    ''')
    for i in range(16):
        bit = 4 * (i % 4) + i // 4
        g.e(f'v_bfe_i32 v{S + i}, v{FL}, {bit}, 1')
    for i in range(16):
        g.e(f'v_lshlrev_b32 v{S + i}, 23, v{S + i}')
    g.many(f'''
        s_waitcnt lgkmcnt(0)
        s_cmp_eq_u32 s27, 0
        {qk(0)}
        s_cbranch_scc1 L_BACK
        s_branch F_BACK
    ''')
    g.lab('FINAL')
    g.stamp()
    order = [(b, j) for b in range(4) for j in range(2)]
    g.e('s_waitcnt lgkmcnt(4)')
    for k in range(5):
        g.e(vread(k, *order[k]))
    X = S
    vW = [vSW, X, X + 1, X + 2]
    vR = [X + 4, X + 5, X + 6, X + 7]
    vG = [X + 8, X + 9, X + 10, X + 11]
    ln = X + 12

    def mul(b):
        if o.pk:
            return [f'v_pk_mul_f32 {r(O + 16 * b + i, 2)}, {r(O + 16 * b + i, 2)}, {r(vL, 2)} op_sel_hi:[1,0]' for i in range(0, 16, 2)]
        return [f'v_mul_f32 v{O + 16 * b + i}, v{O + 16 * b + i}, v{vL}' for i in range(16)]

    def blk(b):
        m = mul(b)
        h = len(m) // 2
        out = []
        for gq in range(2):
            d = Q + 8 * b + 4 * gq
            out += m[gq * h:(gq + 1) * h]
            for k in range(4):
                i = O + 16 * b + 8 * gq + 2 * k
                out.append(f'v_cvt_pk_bf16_f32 v{d + k}, v{i}, v{i + 1}')
            out.append(f'ds_write_b128 v{vW[2 * (b & 1) + gq]}, {r(d, 4)}')
        return out

    def rd(rnd):
        return [f'ds_read_b128 {r(O + 32 * rnd + 4 * k, 4)}, v{vR[k]} offset:{1024 * k}' for k in range(4)]

    def stv(rnd, extra):
        out = []
        for k in range(4):
            out.append(f's_waitcnt lgkmcnt({3 - k + extra})')
            out.append(f'buffer_store_dwordx4 {r(O + 32 * rnd + 4 * k, 4)}, v{vG[k]}, s[4:7], 0 offen offset:{128 * rnd}{st}')
        return out
    seq = []
    seq += [f'v_add_f32 v{vL}, v{vL}, v{vLT}', f's_movrels_b32 s3, s{TB + 5}', f's_add_u32 s4, s10, s{H}',
            f'v_mov_b32 v{FL + 1}, v{vL}', f's_addc_u32 s5, s11, 0', f's_mov_b32 s6, s{H + 1}',
            f'v_permlane32_swap_b32 v{vL}, v{FL + 1}', f'v_mov_b32 v{vT}, s3',
            f'v_add_f32 v{vL}, v{vL}, v{FL + 1}',
            f'v_mbcnt_lo_u32_b32 v{ln}, -1, 0', f'v_rcp_f32 v{vL}, v{vL}', f'v_mbcnt_hi_u32_b32 v{ln}, -1, v{ln}']
    if o.eprio:
        seq += [f's_setprio {o.eprio[0]}']
    seq += ['s_waitcnt lgkmcnt(8)', pv(0, *order[0])] + vread(5, *order[5])
    seq += [f'v_lshrrev_b32 v{ln + 1}, 3, v{ln}', f'v_and_b32 v{ln + 2}, 7, v{ln}', f'v_lshrrev_b32 v{ln}, 5, v{ln}']
    seq += ['s_waitcnt lgkmcnt(8)', pv(1, *order[1])] + vread(6, *order[6])
    seq += [f'v_xor_b32 v{ln}, v{ln}, v{ln + 2}', f'v_lshl_add_u32 v{vR[0]}, v{ln + 1}, 7, s13', f'v_xor_b32 v{vW[1]}, 32, v{vSW}']
    seq += ['s_waitcnt lgkmcnt(8)', pv(2, *order[2])] + vread(7, *order[7])
    seq += [f'v_lshl_add_u32 v{vR[0]}, v{ln}, 4, v{vR[0]}', f'v_xor_b32 v{vW[2]}, 64, v{vSW}', f'v_xor_b32 v{vW[3]}, 0x60, v{vSW}']
    b0 = blk(0)
    k = 5
    seq += ['s_waitcnt lgkmcnt(8)', pv(3, *order[3])] + b0[:k]
    nw = lambda x: sum(1 for i in x if i.startswith('ds_write'))
    seq += [f's_waitcnt lgkmcnt({6 + nw(b0[:k])})', pv(4, *order[4])] + b0[k:2 * k]
    seq += [f's_waitcnt lgkmcnt({4 + nw(b0[:2 * k])})', pv(5, *order[5])] + b0[2 * k:3 * k]
    seq += [f's_waitcnt lgkmcnt({2 + nw(b0[:3 * k])})', pv(6, *order[6])] + b0[3 * k:4 * k]
    seq += [f's_waitcnt lgkmcnt({nw(b0[:4 * k])})', pv(7, *order[7])]
    seq += pub(g, vPA, vT)
    if o.eprio:
        seq += [f's_setprio {o.eprio[1]}']
        if len(o.eprio) > 3:
            seq += ['s_cmp_eq_u32 s3, 0xff000000', 's_cbranch_scc1 E_LAST', f's_setprio {o.eprio[3]}', 'E_LAST:']
    seq += b0[4 * k:] + blk(1)
    seq += [f'v_xor_b32 v{vR[1]}, 32, v{vR[0]}', f'v_xor_b32 v{vR[2]}, 64, v{vR[0]}', f'v_xor_b32 v{vR[3]}, 0x60, v{vR[0]}']
    seq += rd(0)
    seq += [f'v_lshlrev_b32 v{vG[0]}, 12, v{ln + 1}', f'v_lshl_add_u32 v{vG[0]}, v{ln + 2}, 4, v{vG[0]}',
            f'v_add_u32 v{vG[1]}, 0x8000, v{vG[0]}', f'v_add_u32 v{vG[2]}, 0x10000, v{vG[0]}', f'v_add_u32 v{vG[3]}, 0x18000, v{vG[0]}']
    seq += blk(2)
    seq += stv(0, 2)
    seq += blk(3) + rd(1) + stv(1, 0)
    if o.eprio:
        seq += [f's_setprio {o.eprio[2]}']
    g.many('\n'.join(seq))
    g.stamp()
    g.e('s_branch TASK')
    g.lab('C_END')
    if o.stamps:
        g.e('s_waitcnt vmcnt(0)')
        g.stamp()
        g.stampval('s12')
    g.stamp_out()
    g.lab('END')
    g.e('s_endpgm')
    g.many(f'''
    FMASK:
        s_mov_b32 s27, 1
        s_branch MASK
    RESCALE:
        v_sub_f32 v{t1}, v{t0}, v{vNM}
        v_exp_f32 v{t1}, v{t1}
        s_nop 0
        v_mul_f32 v{vL}, v{vL}, v{t1}
    ''')
    for i in range(64):
        g.e(f'v_mul_f32 v{O + i}, v{O + i}, v{t1}')
    g.e('s_branch R_BACK')


def tables(plan, ring, o):
    words = []
    p = dict(sim.P)
    p['RING'] = ring
    wins = [int(x) for x in o.win.split(',')]
    users = {}
    for cu in plan:
        for j in cu:
            users[(j[0], j[1])] = users.get((j[0], j[1]), 0) + 1
    for gi, cu in enumerate(plan):
        comp = [(PL.NT[j[0]], [w for w, _ in j[2]]) for j in cu]
        if o.spec:
            order = [tuple(x) for x in o.spec['orders'][gi]]
        elif o.order == 'sim':
            m, order = sim.best_order(comp, p, local=1)
        else:
            order = sim.init_order(comp, 1000, 1200, o.qsplit)
        items, hdr = PL.stream_from_order(cu, order, ring)
        w = [0] * (GSTRIDE // 4)
        assert len(items) <= 62
        for i, (ty, row0, hb, end) in enumerate(items):
            win = wins[0]
            if len(wins) > 1 and gi >= wins[2] and i < wins[3]:
                win = wins[1]
            if o.spec:
                win = o.spec['wins'][gi][i]
            if win == 0:
                win = 1 | 8
            b = 64 * (i & 1) + (i >> 1) * 2
            w[b] = row0 * 4096 + hb * 256
            w[b + 1] = ((end - 1) * 4096 + 512) | (ty == 'V') | ((ty == 'K') << 1) | (win << 2)
            j = cu[order[i][1]]
            if (o.nt >= 1 and ty == 'Q') or (o.nt >= 2 and users[(j[0], j[1])] == 1):
                w[b + 1] |= 16
        sa = lambda it: (it % ring) * SLOT
        for c in range(8):
            s = []
            for h in hdr[c]:
                s += [h['row0'] * 4096 + h['hb'] * 256, h['nvq'] * 4096 - 3840, (0xffffffff << h['nvl']) & 0xffffffff,
                      sa(h['qitem']) | (max(h['qitem'], h['k0']) << 24), sa(h['k0']) | ((h['n'] - 1) << 24),
                      (min(h['qitem'], h['k0']) << 24) | (h['n'] - 1 - h['mpos'] if h['nvl'] < 32 else 255)]
                for kn, vn in h['tl']:
                    s += [sa(kn) | (max(kn, vn) << 24), sa(vn) | (vn << 24)]
            s += [0, 0, 0, 0, 0, 255 << 24]
            assert len(s) <= 62, len(s)
            w[64 * (c + 2):64 * (c + 2) + len(s)] = s
        words += w
    return words


def main():
    ap = argparse.ArgumentParser()
    ap.add_argument('-o', default='standalone__varlen_attn_packed__ragged.s')
    ap.add_argument('--stamps', action='store_true')
    ap.add_argument('--mini', action='store_true')
    ap.add_argument('--probe', type=int, default=0)
    ap.add_argument('--probe2', type=int, default=0)
    ap.add_argument('--probe3', type=int, default=0)
    ap.add_argument('--p1max', type=int, default=32)
    ap.add_argument('--pk', action='store_true')
    ap.add_argument('--eprio', default='')
    ap.add_argument('--win', default='3', help='W or W,Wlow,first group,items')
    ap.add_argument('--order', default='sim')
    ap.add_argument('--lprio', type=int, default=3)
    ap.add_argument('--itst', action='store_true')
    ap.add_argument('--pace', type=int, default=0)
    ap.add_argument('--klate', type=int, default=0)
    ap.add_argument('--pl', default='')
    ap.add_argument('--lstamp', type=int, default=1)
    ap.add_argument('--lacc', type=int, default=0)
    ap.add_argument('--pprio', type=int, default=3)
    ap.add_argument('--sst', type=int, default=0)
    ap.add_argument('--epub', type=int, default=0)
    ap.add_argument('--zf', type=int, default=0)
    ap.add_argument('--nb', type=int, default=0)
    ap.add_argument('--dup', type=int, default=0)
    ap.add_argument('--trick', type=int, default=1)
    ap.add_argument('--spec', default='')
    ap.add_argument('--fine', type=int, default=0)
    ap.add_argument('--m5', type=int, default=0)
    ap.add_argument('--ring', type=int, default=15)
    ap.add_argument('--nt', type=int, default=0, help='1: Q, 2: Q + unshared KV')
    ap.add_argument('--stpol', default='nt')
    ap.add_argument('--m1', type=int, default=0)
    ap.add_argument('--m3', type=int, default=0)
    ap.add_argument('--sched', type=int, default=2)
    ap.add_argument('--prio', default='120')
    ap.add_argument('--lsleep', type=int, default=2)
    ap.add_argument('--csleep', type=int, default=1)
    ap.add_argument('--execpub', action='store_true')
    ap.add_argument('--align', action='store_true')
    ap.add_argument('--qsplit', type=int, default=1)
    ap.add_argument('--plan', default='h2')
    o = ap.parse_args()
    if o.stpol:
        o.stpol = ' ' + o.stpol.replace('_', ' ')
    if o.prio == 'none':
        o.prio = ''
    lay = dict(RING=o.ring, RINGB=o.ring * SLOT)
    lay['STG'] = lay['RINGB']
    lay['FULLA'] = lay['STG'] + 8 * 4096
    lay['PROGA'] = lay['FULLA'] + 16
    lds = lay['FULLA'] + 64
    assert lds <= 163840 and lay['STG'] % 128 == 0
    g = Gen(o)
    ref = open('standalone__varlen_attn_packed__ragged.s.ref').read().split('\n')
    head = [l for l in ref[:12] if l.startswith(';') and '@launch' not in l]
    out = head + [f'; @launch grid=(256,1,1) block=(768,1,1) lds={lds}',
                  '.amdgcn_target "amdgcn-amd-amdhsa--gfx950"', '.text', f'.globl {NAME}', '.p2align 8',
                  f'.type {NAME},@function', f'{NAME}:']
    g.many(f'''
        s_cmp_ge_u32 s2, 256
        s_cbranch_scc1 END
        v_lshrrev_b32 v1, 6, v0
        s_getpc_b64 s[12:13]
    PCREF:
        s_load_dwordx4 s[4:7], s[0:1], 0
        v_readfirstlane_b32 s14, v1
        s_load_dwordx2 s[8:9], s[0:1], 16
        s_lshr_b32 s3, s2, 3
        s_mul_i32 s3, s3, {GSTRIDE}
        s_and_b32 s15, s14, 1
        s_sub_u32 s28, s14, 2
        s_cmp_ge_u32 s14, 4
        s_cselect_b32 s15, s28, s15
        s_lshl_b32 s15, s15, 8
        s_add_u32 s3, s3, s15
        s_add_u32 s3, s3, TABLE-PCREF
        s_add_u32 s12, s12, s3
        s_addc_u32 s13, s13, 0
        s_load_dwordx16 s[36:51], s[12:13], 0
        s_load_dwordx16 s[52:67], s[12:13], 64
        s_load_dwordx16 s[68:83], s[12:13], 128
        s_load_dwordx16 s[84:99], s[12:13], 192
        s_load_dwordx2 s[10:11], s[0:1], 32
        v_lshlrev_b32 v3, 2, v1
        v_add_u32 v3, {lay['FULLA']}, v3
        s_and_b32 s15, s2, 7
        s_lshl_b32 s15, s15, 9
        v_and_b32 v0, 63, v0
    ''')
    if o.probe and not o.stamps:
        g.e('s_memrealtime s[100:101]')
    if o.stamps:
        g.idx, g.m0save = 's32', None
        g.e('s_mov_b32 s32, 0')
        g.e('v_mov_b32 v167, 0')
        g.e('s_memrealtime s[34:35]')
        g.e('s_memtime s[100:101]')
        g.e('s_getreg_b32 s33, hwreg(HW_REG_HW_ID)')
        g.stampval('s33')
        g.e('s_getreg_b32 s33, hwreg(HW_REG_XCC_ID)')
        g.stampval('s33')
        g.e('s_waitcnt lgkmcnt(0)')
        g.stampval('s34')
        g.stampval('s100')
    g.many('''
        s_cmp_ge_u32 s14, 4
        s_cbranch_scc1 CONSUMER
    ''')
    gen_loader(g, lay)
    gen_consumer(g, lay)
    if o.spec:
        import json
        o.spec = json.load(open(o.spec))
        plan = [[(j[0], j[1], [tuple(x) for x in j[2]]) + tuple(j[3:]) for j in cu] for cu in o.spec['plan']]
    else:
        plan = PL.get_plan(o.plan)
    PL.check_plan(plan)
    tw = tables(plan, o.ring, o)
    g.L.append('.p2align 6')
    g.lab('TABLE')
    for i in range(0, len(tw), 8):
        g.e('.long ' + ', '.join(hex(x) for x in tw[i:i + 8]))
    out += g.L
    out += ['.section .rodata,"a"', '.p2align 6', f'.amdhsa_kernel {NAME}', '  .amdhsa_next_free_vgpr 168',
            '  .amdhsa_next_free_sgpr 102', '  .amdhsa_accum_offset 168', '  .amdhsa_group_segment_fixed_size 0',
            '  .amdhsa_kernarg_size 56', '  .amdhsa_user_sgpr_count 2', '  .amdhsa_user_sgpr_kernarg_segment_ptr 1',
            '  .amdhsa_system_sgpr_workgroup_id_x 1', '.end_amdhsa_kernel', '']
    open(o.o, 'w').write('\n'.join(out))


main()
```

```python
CU = [0, 321, 555, 878, 1299, 1551, 1670, 1878, 2181, 2351, 2646, 2810, 3248, 3471, 3811, 4169, 4391]
L = [CU[i + 1] - CU[i] for i in range(16)]
NT = [(l + 31) // 32 for l in L]
RING = 16
NCONS = 8


def pairs_with(n):
    return [(s, hb) for s in range(16) if NT[s] == n for hb in (0, 1)]


def hand_plan():
    plan = []
    W = list(range(8))

    def job(p, blocks, waves):
        assert len(blocks) == len(waves)
        return (p[0], p[1], list(zip(waves, blocks)))
    p14, p12, p11, p10, p8, p7, p6, p4 = (pairs_with(n) for n in (14, 12, 11, 10, 8, 7, 6, 4))
    for p in p14:
        plan.append([job(p, list(range(0, 7)), W[:7])])
        plan.append([job(p, list(range(7, 14)), W[:7])])
    A, B, C = [], [], []
    for p in p12:
        plan.append([job(p, list(range(8)), W)])
        A.append((p, list(range(8, 12))))
    for p in p11:
        plan.append([job(p, list(range(8)), W)])
        B.append((p, list(range(8, 11))))
    for i, p in enumerate(p10):
        cu = [job(p, list(range(8)), W)]
        if i < 2:
            cu.append(job(p4[i], list(range(4)), W[:4]))
        plan.append(cu)
        C.append((p, list(range(8, 10))))
    for i, p in enumerate(p8):
        plan.append([job(p, list(range(8)), W), job(B[i][0], B[i][1], W[:3])])
    for i in range(3):
        plan.append([job(p7[2 * i], list(range(7)), W[:7]), job(p7[2 * i + 1], list(range(7)), W[:7])])
    for i in range(2):
        plan.append([job(A[i][0], A[i][1], W[:4]), job(B[4 + i][0], B[4 + i][1], W[4:7])])
    for i in range(2):
        plan.append([job(p6[2 * i], list(range(6)), W[:6]), job(C[i][0], C[i][1], W[6:8]),
                     job(p6[2 * i + 1], list(range(6)), W[:6])])
    plan.append([job(C[2][0], C[2][1], [0, 1]), job(C[3][0], C[3][1], [2, 3])])
    assert len(plan) == 32, len(plan)
    return plan


def check_plan(plan):
    seen = set()
    for cu in plan:
        for job in cu:
            s, hb, tasks = job[:3]
            if len(job) > 3:
                assert sorted(job[3]) == list(range(NT[s]))
            for w, qb in tasks:
                assert 0 <= qb < NT[s] and (s, hb, qb) not in seen
                seen.add((s, hb, qb))
    assert len(seen) == 2 * sum(NT), len(seen)


def get_plan(name):
    if name == 'hand':
        return hand_plan()
    if name == 'h2':
        return h2_plan()
    if name == 'h2r':
        return h2r_plan()
    import json
    return [[(j[0], j[1], [tuple(x) for x in j[2]]) + tuple(j[3:]) for j in cu] for cu in json.load(open(name))]


def perm_of(job):
    return list(job[3]) if len(job) > 3 else list(range(NT[job[0]]))


def local_rot(n, k, g):
    out = []
    for b in range(0, n, g):
        blk = list(range(b, min(n, b + g)))
        r = k % len(blk)
        out += blk[r:] + blk[:r]
    return out


def h2r_plan():
    plan = h2_plan()
    for gi in range(9, 17):
        s, hb, t = plan[gi][0]
        plan[gi] = [(s, hb, t, local_rot(14, (gi - 9) & 1, 2) if gi < 13 else local_rot(14, 7 * ((gi - 9) & 1), 14))]
    return plan


def build_stream(cu, tau=1000, gap=1200, ring=16, qsplit=0):
    RING = ring
    wave_t = [0] * NCONS
    ev = []
    for ji, (s, hb, tasks) in enumerate(cu):
        n = NT[s]
        start = min(wave_t[w] for w, _ in tasks)
        ev.append((start - 2, ji, 0, ('K', ji, 0)))
        for x, (w, qb) in enumerate(tasks):
            dl = max(start, wave_t[w] - 0) - 1
            if qsplit and dl < 0 and w >= 4:
                dl = tau // 2 + 1
            ev.append((dl, ji, 1 + x, ('Q', ji, x)))
        for t in range(n):
            if t > 0:
                ev.append((start + t * tau - tau // 2, ji, 0, ('K', ji, t)))
            ev.append((start + t * tau + (0 if t == 0 else tau // 4), ji, 50, ('V', ji, t)))
        for w, _ in tasks:
            wave_t[w] = max(wave_t[w], start) + n * tau + gap
    ev.sort(key=lambda e: (e[0] if e[0] % tau not in (tau - 1, tau - 2) else e[0] - e[0] % tau + tau - 2, e[1], e[2]))
    idx = {e[3]: i for i, e in enumerate(ev)}
    items = []
    for e in ev:
        ty, ji, x = e[3]
        s, hb, tasks = cu[ji]
        blk = tasks[x][1] if ty == 'Q' else x
        row0 = CU[s] + 32 * blk
        items.append((ty, row0, hb, min(32, CU[s + 1] - row0)))
    tl = []
    hdr = [[] for _ in range(NCONS)]
    for ji, (s, hb, tasks) in enumerate(cu):
        n = NT[s]
        tls = len(tl)
        for t in range(n):
            tl.append((idx[('K', ji, t + 1)] if t + 1 < n else 0, idx[('V', ji, t)]))
            assert idx[('K', ji, t)] < idx[('V', ji, t)]
            if t + 1 < n:
                assert idx[('V', ji, t)] < idx[('K', ji, t + 1)]
        for x, (w, qb) in enumerate(tasks):
            row0 = CU[s] + 32 * qb
            hdr[w].append(dict(row0=row0, hb=hb, nvq=min(32, CU[s + 1] - row0), n=n, qitem=idx[('Q', ji, x)],
                               k0=idx[('K', ji, 0)], tls=tls, nvl=L[s] - 32 * (n - 1)))
    for w in range(NCONS):
        last_needed = -1
        for h in hdr[w]:
            prog = min(h['qitem'], h['k0'])
            assert prog > last_needed, (prog, last_needed)
            assert max(h['qitem'], h['k0']) - prog <= RING - 1
            for t in range(h['n']):
                kn, vn = tl[h['tls'] + t]
                assert kn - prog <= RING - 1, (kn, prog)
                prog = vn
                last_needed = vn
            last_needed = max(last_needed, h['qitem'])
    assert len(items) <= 63 and len(tl) <= 64 and all(len(h) <= 3 for h in hdr), (len(items), len(tl))
    return items, tl, hdr


def h2_plan():
    plan = []
    W = list(range(8))

    def job(p, blocks, waves):
        assert len(blocks) == len(waves)
        return (p[0], p[1], list(zip(waves, blocks)))
    p14, p12, p11, p10, p8, p7, p6, p4 = (pairs_with(n) for n in (14, 12, 11, 10, 8, 7, 6, 4))
    R = lambda a, b: list(range(a, b))
    for i in range(4):
        plan.append([job(p8[i], R(0, 8), W), job(p6[i], R(0, 6), W[:6])])
    for i in range(3):
        plan.append([job(p7[2 * i], R(0, 7), W[:7]), job(p7[2 * i + 1], R(0, 7), W[:7])])
    for i in range(2):
        plan.append([job(p10[i], R(0, 8), W), job(p4[i], R(0, 4), W[:4])])
    for p in p14:
        plan.append([job(p, R(0, 7), W[:7])])
        plan.append([job(p, R(7, 14), W[:7])])
    for i in range(4):
        plan.append([job(p11[i], R(8, 11), [0, 1, 2]), job(p10[2 + i // 2], R(5 * (i % 2), 5 * (i % 2) + 5), [3, 4, 5, 6, 7])])
    for i in range(2):
        plan.append([job(p12[i], R(8, 12), W[:4]), job(p10[i], R(8, 10), [4, 5])])
    plan.append([job(p11[4], R(8, 11), [0, 1, 2]), job(p11[5], R(8, 11), [3, 4, 5])])
    for p in p12:
        plan.append([job(p, R(0, 8), W)])
    for p in p11:
        plan.append([job(p, R(0, 8), W)])
    assert len(plan) == 32, len(plan)
    return plan


def stream_from_order(cu, order, ring, pipe=False):
    idx = {k: i for i, k in enumerate(order)}
    items = []
    for key in order:
        if key[0] == 'X':
            _, ty, s, hb, b0, nb = key
            assert 1 <= nb <= 8 and b0 + nb <= NT[s]
            items.append((ty, CU[s] + 32 * b0, hb, min(CU[s + 1], CU[s] + 32 * (b0 + nb))))
            continue
        ty, ji, x = key
        s, hb, tasks = cu[ji][:3]
        blk = tasks[x][1] if ty == 'Q' else perm_of(cu[ji])[x]
        row0 = CU[s] + 32 * blk
        items.append((ty, row0, hb, CU[s + 1]))
    hdr = [[] for _ in range(NCONS)]
    for ji, job in enumerate(cu):
        s, hb, tasks = job[:3]
        n = NT[s]
        mpos = perm_of(job).index(n - 1)
        tl = []
        for t in range(n):
            tl.append((idx[('K', ji, t + 1)] if t + 1 < n else 0, idx[('V', ji, t)]))
            assert idx[('K', ji, t)] < idx[('V', ji, t)]
            if t + 1 < n:
                if pipe:
                    assert idx[('K', ji, t)] < idx[('K', ji, t + 1)] < idx[('V', ji, t + 1)] and idx[('V', ji, t)] < idx[('V', ji, t + 1)]
                    if t + 2 < n:
                        assert idx[('V', ji, t)] < idx[('K', ji, t + 2)]
                else:
                    assert idx[('V', ji, t)] < idx[('K', ji, t + 1)]
        for x, (w, qb) in enumerate(tasks):
            row0 = CU[s] + 32 * qb
            hdr[w].append(dict(row0=row0, hb=hb, nvq=min(32, CU[s + 1] - row0), n=n, qitem=idx[('Q', ji, x)],
                               k0=idx[('K', ji, 0)], tl=tl, nvl=L[s] - 32 * (n - 1), mpos=mpos))
    for w in range(NCONS):
        last_needed = -1
        for h in hdr[w]:
            prog = min(h['qitem'], h['k0'])
            assert prog > last_needed, (prog, last_needed)
            assert max(h['qitem'], h['k0']) - prog <= ring - 1
            for kn, vn in h['tl']:
                assert max(kn, vn) - prog <= ring - 1, (kn, prog)
                assert (min(kn, vn) if pipe and kn else vn) >= prog
                prog = min(kn, vn) if pipe and kn else vn
                last_needed = vn
            last_needed = max(last_needed, h['qitem'])
    return items, hdr


if __name__ == '__main__':
    plan = hand_plan()
    check_plan(plan)
    for i, cu in enumerate(plan):
        items, tl, hdr = build_stream(cu)
        load = [0] * 4
        for s, hb, tasks in cu:
            for w, qb in tasks:
                load[w % 4] += NT[s]
        print(i, [(NT[s], len(t)) for s, hb, t in cu], 'items', len(items), 'load', load)
        print('   ', ' '.join(f'{ty}{(r0)}' for ty, r0, hb, nv in items[:26]))
```

```python
import sys, os, argparse, struct, math
sys.path.insert(0, os.path.dirname(os.path.abspath(__file__)))
import plan as PL
import sim

NAME = 'standalone__varlen_attn_packed__ragged_kernel'
SLOT = 8704
KST, VST = 1056, 1088
GSTRIDE = 2560


def f2u(x):
    return struct.unpack('<I', struct.pack('<f', x))[0]


class Gen:
    def __init__(self, o):
        self.o = o
        self.L = []
        self.idx = 's8'
        self.m0save = 's9'

    def e(self, s):
        if s is None:
            return
        if isinstance(s, (list, tuple)):
            for x in s:
                self.e(x)
            return
        self.L.append('    ' + s)

    def lab(self, s):
        self.L.append(s + ':')

    def many(self, txt):
        for l in txt.strip().split('\n'):
            l = l.strip()
            if not l or l == 'None':
                continue
            if l.endswith(':'):
                self.L.append(l)
            else:
                self.e(l)

    def stamp(self, real=False, force=False):
        if not self.o.stamps or (self.o.mini and not force):
            return
        self.e('s_memrealtime s[34:35]' if real else 's_memtime s[34:35]')
        self.e('s_waitcnt lgkmcnt(0)')
        self.stampval('s34')

    def stampval(self, s):
        if not self.o.stamps:
            return
        if self.m0save:
            self.e(f's_mov_b32 {self.m0save}, m0')
        self.e(f's_mov_b32 m0, {self.idx}')
        self.e(f's_add_u32 {self.idx}, {self.idx}, 1')
        self.e(f'v_writelane_b32 v167, {s}, m0')
        if self.m0save:
            self.e(f's_mov_b32 m0, {self.m0save}')
            self.e('s_nop 0')

    def stamp_out(self):
        if self.o.probe:
            self.np = getattr(self, 'np', 0) + 1
            self.many(f'''
                s_waitcnt vmcnt(0)
                s_mov_b32 s3, 0x100000
                s_add_u32 s100, s100, {self.o.probe}
            PRB{self.np}:
                s_memrealtime s[34:35]
                s_waitcnt lgkmcnt(0)
                s_sub_u32 s3, s3, 1
                s_cbranch_scc1 PRBX{self.np}
                s_sub_u32 s35, s34, s100
                s_cmp_lt_i32 s35, 0
                s_cbranch_scc1 PRB{self.np}
            PRBX{self.np}:
            ''')
        if not self.o.stamps:
            return
        self.e(f's_mov_b32 {self.idx}, 62')
        self.stamp(force=True)
        self.stamp(real=True, force=True)
        self.many(f'''
            s_load_dwordx2 s[34:35], s[0:1], 48
            s_mul_i32 s3, s2, 12
            s_add_u32 s3, s3, s14
            s_lshl_b32 s3, s3, 8
            v_mbcnt_lo_u32_b32 v1, -1, 0
            v_mbcnt_hi_u32_b32 v1, -1, v1
            v_lshlrev_b32 v1, 2, v1
            v_add_u32 v1, s3, v1
            s_waitcnt lgkmcnt(0)
            global_store_dword v1, v167, s[34:35]
        ''')


O, Q, S, P, POOL = 0, 64, 96, 112, 120
vKb, vVb, vK, vV, vL, vNM, vLT, vT = 152, 153, 154, 155, 156, 157, 158, 159
FL = 160
vFA, vPA, vSW = 164, 165, 166
sC, sNC, sThr, sP, sSpin, sRem, sMaskAt, sFirst = 's16', 's17', 's18', 's19', 's20', 's21', 's22', 's23'
sE0, sE1, sE0p = 's24', 's25', 's26'
H = 28
TB = 36


def r(a, n):
    return f'v[{a}:{a + n - 1}]'


def pool(i):
    return r(POOL + 4 * i, 4)


def qk(i, c0=False):
    c = '0' if c0 else r(S, 16)
    return f'v_mfma_f32_32x32x16_bf16 {r(S, 16)}, {pool(i)}, {r(Q + 4 * i, 4)}, {c}'


def pv(slot, b, j):
    return f'v_mfma_f32_32x32x16_bf16 {r(O + 16 * b, 16)}, {pool(slot)}, {r(P + 4 * j, 4)}, {r(O + 16 * b, 16)}'


def kread(s, addr=vK):
    return f'ds_read_b128 {pool(s)}, v{addr} offset:{32 * s}'


def vread(slot, b, j):
    return [f'ds_read_b64_tr_b16 {r(POOL + 4 * slot + 2 * eh, 2)}, v{vV} offset:{(2 * j + eh) * 256 + 64 * b}'
            for eh in (0, 1)]


NOF = [0]


def F(a, b):
    if NOF[0]:
        return []
    return [f'v_fma_f32 v{S + i}, v{S + i}, {sC}, v{vNM}' for i in range(a, b)]


def E(a, b):
    return [f'v_exp_f32 v{S + i}, v{S + i}' for i in range(a, b)]


def A(a, b):
    return [f'v_add_f32 v{vLT}, v{S}, v{S + 1}' if i == 1 else f'v_add_f32 v{vLT}, v{vLT}, v{S + i}'
            for i in range(max(a, 1), b)]


def C(a, b):
    return [f'v_cvt_pk_bf16_f32 v{P + k}, v{S + 2 * k}, v{S + 2 * k + 1}' for k in range(a, b)]


def addr(dst, s, base):
    return f'v_mad_u32_u24 v{dst}, {s}, 1, v{base}'


def pub(g, a, val):
    if g.o.execpub:
        return ['s_mov_b64 exec, 1', f'ds_write_b32 v{a}, v{val}', 's_mov_b64 exec, -1']
    return [f'ds_write_b32 v{a}, v{val}']


def poll(g, tag, need):
    g.many(f'''
        s_cmp_gt_u32 {sP}, {need}
        s_cbranch_scc1 POLLOK_{tag}
    POLL_{tag}:
        ds_read_b128 {r(FL, 4)}, v{vFA}
        s_waitcnt lgkmcnt(0)
        v_min3_u32 v{FL}, v{FL}, v{FL + 1}, v{FL + 2}
        v_min_u32 v{FL}, v{FL}, v{FL + 3}
        s_sub_u32 {sSpin}, {sSpin}, 1
        s_cbranch_scc1 END
        v_readfirstlane_b32 {sP}, v{FL}
        s_cmp_gt_u32 {sP}, {need}
        s_cbranch_scc1 POLLOK_{tag}
        s_sleep {g.o.csleep}
        s_branch POLL_{tag}
    POLLOK_{tag}:
    ''')


def finewaits(seq, step, epub=0):
    q = ['V0', 'V0', 'V1', 'V1', 'W', 'V2', 'V2', 'V3', 'V3', 'V4', 'V4', 'V5', 'V5', 'V6', 'V6', 'FL', 'V7', 'V7']
    if epub:
        q.remove('W')
    out = []
    k = 0
    for x in seq:
        if x.startswith('s_waitcnt lgkmcnt'):
            continue
        if x.startswith('v_mfma'):
            if k % step == 0:
                need = 'V%d' % (k + step - 1)
                last = max(i for i, n in enumerate(q) if n == need)
                out.append(f's_waitcnt lgkmcnt({min(15, len(q) - 1 - last)})')
            k += 1
        if x.startswith('ds_read'):
            q.append('K')
        out.append(x)
    return out


def gen_loader(g, lay):
    o = g.o
    g.idx, g.m0save = 's32', None
    g.lab('LOADER')
    g.many(f'''
        s_setprio {o.lprio}
        s_and_b32 s20, s14, 1
        s_lshr_b32 s3, s14, 1
        s_lshl_b32 s23, s20, 24
        v_mov_b32 v2, s23
        v_lshrrev_b32 v5, 4, v0
        ds_write_b32 v3, v2
        v_and_b32 v4, 7, v0
        v_lshrrev_b32 v16, 3, v0
        v_lshlrev_b32 v4, 2, v4
        v_lshlrev_b32 v16, 1, v16
        v_add_u32 v4, {lay['PROGA']}, v4
        v_subrev_u32 v16, {lay['RING'] - 1}, v16
        v_mov_b32 v18, 0x2000000
        v_lshlrev_b32 v19, 4, v0
        v_add_u32 v19, {lay['STG'] + 7 * 4096}, v19
        v_and_b32 v6, 15, v0
        v_lshrrev_b32 v7, 5, v0
        v_xor_b32 v7, v7, v6
        v_lshlrev_b32 v5, 12, v5
        s_mul_i32 s30, s3, {4 * KST}
        s_mul_i32 s31, s3, {4 * VST}
        s_lshl_b32 s3, s3, 16
        v_add_u32 v5, s3, v5
        v_lshl_add_u32 v8, v7, 4, v5
        v_lshl_add_u32 v12, v6, 4, v5
        v_add_u32 v9, {16384 - KST}, v8
        v_add_u32 v13, {16384 - VST}, v12
        v_add_u32 v10, {2 * (16384 - KST)}, v8
        v_add_u32 v14, {2 * (16384 - VST)}, v12
        v_add_u32 v11, {3 * (16384 - KST)}, v8
        v_add_u32 v15, {3 * (16384 - VST)}, v12
        v_lshrrev_b32 v20, 1, v0
        v_and_b32 v21, 1, v0
        v_lshlrev_b32 v20, 12, v20
        s_lshl_b32 s3, s3, 1
        v_lshl_add_u32 v20, v21, 7, v20
        v_add_u32 v20, s3, v20
        v_add_u32 v21, 0x40000, v20
        v_add_u32 v22, 0x80000, v20
        v_add_u32 v23, 0xc0000, v20
        s_mov_b32 s19, 0x00020000
        s_mov_b32 s22, 0
        s_mov_b32 s26, {1000 if o.m1 else lay['RING']}
        s_mov_b32 s27, 0x40000
        s_mul_i32 s28, s20, {SLOT}
        s_mov_b32 s21, 0
        s_mov_b32 s13, 0
        s_waitcnt lgkmcnt(0)
    ''')
    g.stamp()
    if o.m3 == 1:
        g.e('v_mov_b32 v2, -1')
        g.e('ds_write_b32 v3, v2')
        g.e('s_waitcnt lgkmcnt(0)')
        g.e('s_barrier')
        g.e('s_branch L_END')
    g.many(f'''
        s_mov_b32 m0, 0
        s_add_u32 s4, s4, s15
        s_addc_u32 s5, s5, 0
        s_add_u32 s6, s6, s15
        s_addc_u32 s7, s7, 0
        s_add_u32 s8, s8, s15
        s_addc_u32 s9, s9, 0
        s_mov_b32 s11, 0x00020000
    ''')
    if o.probe2:
        g.many(f'''
        s_mov_b32 s33, 0
        s_cmp_ge_u32 s2, {o.p1max * 8}
        s_cbranch_scc1 P1X
    P1:
        s_mov_b32 m0, s33
        s_nop 0
        s_movrels_b64 s[24:25], s[{TB}:{TB + 1}]
        s_bfe_u32 s12, s25, 0x20002
        s_cmp_eq_u32 s12, 0
        s_cbranch_scc1 P1X
        {'s_lshr_b32 s3, s25, 3' if o.probe3 else None}
        {'s_add_u32 s3, s3, s15' if o.probe3 else None}
        {'s_and_b32 s3, s3, 0xe00' if o.probe3 else None}
        {'s_sub_u32 s3, s3, s15' if o.probe3 else None}
        {'s_add_u32 s24, s24, s3' if o.probe3 else None}
        s_bitcmp1_b32 s25, 0
        s_cbranch_scc1 P1V
        s_add_u32 m0, s30, {lay['STG']}
        s_bitcmp1_b32 s25, 1
        s_cselect_b64 s[16:17], s[6:7], s[4:5]
        s_mov_b32 s18, s25
        buffer_load_dwordx4 v8, s[16:19], s24 offen lds
        buffer_load_dwordx4 v9, s[16:19], s24 offen offset:{KST} lds
        buffer_load_dwordx4 v10, s[16:19], s24 offen offset:{2 * KST} lds
        buffer_load_dwordx4 v11, s[16:19], s24 offen offset:{3 * KST} lds
        s_branch P1D
    P1V:
        s_add_u32 m0, s31, {lay['STG']}
        s_mov_b32 s10, s25
        buffer_load_dwordx4 v12, s[8:11], s24 offen lds
        buffer_load_dwordx4 v13, s[8:11], s24 offen offset:{VST} lds
        buffer_load_dwordx4 v14, s[8:11], s24 offen offset:{2 * VST} lds
        buffer_load_dwordx4 v15, s[8:11], s24 offen offset:{3 * VST} lds
    P1D:
        s_add_u32 s33, s33, 2
        s_waitcnt vmcnt({o.probe2})
        ''')
        g.stamp(force=True)
        g.many(f'''
        s_branch P1
    P1X:
        s_waitcnt vmcnt(0)
        ''')
        g.stamp(force=True)
        if o.stamps:
            g.many('''
        s_mov_b32 s3, 0x10000
    P1W:
        s_sleep 8
        s_memtime s[34:35]
        s_waitcnt lgkmcnt(0)
        s_sub_u32 s3, s3, 1
        s_cbranch_scc1 P1WX
        s_sub_u32 s34, s34, s100
        s_cmp_lt_u32 s34, 32000
        s_cbranch_scc1 P1W
    P1WX:
            ''')
        g.many(f'''
        s_memrealtime s[34:35]
        s_waitcnt lgkmcnt(0)
        s_sub_u32 s34, s34, s100
        s_lshl_b32 s34, s34, 2
        s_mov_b32 m0, 0
        s_add_u32 s100, s100, s34
        s_nop 1
        ''')
    nt = o.nt

    def dup(a, srd, st):
        if o.dup == 1:
            return '\n' + '\n'.join(f'buffer_load_dwordx4 v{a + i}, {srd}, s24 offen offset:{i * st} lds' for i in range(4))
        if o.dup == 2:
            return '\n' + '\n'.join(f'buffer_load_dwordx4 v[{32 + 4 * i}:{35 + 4 * i}], v{a + i}, {srd}, s24 offen offset:{i * st}' for i in range(4))
        if o.dup == 3:
            return '\n' + '\n'.join(f'ds_write_b128 v19, v[{32 + 4 * i}:{35 + 4 * i}] offset:{i * 1024}' for i in range(4))
        return ''

    sep = ['\n']

    def kload(n=''):
        return sep[0].join(f'buffer_load_dwordx4 v{8 + i}, s[16:19], s24 offen offset:{i * KST}{n} lds' for i in range(4)) + dup(8, 's[16:19]', KST)

    def vload(n=''):
        return sep[0].join(f'buffer_load_dwordx4 v{12 + i}, s[8:11], s24 offen offset:{i * VST}{n} lds' for i in range(4)) + dup(12, 's[8:11]', VST)

    def done(nxt):
        st = ''
        if o.sst:
            st = f'''
            s_memtime s[34:35]
            s_and_b32 m0, s20, -2
            s_waitcnt lgkmcnt(0)
            s_movreld_b32 s{TB}, s34
            '''
        return st + f'''
        s_add_u32 s20, s20, 2
        s_add_u32 s28, s28, {2 * SLOT}
        s_and_b32 m0, s20, -2
        s_sub_u32 s3, s28, {lay['RINGB']}
        s_cselect_b32 s28, s28, s3
        s_add_u32 s22, s22, 1
        s_branch {nxt}
        '''

    def trick(x):
        l = x.split('\n')
        return '\n'.join([l[0], l[1], 's_waitcnt vmcnt(1)', l[2], 's_waitcnt vmcnt(1)', l[3]])

    def issue(p, nxt):
        return f'''
        {'s_bitcmp1_b32 s25, 6' if o.px else None}
        {f's_cbranch_scc1 {p}_X' if o.px else None}
        s_bitcmp1_b32 s25, 0
        s_cbranch_scc1 {p}_V
        s_add_u32 m0, s28, s30
        s_bitcmp1_b32 s25, 1
        s_cselect_b64 s[16:17], s[6:7], s[4:5]
        s_mov_b32 s18, s25
        {'s_bitcmp1_b32 s25, 4' if nt else None}
        {f's_cbranch_scc1 {p}_KN' if nt else None}
        {'s_bitcmp1_b32 s25, 5' if o.trick else None}
        {f's_cbranch_scc1 {p}_KT' if o.trick else None}
        {kload()}
    {p}_DONE:
        {done(nxt)}
    {p}_V:
        s_add_u32 m0, s28, s31
        s_mov_b32 s10, s25
        {'s_bitcmp1_b32 s25, 4' if nt else None}
        {f's_cbranch_scc1 {p}_VN' if nt else None}
        {'s_bitcmp1_b32 s25, 5' if o.trick else None}
        {f's_cbranch_scc1 {p}_VT' if o.trick else None}
        {vload()}
        {done(nxt)}
        ''' + (f'''
    {p}_KN:
        {kload(' nt')}
        s_branch {p}_DONE
    {p}_VN:
        {vload(' nt')}
        s_branch {p}_DONE
        ''' if nt else '') + (f'''
    {p}_KT:
        {trick(kload())}
        s_branch {p}_DONE
    {p}_VT:
        {trick(vload())}
        s_branch {p}_DONE
        ''' if o.trick else '') + (f'''
    {p}_X:
        s_bitcmp1_b32 s25, 1
        s_cselect_b64 s[16:17], s[6:7], s[4:5]
        s_bitcmp1_b32 s25, 0
        s_cselect_b64 s[16:17], s[8:9], s[16:17]
        s_mov_b32 s18, s25
        buffer_load_dword v25, v20, s[16:19], s24 offen
        buffer_load_dword v26, v21, s[16:19], s24 offen
        buffer_load_dword v27, v22, s[16:19], s24 offen
        buffer_load_dword v28, v23, s[16:19], s24 offen
        s_branch {p}_DONE
        ''' if o.px else '')
    if o.nb:
        fail = f'''
        s_lshl_b32 s13, s22, 2
        s_mov_b32 s29, {o.nb - 1}
    L_F1:
        s_getreg_b32 s3, hwreg(HW_REG_IB_STS, 0, 4)
        s_add_u32 s3, s3, 4
        s_cmp_le_u32 s3, s13
        s_cbranch_scc1 L_WAIT
        s_sleep 1
        s_sub_u32 s29, s29, 1
        s_cbranch_scc0 L_F1
        s_sub_u32 s27, s27, 1
        s_cbranch_scc0 L_POLL
        s_branch END
        '''
    else:
        fail = f'''
        s_cmp_gt_u32 s22, 0
        s_cbranch_scc1 L_WAIT
        s_sub_u32 s27, s27, 1
        s_cbranch_scc1 END
        s_sleep {o.lsleep}
        s_branch L_POLL
        '''
    g.many(f'''
    S_NEXT:
        s_movrels_b64 s[24:25], s[{TB}:{TB + 1}]
        s_bfe_u32 s12, s25, 0x20002
        s_cmp_ge_u32 s22, s12
        s_cbranch_scc1 L_FIRST
        {issue('S', 'S_NEXT')}
    L_FIRST:
    ''')
    g.stamp()
    if o.pace:
        sep[0] = f'\ns_sleep {o.pace}\n'
    g.many(f'''
        s_barrier
        s_branch L_WAIT
    L_NEXT:
        s_movrels_b64 s[24:25], s[{TB}:{TB + 1}]
        s_bfe_u32 s12, s25, 0x20002
        s_cmp_lt_u32 s22, s12
        s_cbranch_scc1 L_CHK
    L_WAIT:
        s_cmp_eq_u32 s22, 3
        s_cbranch_scc0 L_W2
        s_waitcnt vmcnt({16 if o.dup in (1, 2) else 8})
    L_PUB:
        s_mov_b64 exec, 1
        ds_add_u32 v3, v18
        s_mov_b64 exec, -1
        s_sub_u32 s22, s22, 1
    ''')
    if o.lstamp:
        g.stamp()
    if o.sst:
        g.many(f'''
        s_memtime s[34:35]
        s_mov_b32 m0, s21
        s_add_u32 s21, s21, 2
        s_waitcnt lgkmcnt(0)
        s_movreld_b32 s{TB + 1}, s34
        ''')
    g.many(f'''
        s_cmp_ge_u32 s22, s12
        s_cbranch_scc1 L_WAIT
    L_CHK:
        s_cmp_lt_u32 s20, s26
        s_cbranch_scc1 L_ISSUE
    L_POLL:
        ds_read_b32 v24, v4
        {f's_setprio {o.pprio}' if o.pprio != o.lprio else None}
        v_add_u32 v17, s20, v16
        s_waitcnt lgkmcnt(0)
        v_cmp_gt_u32_sdwa vcc, v17, v24 src0_sel:DWORD src1_sel:BYTE_3
        {f's_setprio {o.lprio}' if o.pprio != o.lprio else None}
        s_ff1_i32_b64 s3, vcc
        s_min_u32 s3, s3, 64
        s_lshr_b32 s3, s3, 3
        s_cbranch_scc0 L_FAIL
        s_lshl1_add_u32 s26, s3, s20
    L_ISSUE:
        {issue('L', 'L_NEXT')}
    L_FAIL:
        {fail}
    L_W2:
        s_cmp_eq_u32 s22, 2
        s_cbranch_scc0 L_W1
        s_waitcnt vmcnt({8 if o.dup in (1, 2) else 4})
        s_branch L_PUB
    L_W1:
        s_cmp_eq_u32 s22, 0
        s_cbranch_scc1 L_END
        s_waitcnt vmcnt(0)
        s_branch L_PUB
    L_END:
    ''')
    if o.sst:
        for i in range(56):
            g.e(f'v_writelane_b32 v167, s{TB + i}, {6 + i}')
    g.stamp_out()
    g.e('s_endpgm')


def gen_consumer(g, lay):
    o = g.o
    c = 128 ** -0.5 * math.log2(math.e)
    st = o.stpol
    g.idx, g.m0save = 's8', 's9'
    pr = o.prio
    g.lab('CONSUMER')
    g.many(f'''
        v_mov_b32 v{vFA}, {lay['FULLA']}
        v_mov_b32 v{vPA}, v3
        v_and_b32 v1, 7, v0
        v_mul_u32_u24 v{vKb}, {KST}, v1
        v_bfe_u32 v2, v0, 3, 2
        v_lshl_add_u32 v{vKb}, v2, 8, v{vKb}
        v_lshrrev_b32 v3, 5, v0
        v_bfe_u32 v4, v0, 4, 1
        v_xor_b32 v5, v3, v4
        v_lshl_add_u32 v{vKb}, v5, 4, v{vKb}
        v_bfe_u32 v5, v0, 2, 2
        v_lshl_add_u32 v5, v3, 2, v5
        v_mul_u32_u24 v{vVb}, {VST}, v5
        v_lshl_add_u32 v{vVb}, v4, 5, v{vVb}
        v_and_b32 v5, 1, v0
        v_lshl_add_u32 v{vVb}, v5, 4, v{vVb}
        v_bfe_u32 v5, v0, 1, 1
        v_lshl_add_u32 v{vVb}, v5, 3, v{vVb}
        v_bfe_u32 v5, v0, 2, 1
        v_lshl_add_u32 v2, v5, 4, v2
        v_and_b32 v5, 3, v0
        v_lshl_add_u32 v2, v5, 2, v2
        s_lshl_b32 s3, s14, 12
        s_add_u32 s3, s3, {lay['STG'] - 4 * 4096}
        v_xor_b32 v1, v1, v3
        v_lshlrev_b32 v1, 4, v1
        v_lshl_add_u32 v2, v2, 7, v1
        v_add_u32 v{vSW}, s3, v2
        s_mov_b32 s13, s3
        s_mov_b32 {sC}, {hex(f2u(c))}
        s_mov_b32 {sNC}, {hex(f2u(-c))}
        s_mov_b32 {sThr}, {hex(f2u(2.0 ** 24))}
        s_mov_b32 {sP}, 0
        s_mov_b32 {sSpin}, 0x40000
        s_mov_b32 m0, 0
        s_waitcnt lgkmcnt(0)
        v_mov_b32 v{vT}, s{TB + 5}
        s_mov_b32 s7, 0x00020000
        s_add_u32 s10, s10, s15
        s_addc_u32 s11, s11, 0
    ''')
    g.e(pub(g, vPA, vT))
    g.many('''
        s_waitcnt lgkmcnt(0)
        s_barrier
    ''')
    if o.stamps:
        g.e('s_mov_b32 s8, 5')
        g.e('s_mov_b32 s12, 0')
    g.stamp()
    g.lab('TASK')
    g.many(f'''
        s_movrels_b64 s[{H}:{H + 1}], s[{TB}:{TB + 1}]
        s_movrels_b64 s[{H + 2}:{H + 3}], s[{TB + 2}:{TB + 3}]
        s_movrels_b64 s[{H + 4}:{H + 5}], s[{TB + 4}:{TB + 5}]
        s_movrels_b64 s[24:25], s[{TB + 6}:{TB + 7}]
        s_add_u32 m0, m0, 8
        s_cmp_eq_u32 s{H + 1}, 0
        s_cbranch_scc1 C_END
        v_mov_b32 v{P}, 0
        v_mov_b32 v{P + 1}, 0
        v_mov_b32 v{P + 2}, 0
        v_mov_b32 v{P + 3}, 0
        v_mov_b32 v{vL}, 0
        v_mov_b32 v{vNM}, 0x7f800000
    ''')
    zero = [f'v_mfma_f32_32x32x16_bf16 {r(O + 16 * b, 16)}, {r(P, 4)}, {r(P, 4)}, 0' for b in range(4)]
    if not o.zf:
        g.e(zero)
    g.many(f'''
        s_lshr_b32 {sRem}, s{H + 4}, 24
        s_and_b32 {sMaskAt}, s{H + 5}, 0xff
        s_mov_b32 {sE0p}, s{H + 4}
        {addr(vV, f's{H + 3}', vKb)}
        s_mov_b32 {sFirst}, 1
    ''')
    poll(g, 'T', f's{H + 3}')
    g.stamp()
    for s in range(8):
        g.e(f'ds_read_b128 {r(Q + 4 * s, 4)}, v{vV} offset:{32 * s}')
    g.lab('FRESH')
    g.e(addr(vK, sE0p, vKb))
    g.e('s_waitcnt lgkmcnt(7)')
    for s in range(8):
        g.e(kread(s))
    g.many(f'''
        s_cmp_eq_u32 {sRem}, {sMaskAt}
        s_cbranch_scc1 FMASK
        s_waitcnt lgkmcnt(7)
        {qk(0, True)}
    F_BACK:
        ds_read_b128 {r(FL, 4)}, v{vFA}
    ''')
    for s in range(1, 8):
        g.e(f's_waitcnt lgkmcnt({8 - s})')
        g.e(qk(s))
    if o.zf:
        g.e(f's_cmp_eq_u32 {sFirst}, 0')
        g.e('s_cbranch_scc1 F_NZ')
        g.e(zero)
        g.lab('F_NZ')
    t0, t1 = FL, FL + 1
    g.many(f'''
        s_waitcnt lgkmcnt(0)
        v_min3_u32 v{FL}, v{FL}, v{FL + 1}, v{FL + 2}
        v_mov_b32 v{vT}, {sE1}
        v_min_u32 v{FL}, v{FL}, v{FL + 3}
        ds_write_b32 v{vPA}, v{vT}
        {addr(vK, sE0, vKb)}
        v_readfirstlane_b32 {sP}, v{FL}
        {addr(vV, sE1, vVb)}
        s_cmp_gt_u32 {sP}, {sE0}
        s_cbranch_scc0 F_NOK
    ''')
    for s in range(8):
        g.e(kread(s))
    g.many(f'''
    F_NOK:
        s_nop 3
        v_max3_f32 v{t0}, v{S}, v{S + 1}, v{S + 2}
        v_max3_f32 v{t1}, v{S + 3}, v{S + 4}, v{S + 5}
        v_max3_f32 v{t0}, v{t0}, v{S + 6}, v{S + 7}
        v_max3_f32 v{t1}, v{t1}, v{S + 8}, v{S + 9}
        v_max3_f32 v{t0}, v{t0}, v{S + 10}, v{S + 11}
        v_max3_f32 v{t1}, v{t1}, v{S + 12}, v{S + 13}
        v_max3_f32 v{t0}, v{t0}, v{S + 14}, v{S + 15}
        v_max_f32 v{t0}, v{t0}, v{t1}
        v_mov_b32 v{t1}, v{t0}
        s_nop 1
        v_permlane32_swap_b32 v{t0}, v{t1}
        v_max_f32 v{t0}, v{t0}, v{t1}
        v_mul_f32 v{t0}, {sNC}, v{t0}
        v_min_f32 v{t0}, v{t0}, v{vNM}
        s_cmp_eq_u32 {sFirst}, 0
        s_cbranch_scc1 RESCALE
    R_BACK:
        v_mov_b32 v{vNM}, v{t0}
        s_mov_b32 {sFirst}, 0
    ''')
    g.e(F(0, 16) + E(0, 16) + A(1, 16) + C(0, 8))
    g.stamp()
    if o.epub:
        g.e('s_waitcnt lgkmcnt(0)')
    g.e(f's_cmp_gt_u32 {sP}, {sE0}')
    g.e('s_cbranch_scc1 CONT')
    g.lab('LATE')
    if o.stamps and not o.mini:
        g.e('s_memtime s[100:101]')
        g.e('s_waitcnt lgkmcnt(0)')
    poll(g, 'L', sE0)
    if o.stamps and not o.mini:
        g.e('s_memtime s[34:35]')
        g.e('s_waitcnt lgkmcnt(0)')
        g.e('s_sub_u32 s34, s34, s100')
        g.e('s_add_u32 s12, s12, s34')
    for s in range(8):
        g.e(kread(s))
    if o.epub:
        g.e('s_waitcnt lgkmcnt(0)')
    g.e('s_branch CONT')
    g.L.append('.p2align 4') if o.align else None
    g.lab('LOOP')
    NOF[0] = o.nof
    loop_start = len(g.L)
    g.e(f's_waitcnt lgkmcnt({1 if o.epub else 0})')
    if pr:
        g.e(f's_setprio {pr[0]}')
    g.e(qk(0, True))
    g.lab('L_BACK')
    if pr and not o.pl:
        g.e(f's_setprio {pr[1]}')
    mins = [f'v_min3_u32 v{FL}, v{FL}, v{FL + 1}, v{FL + 2}', f'v_min_u32 v{FL}, v{FL}, v{FL + 3}']
    rfl = [f'v_readfirstlane_b32 {sP}, v{FL}'] + ([f'v_mov_b32 v{FL + 1}, {sE1}'] if o.epub else [])
    cmpv = [f'v_cmp_nge_f32 vcc, {sThr}, v{vLT}']
    lo = [f's_setprio {pr[2]}'] if pr else []
    flr = f'ds_read_b128 {r(FL, 4)}, v{vFA}'
    if o.sched <= 3:
        gapA = {0: [f'v_mov_b32 v{vT}, {sE1}'],
                1: pub(g, vPA, vT) + [f'v_add_f32 v{vL}, v{vL}, v{vLT}'],
                2: [f's_mov_b32 {sE0p}, {sE0}', f's_movrels_b64 s[24:25], s[{TB}:{TB + 1}]', 's_add_u32 m0, m0, 2'],
                7: [flr, addr(vK, sE0, vKb), addr(vV, sE1, vVb)]}
    else:
        gapA = {0: [f'v_mov_b32 v{vT}, {sE1}'] if not o.epub else [],
                1: pub(g, vPA, vT) if not o.epub else [],
                2: [f'v_add_f32 v{vL}, v{vL}, v{vLT}', f's_mov_b32 {sE0p}, {sE0}'],
                3: [f's_movrels_b64 s[24:25], s[{TB}:{TB + 1}]'],
                4: ['s_add_u32 m0, m0, 2'],
                5: [addr(vK, sE0, vKb)],
                6: [flr]}
    for m in range(8):
        if m > 0:
            g.e(qk(m))
        g.e(vread(m, m % 4, m // 4))
        g.e(gapA.get(m))

    def vseg(e0, f0=16):
        out = F(f0, 16)
        acc = [vLT, vT]
        tail = []
        done = e0
        q = []
        adds = []
        for i in range(2, 16):
            adds.append((i, f'v_add_f32 v{acc[i & 1]}, v{S + i - 2}, v{S + i}' if i < 4 else f'v_add_f32 v{acc[i & 1]}, v{acc[i & 1]}, v{S + i}'))
        cv = [(2 * k + 1, C(k, k + 1)[0]) for k in range(8)]
        ai = ci = 0
        for i in range(e0, 16):
            out += E(i, i + 1)
            if ai < len(adds) and adds[ai][0] < i:
                out.append(adds[ai][1]); ai += 1
            if i % 2 and ci < 5 and cv[ci][0] < i:
                out.append(cv[ci][1]); ci += 1
            elif ai < len(adds) and adds[ai][0] < i:
                out.append(adds[ai][1]); ai += 1
        out.append(cv[ci][1]); ci += 1
        out += [a for _, a in adds[ai:]]
        out.append(f'v_add_f32 v{vLT}, v{vLT}, v{vT}')
        out += cmpv + [c_ for _, c_ in cv[ci:]]
        return out
    seq = ['s_waitcnt lgkmcnt(9)', pv(0, 0, 0)]
    if o.sched > 3:
        seq += [addr(vV, sE1, vVb)]
    seq += [pv(1, 1, 0)]
    if o.sched == 1:
        seq += ['s_nop 3'] + F(0, 4) + [pv(2, 2, 0)] + F(4, 8) + [pv(3, 3, 0)]
        seq += [kread(s) for s in range(4)] + ['s_waitcnt lgkmcnt(4)', pv(4, 0, 1), kread(4)]
        seq += F(8, 12) + [pv(5, 1, 1), kread(5)] + F(12, 16) + [pv(6, 2, 1), kread(6)] + mins
        seq += [pv(7, 3, 1), kread(7)] + lo + rfl + E(0, 16) + A(1, 16) + cmpv + C(0, 8)
    elif o.sched in (2, 4, 5):
        seq += [kread(0), kread(1), pv(2, 2, 0), kread(2)] + F(0, 4) + [pv(3, 3, 0), kread(3)] + F(4, 8 if o.sched < 4 else 7)
        seq += ['s_waitcnt lgkmcnt(4)', pv(4, 0, 1), kread(4)]
        if o.sched == 2:
            seq += F(8, 12) + [pv(5, 1, 1), kread(5)] + F(12, 16) + [pv(6, 2, 1), kread(6)] + mins + E(0, 1)
        else:
            seq += F(7, 11) + [pv(5, 1, 1), kread(5)] + F(11, 15) + [pv(6, 2, 1), kread(6)] + F(15, 16) + mins
        seq += [pv(7, 3, 1), kread(7)] + lo + rfl
        if o.sched == 2:
            seq += E(1, 16) + A(1, 16) + cmpv + C(0, 8)
        elif o.sched == 4:
            seq += E(0, 16) + A(1, 16) + cmpv + C(0, 8)
        else:
            seq += vseg(0)
    elif o.sched in (3, 6):
        seq += [kread(0), kread(1), pv(2, 2, 0), kread(2)] + F(0, 4) + [pv(3, 3, 0), kread(3)] + F(4, 6) + E(0, 1)
        seq += ['s_waitcnt lgkmcnt(4)', pv(4, 0, 1), kread(4)]
        seq += F(6, 8) + E(1, 2) + [pv(5, 1, 1), kread(5)] + F(8, 10) + E(2, 3) + [pv(6, 2, 1), kread(6)] + mins + E(3, 4)
        seq += [pv(7, 3, 1), kread(7)] + lo + rfl
        if o.sched == 3:
            seq += F(10, 16) + E(4, 16) + A(1, 16) + cmpv + C(0, 8)
        else:
            seq += vseg(4, 10)
    elif o.sched == 7:
        seq += [kread(0), kread(1), pv(2, 2, 0), kread(2)] + F(0, 3) + [pv(3, 3, 0), kread(3)] + F(3, 5)
        seq += ['s_waitcnt lgkmcnt(4)', pv(4, 0, 1), kread(4)]
        seq += F(5, 8) + [pv(5, 1, 1), kread(5)] + F(8, 11) + [pv(6, 2, 1), kread(6)] + mins
        seq += [pv(7, 3, 1), kread(7)] + lo + rfl + vseg(0, 11)
    elif o.sched == 8:
        seq += [kread(0), kread(1), pv(2, 2, 0), kread(2), 's_nop 0'] + E(0, 1) + [pv(3, 3, 0), kread(3)] + E(1, 3)
        seq += ['s_waitcnt lgkmcnt(4)', pv(4, 0, 1), kread(4)]
        seq += E(3, 5) + [pv(5, 1, 1), kread(5)] + E(5, 7) + [pv(6, 2, 1), kread(6)] + mins + E(7, 8)
        seq += [pv(7, 3, 1), kread(7)] + lo + rfl + vseg(8, 16)
    elif o.sched == 9:
        seq += [kread(0), kread(1), pv(2, 2, 0), kread(2)] + [pv(3, 3, 0), kread(3)]
        seq += ['s_waitcnt lgkmcnt(4)', pv(4, 0, 1), kread(4)]
        seq += [pv(5, 1, 1), kread(5)] + [pv(6, 2, 1), kread(6)] + mins
        seq += [pv(7, 3, 1), kread(7)] + lo + rfl + vseg(0, 16)
    if o.klate:
        ks = [x for x in seq if x.startswith('ds_read_b128')]
        seq = [x for x in seq if not x.startswith('ds_read_b128')]
        seq = ['s_waitcnt lgkmcnt(0)' if x == 's_waitcnt lgkmcnt(4)' else x for x in seq]
        i = seq.index(rfl[0]) + 1
        tail = seq[i:]
        seq = seq[:i]
        if o.klate == 1:
            seq += ks + tail
        else:
            for k, x in enumerate(tail):
                if k < 8:
                    seq.append(ks[k])
                seq.append(x)
    if o.fine:
        seq = finewaits(seq, o.fine, o.epub)
    g.e(seq)
    if o.pl:
        lad = dict((int(a), int(b)) for a, b in (x.split(':') for x in o.pl.split(',')))
        body = g.L[loop_start:]
        del g.L[loop_start:]
        k = 0
        for x in body:
            g.L.append(x)
            if 'v_mfma' in x:
                k += 1
                if k in lad:
                    g.e(f's_setprio {lad[k]}')
    g.many(f'''
        {'s_nop 0' if o.m3 or o.m5 else 's_cbranch_vccnz FRESH'}
        {f'ds_write_b32 v{vPA}, v{FL + 1}' if o.epub else None}
        s_cmp_gt_u32 {sP}, {sE0}
        s_cbranch_scc0 LATE
    CONT:
    ''')
    if o.itst:
        g.stamp()
    g.many(f'''
        s_sub_u32 {sRem}, {sRem}, 1
        s_cbranch_scc1 FINAL
        s_cmp_eq_u32 {sRem}, {sMaskAt}
        s_cbranch_scc0 LOOP
        s_mov_b32 s27, 0
    MASK:
        v_mov_b32 v{FL}, s{H + 2}
        s_mov_b32 exec_lo, 0
        v_lshrrev_b32 v{FL}, 16, v{FL}
        s_mov_b32 exec_lo, -1
    ''')
    for i in range(16):
        bit = 4 * (i % 4) + i // 4
        g.e(f'v_bfe_i32 v{S + i}, v{FL}, {bit}, 1')
    for i in range(16):
        g.e(f'v_lshlrev_b32 v{S + i}, 23, v{S + i}')
    g.many(f'''
        s_waitcnt lgkmcnt(0)
        s_cmp_eq_u32 s27, 0
        {qk(0)}
        s_cbranch_scc1 L_BACK
        s_branch F_BACK
    ''')
    g.lab('FINAL')
    g.stamp()
    order = [(b, j) for b in range(4) for j in range(2)]
    g.e('s_waitcnt lgkmcnt(4)')
    for k in range(5):
        g.e(vread(k, *order[k]))
    X = S
    vW = [vSW, X, X + 1, X + 2]
    vR = [X + 4, X + 5, X + 6, X + 7]
    vG = [X + 8, X + 9, X + 10, X + 11]
    ln = X + 12

    def mul(b):
        if o.pk:
            return [f'v_pk_mul_f32 {r(O + 16 * b + i, 2)}, {r(O + 16 * b + i, 2)}, {r(vL, 2)} op_sel_hi:[1,0]' for i in range(0, 16, 2)]
        return [f'v_mul_f32 v{O + 16 * b + i}, v{O + 16 * b + i}, v{vL}' for i in range(16)]

    def blk(b):
        m = mul(b)
        h = len(m) // 2
        out = []
        for gq in range(2):
            d = Q + 8 * b + 4 * gq
            out += m[gq * h:(gq + 1) * h]
            for k in range(4):
                i = O + 16 * b + 8 * gq + 2 * k
                out.append(f'v_cvt_pk_bf16_f32 v{d + k}, v{i}, v{i + 1}')
            out.append(f'ds_write_b128 v{vW[2 * (b & 1) + gq]}, {r(d, 4)}')
        return out

    def rd(rnd):
        return [f'ds_read_b128 {r(O + 32 * rnd + 4 * k, 4)}, v{vR[k]} offset:{1024 * k}' for k in range(4)]

    def stv(rnd, extra):
        out = []
        for k in range(4):
            out.append(f's_waitcnt lgkmcnt({3 - k + extra})')
            out.append(f'buffer_store_dwordx4 {r(O + 32 * rnd + 4 * k, 4)}, v{vG[k]}, s[4:7], 0 offen offset:{128 * rnd}{st}')
        return out
    seq = []
    seq += [f'v_add_f32 v{vL}, v{vL}, v{vLT}', f's_movrels_b32 s3, s{TB + 5}', f's_add_u32 s4, s10, s{H}',
            f'v_mov_b32 v{FL + 1}, v{vL}', f's_addc_u32 s5, s11, 0', f's_mov_b32 s6, s{H + 1}',
            f'v_permlane32_swap_b32 v{vL}, v{FL + 1}', f'v_mov_b32 v{vT}, s3',
            f'v_add_f32 v{vL}, v{vL}, v{FL + 1}',
            f'v_mbcnt_lo_u32_b32 v{ln}, -1, 0', f'v_rcp_f32 v{vL}, v{vL}', f'v_mbcnt_hi_u32_b32 v{ln}, -1, v{ln}']
    if o.eprio:
        seq += [f's_setprio {o.eprio[0]}']
    seq += ['s_waitcnt lgkmcnt(8)', pv(0, *order[0])] + vread(5, *order[5])
    seq += [f'v_lshrrev_b32 v{ln + 1}, 3, v{ln}', f'v_and_b32 v{ln + 2}, 7, v{ln}', f'v_lshrrev_b32 v{ln}, 5, v{ln}']
    seq += ['s_waitcnt lgkmcnt(8)', pv(1, *order[1])] + vread(6, *order[6])
    seq += [f'v_xor_b32 v{ln}, v{ln}, v{ln + 2}', f'v_lshl_add_u32 v{vR[0]}, v{ln + 1}, 7, s13', f'v_xor_b32 v{vW[1]}, 32, v{vSW}']
    seq += ['s_waitcnt lgkmcnt(8)', pv(2, *order[2])] + vread(7, *order[7])
    seq += [f'v_lshl_add_u32 v{vR[0]}, v{ln}, 4, v{vR[0]}', f'v_xor_b32 v{vW[2]}, 64, v{vSW}', f'v_xor_b32 v{vW[3]}, 0x60, v{vSW}']
    b0 = blk(0)
    k = 5
    seq += ['s_waitcnt lgkmcnt(8)', pv(3, *order[3])] + b0[:k]
    nw = lambda x: sum(1 for i in x if i.startswith('ds_write'))
    seq += [f's_waitcnt lgkmcnt({6 + nw(b0[:k])})', pv(4, *order[4])] + b0[k:2 * k]
    seq += [f's_waitcnt lgkmcnt({4 + nw(b0[:2 * k])})', pv(5, *order[5])] + b0[2 * k:3 * k]
    seq += [f's_waitcnt lgkmcnt({2 + nw(b0[:3 * k])})', pv(6, *order[6])] + b0[3 * k:4 * k]
    seq += [f's_waitcnt lgkmcnt({nw(b0[:4 * k])})', pv(7, *order[7])]
    seq += pub(g, vPA, vT)
    if o.eprio:
        seq += [f's_setprio {o.eprio[1]}']
        if len(o.eprio) > 3:
            seq += ['s_cmp_eq_u32 s3, 0xff000000', 's_cbranch_scc1 E_LAST', f's_setprio {o.eprio[3]}', 'E_LAST:']
    seq += b0[4 * k:] + blk(1)
    seq += [f'v_xor_b32 v{vR[1]}, 32, v{vR[0]}', f'v_xor_b32 v{vR[2]}, 64, v{vR[0]}', f'v_xor_b32 v{vR[3]}, 0x60, v{vR[0]}']
    seq += rd(0)
    seq += [f'v_lshlrev_b32 v{vG[0]}, 12, v{ln + 1}', f'v_lshl_add_u32 v{vG[0]}, v{ln + 2}, 4, v{vG[0]}',
            f'v_add_u32 v{vG[1]}, 0x8000, v{vG[0]}', f'v_add_u32 v{vG[2]}, 0x10000, v{vG[0]}', f'v_add_u32 v{vG[3]}, 0x18000, v{vG[0]}']
    seq += blk(2)
    seq += stv(0, 2)
    seq += blk(3) + rd(1) + stv(1, 0)
    if o.eprio:
        seq += [f's_setprio {o.eprio[2]}']
    g.many('\n'.join(seq))
    g.stamp()
    g.e('s_branch TASK')
    g.lab('C_END')
    if o.stamps:
        g.e('s_waitcnt vmcnt(0)')
        g.stamp()
        g.stampval('s12')
    g.stamp_out()
    g.lab('END')
    g.e('s_endpgm')
    g.many(f'''
    FMASK:
        s_mov_b32 s27, 1
        s_branch MASK
    RESCALE:
        v_sub_f32 v{t1}, v{t0}, v{vNM}
        v_exp_f32 v{t1}, v{t1}
        s_nop 0
        v_mul_f32 v{vL}, v{vL}, v{t1}
    ''')
    for i in range(64):
        g.e(f'v_mul_f32 v{O + i}, v{O + i}, v{t1}')
    g.e('s_branch R_BACK')


def tables(plan, ring, o):
    words = []
    p = dict(sim.P)
    p['RING'] = ring
    wins = [int(x) for x in o.win.split(',')]
    users = {}
    for cu in plan:
        for j in cu:
            users[(j[0], j[1])] = users.get((j[0], j[1]), 0) + 1
    for gi, cu in enumerate(plan):
        comp = [(PL.NT[j[0]], [w for w, _ in j[2]]) for j in cu]
        if o.spec:
            order = [tuple(x) for x in o.spec['orders'][gi]]
        elif o.order == 'sim':
            m, order = sim.best_order(comp, p, local=1)
        else:
            order = sim.init_order(comp, 1000, 1200, o.qsplit)
        items, hdr = PL.stream_from_order(cu, order, ring)
        w = [0] * (GSTRIDE // 4)
        assert len(items) <= 62
        for i, (ty, row0, hb, end) in enumerate(items):
            win = wins[0]
            if len(wins) > 1 and gi >= wins[2] and i < wins[3]:
                win = wins[1]
            if o.spec:
                win = o.spec['wins'][gi][i]
            if win == 0:
                assert o.trick
                win = 1 | 8
            b = 64 * (i & 1) + (i >> 1) * 2
            w[b] = row0 * 4096 + hb * 256
            w[b + 1] = ((end - 1) * 4096 + 512) | (ty == 'V') | ((ty == 'K') << 1) | (win << 2)
            if order[i][0] == 'X':
                w[b + 1] |= 64
                continue
            j = cu[order[i][1]]
            if (o.nt >= 1 and ty == 'Q') or (o.nt >= 2 and users[(j[0], j[1])] == 1):
                w[b + 1] |= 16
        sa = lambda it: (it % ring) * SLOT
        for c in range(8):
            s = []
            for h in hdr[c]:
                s += [h['row0'] * 4096 + h['hb'] * 256, h['nvq'] * 4096 - 3840, (0xffffffff << h['nvl']) & 0xffffffff,
                      sa(h['qitem']) | (max(h['qitem'], h['k0']) << 24), sa(h['k0']) | ((h['n'] - 1) << 24),
                      (min(h['qitem'], h['k0']) << 24) | (h['n'] - 1 - h['mpos'] if h['nvl'] < 32 else 255)]
                for kn, vn in h['tl']:
                    s += [sa(kn) | (max(kn, vn) << 24), sa(vn) | (vn << 24)]
            s += [0, 0, 0, 0, 0, 255 << 24]
            assert len(s) <= 62, len(s)
            w[64 * (c + 2):64 * (c + 2) + len(s)] = s
        words += w
    return words


def main():
    ap = argparse.ArgumentParser()
    ap.add_argument('-o', default='standalone__varlen_attn_packed__ragged.s')
    ap.add_argument('--stamps', action='store_true')
    ap.add_argument('--mini', action='store_true')
    ap.add_argument('--probe', type=int, default=0)
    ap.add_argument('--probe2', type=int, default=0)
    ap.add_argument('--probe3', type=int, default=0)
    ap.add_argument('--p1max', type=int, default=32)
    ap.add_argument('--pk', action='store_true')
    ap.add_argument('--eprio', default='')
    ap.add_argument('--win', default='3', help='W or W,Wlow,first group,items')
    ap.add_argument('--order', default='sim')
    ap.add_argument('--lprio', type=int, default=3)
    ap.add_argument('--itst', action='store_true')
    ap.add_argument('--pace', type=int, default=0)
    ap.add_argument('--klate', type=int, default=0)
    ap.add_argument('--pl', default='')
    ap.add_argument('--lstamp', type=int, default=1)
    ap.add_argument('--lacc', type=int, default=0)
    ap.add_argument('--pprio', type=int, default=3)
    ap.add_argument('--sst', type=int, default=0)
    ap.add_argument('--epub', type=int, default=0)
    ap.add_argument('--zf', type=int, default=0)
    ap.add_argument('--nb', type=int, default=0)
    ap.add_argument('--dup', type=int, default=0)
    ap.add_argument('--trick', type=int, default=0)
    ap.add_argument('--spec', default='')
    ap.add_argument('--px', type=int, default=1)
    ap.add_argument('--nof', type=int, default=0)
    ap.add_argument('--fine', type=int, default=0)
    ap.add_argument('--m5', type=int, default=0)
    ap.add_argument('--ring', type=int, default=15)
    ap.add_argument('--nt', type=int, default=0, help='1: Q, 2: Q + unshared KV')
    ap.add_argument('--stpol', default='nt')
    ap.add_argument('--m1', type=int, default=0)
    ap.add_argument('--m3', type=int, default=0)
    ap.add_argument('--sched', type=int, default=2)
    ap.add_argument('--prio', default='120')
    ap.add_argument('--lsleep', type=int, default=2)
    ap.add_argument('--csleep', type=int, default=1)
    ap.add_argument('--execpub', action='store_true')
    ap.add_argument('--align', action='store_true')
    ap.add_argument('--qsplit', type=int, default=1)
    ap.add_argument('--plan', default='h2')
    o = ap.parse_args()
    if o.stpol:
        o.stpol = ' ' + o.stpol.replace('_', ' ')
    if o.prio == 'none':
        o.prio = ''
    lay = dict(RING=o.ring, RINGB=o.ring * SLOT)
    lay['STG'] = lay['RINGB']
    lay['FULLA'] = lay['STG'] + 8 * 4096
    lay['PROGA'] = lay['FULLA'] + 16
    lds = lay['FULLA'] + 64
    assert lds <= 163840 and lay['STG'] % 128 == 0
    g = Gen(o)
    ref = open('standalone__varlen_attn_packed__ragged.s.ref').read().split('\n')
    head = [l for l in ref[:12] if l.startswith(';') and '@launch' not in l]
    out = head + [f'; @launch grid=(256,1,1) block=(768,1,1) lds={lds}',
                  '.amdgcn_target "amdgcn-amd-amdhsa--gfx950"', '.text', f'.globl {NAME}', '.p2align 8',
                  f'.type {NAME},@function', f'{NAME}:']
    g.many(f'''
        s_cmp_ge_u32 s2, 256
        s_cbranch_scc1 END
        v_lshrrev_b32 v1, 6, v0
        s_getpc_b64 s[12:13]
    PCREF:
        s_load_dwordx4 s[4:7], s[0:1], 0
        v_readfirstlane_b32 s14, v1
        s_load_dwordx2 s[8:9], s[0:1], 16
        s_lshr_b32 s3, s2, 3
        s_mul_i32 s3, s3, {GSTRIDE}
        s_and_b32 s15, s14, 1
        s_sub_u32 s28, s14, 2
        s_cmp_ge_u32 s14, 4
        s_cselect_b32 s15, s28, s15
        s_lshl_b32 s15, s15, 8
        s_add_u32 s3, s3, s15
        s_add_u32 s3, s3, TABLE-PCREF
        s_add_u32 s12, s12, s3
        s_addc_u32 s13, s13, 0
        s_load_dwordx16 s[36:51], s[12:13], 0
        s_load_dwordx16 s[52:67], s[12:13], 64
        s_load_dwordx16 s[68:83], s[12:13], 128
        s_load_dwordx16 s[84:99], s[12:13], 192
        s_load_dwordx2 s[10:11], s[0:1], 32
        v_lshlrev_b32 v3, 2, v1
        v_add_u32 v3, {lay['FULLA']}, v3
        s_and_b32 s15, s2, 7
        s_lshl_b32 s15, s15, 9
        v_and_b32 v0, 63, v0
    ''')
    if o.probe and not o.stamps:
        g.e('s_memrealtime s[100:101]')
    if o.stamps:
        g.idx, g.m0save = 's32', None
        g.e('s_mov_b32 s32, 0')
        g.e('v_mov_b32 v167, 0')
        g.e('s_memrealtime s[34:35]')
        g.e('s_memtime s[100:101]')
        g.e('s_getreg_b32 s33, hwreg(HW_REG_HW_ID)')
        g.stampval('s33')
        g.e('s_getreg_b32 s33, hwreg(HW_REG_XCC_ID)')
        g.stampval('s33')
        g.e('s_waitcnt lgkmcnt(0)')
        g.stampval('s34')
        g.stampval('s100')
    g.many('''
        s_cmp_ge_u32 s14, 4
        s_cbranch_scc1 CONSUMER
    ''')
    gen_loader(g, lay)
    gen_consumer(g, lay)
    if o.spec:
        import json
        o.spec = json.load(open(o.spec))
        plan = [[(j[0], j[1], [tuple(x) for x in j[2]]) + tuple(j[3:]) for j in cu] for cu in o.spec['plan']]
    else:
        plan = PL.get_plan(o.plan)
    PL.check_plan(plan)
    tw = tables(plan, o.ring, o)
    g.L.append('.p2align 6')
    g.lab('TABLE')
    for i in range(0, len(tw), 8):
        g.e('.long ' + ', '.join(hex(x) for x in tw[i:i + 8]))
    out += g.L
    out += ['.section .rodata,"a"', '.p2align 6', f'.amdhsa_kernel {NAME}', '  .amdhsa_next_free_vgpr 168',
            '  .amdhsa_next_free_sgpr 102', '  .amdhsa_accum_offset 168', '  .amdhsa_group_segment_fixed_size 0',
            '  .amdhsa_kernarg_size 56', '  .amdhsa_user_sgpr_count 2', '  .amdhsa_user_sgpr_kernarg_segment_ptr 1',
            '  .amdhsa_system_sgpr_workgroup_id_x 1', '.end_amdhsa_kernel', '']
    open(o.o, 'w').write('\n'.join(out))


main()
```

```python
CU = [0, 321, 555, 878, 1299, 1551, 1670, 1878, 2181, 2351, 2646, 2810, 3248, 3471, 3811, 4169, 4391]
L = [CU[i + 1] - CU[i] for i in range(16)]
NT = [(l + 31) // 32 for l in L]
RING = 16
NCONS = 8


def pairs_with(n):
    return [(s, hb) for s in range(16) if NT[s] == n for hb in (0, 1)]


def hand_plan():
    plan = []
    W = list(range(8))

    def job(p, blocks, waves):
        assert len(blocks) == len(waves)
        return (p[0], p[1], list(zip(waves, blocks)))
    p14, p12, p11, p10, p8, p7, p6, p4 = (pairs_with(n) for n in (14, 12, 11, 10, 8, 7, 6, 4))
    for p in p14:
        plan.append([job(p, list(range(0, 7)), W[:7])])
        plan.append([job(p, list(range(7, 14)), W[:7])])
    A, B, C = [], [], []
    for p in p12:
        plan.append([job(p, list(range(8)), W)])
        A.append((p, list(range(8, 12))))
    for p in p11:
        plan.append([job(p, list(range(8)), W)])
        B.append((p, list(range(8, 11))))
    for i, p in enumerate(p10):
        cu = [job(p, list(range(8)), W)]
        if i < 2:
            cu.append(job(p4[i], list(range(4)), W[:4]))
        plan.append(cu)
        C.append((p, list(range(8, 10))))
    for i, p in enumerate(p8):
        plan.append([job(p, list(range(8)), W), job(B[i][0], B[i][1], W[:3])])
    for i in range(3):
        plan.append([job(p7[2 * i], list(range(7)), W[:7]), job(p7[2 * i + 1], list(range(7)), W[:7])])
    for i in range(2):
        plan.append([job(A[i][0], A[i][1], W[:4]), job(B[4 + i][0], B[4 + i][1], W[4:7])])
    for i in range(2):
        plan.append([job(p6[2 * i], list(range(6)), W[:6]), job(C[i][0], C[i][1], W[6:8]),
                     job(p6[2 * i + 1], list(range(6)), W[:6])])
    plan.append([job(C[2][0], C[2][1], [0, 1]), job(C[3][0], C[3][1], [2, 3])])
    assert len(plan) == 32, len(plan)
    return plan


def check_plan(plan):
    seen = set()
    for cu in plan:
        for job in cu:
            s, hb, tasks = job[:3]
            if len(job) > 3:
                assert sorted(job[3]) == list(range(NT[s]))
            for w, qb in tasks:
                assert 0 <= qb < NT[s] and (s, hb, qb) not in seen
                seen.add((s, hb, qb))
    assert len(seen) == 2 * sum(NT), len(seen)


def get_plan(name):
    if name == 'hand':
        return hand_plan()
    if name == 'h2':
        return h2_plan()
    if name == 'h2r':
        return h2r_plan()
    import json
    return [[(j[0], j[1], [tuple(x) for x in j[2]]) + tuple(j[3:]) for j in cu] for cu in json.load(open(name))]


def perm_of(job):
    return list(job[3]) if len(job) > 3 else list(range(NT[job[0]]))


def local_rot(n, k, g):
    out = []
    for b in range(0, n, g):
        blk = list(range(b, min(n, b + g)))
        r = k % len(blk)
        out += blk[r:] + blk[:r]
    return out


def h2r_plan():
    plan = h2_plan()
    for gi in range(9, 17):
        s, hb, t = plan[gi][0]
        plan[gi] = [(s, hb, t, local_rot(14, (gi - 9) & 1, 2) if gi < 13 else local_rot(14, 7 * ((gi - 9) & 1), 14))]
    return plan


def build_stream(cu, tau=1000, gap=1200, ring=16, qsplit=0):
    RING = ring
    wave_t = [0] * NCONS
    ev = []
    for ji, (s, hb, tasks) in enumerate(cu):
        n = NT[s]
        start = min(wave_t[w] for w, _ in tasks)
        ev.append((start - 2, ji, 0, ('K', ji, 0)))
        for x, (w, qb) in enumerate(tasks):
            dl = max(start, wave_t[w] - 0) - 1
            if qsplit and dl < 0 and w >= 4:
                dl = tau // 2 + 1
            ev.append((dl, ji, 1 + x, ('Q', ji, x)))
        for t in range(n):
            if t > 0:
                ev.append((start + t * tau - tau // 2, ji, 0, ('K', ji, t)))
            ev.append((start + t * tau + (0 if t == 0 else tau // 4), ji, 50, ('V', ji, t)))
        for w, _ in tasks:
            wave_t[w] = max(wave_t[w], start) + n * tau + gap
    ev.sort(key=lambda e: (e[0] if e[0] % tau not in (tau - 1, tau - 2) else e[0] - e[0] % tau + tau - 2, e[1], e[2]))
    idx = {e[3]: i for i, e in enumerate(ev)}
    items = []
    for e in ev:
        ty, ji, x = e[3]
        s, hb, tasks = cu[ji]
        blk = tasks[x][1] if ty == 'Q' else x
        row0 = CU[s] + 32 * blk
        items.append((ty, row0, hb, min(32, CU[s + 1] - row0)))
    tl = []
    hdr = [[] for _ in range(NCONS)]
    for ji, (s, hb, tasks) in enumerate(cu):
        n = NT[s]
        tls = len(tl)
        for t in range(n):
            tl.append((idx[('K', ji, t + 1)] if t + 1 < n else 0, idx[('V', ji, t)]))
            assert idx[('K', ji, t)] < idx[('V', ji, t)]
            if t + 1 < n:
                assert idx[('V', ji, t)] < idx[('K', ji, t + 1)]
        for x, (w, qb) in enumerate(tasks):
            row0 = CU[s] + 32 * qb
            hdr[w].append(dict(row0=row0, hb=hb, nvq=min(32, CU[s + 1] - row0), n=n, qitem=idx[('Q', ji, x)],
                               k0=idx[('K', ji, 0)], tls=tls, nvl=L[s] - 32 * (n - 1)))
    for w in range(NCONS):
        last_needed = -1
        for h in hdr[w]:
            prog = min(h['qitem'], h['k0'])
            assert prog > last_needed, (prog, last_needed)
            assert max(h['qitem'], h['k0']) - prog <= RING - 1
            for t in range(h['n']):
                kn, vn = tl[h['tls'] + t]
                assert kn - prog <= RING - 1, (kn, prog)
                prog = vn
                last_needed = vn
            last_needed = max(last_needed, h['qitem'])
    assert len(items) <= 63 and len(tl) <= 64 and all(len(h) <= 3 for h in hdr), (len(items), len(tl))
    return items, tl, hdr


def h2_plan():
    plan = []
    W = list(range(8))

    def job(p, blocks, waves):
        assert len(blocks) == len(waves)
        return (p[0], p[1], list(zip(waves, blocks)))
    p14, p12, p11, p10, p8, p7, p6, p4 = (pairs_with(n) for n in (14, 12, 11, 10, 8, 7, 6, 4))
    R = lambda a, b: list(range(a, b))
    for i in range(4):
        plan.append([job(p8[i], R(0, 8), W), job(p6[i], R(0, 6), W[:6])])
    for i in range(3):
        plan.append([job(p7[2 * i], R(0, 7), W[:7]), job(p7[2 * i + 1], R(0, 7), W[:7])])
    for i in range(2):
        plan.append([job(p10[i], R(0, 8), W), job(p4[i], R(0, 4), W[:4])])
    for p in p14:
        plan.append([job(p, R(0, 7), W[:7])])
        plan.append([job(p, R(7, 14), W[:7])])
    for i in range(4):
        plan.append([job(p11[i], R(8, 11), [0, 1, 2]), job(p10[2 + i // 2], R(5 * (i % 2), 5 * (i % 2) + 5), [3, 4, 5, 6, 7])])
    for i in range(2):
        plan.append([job(p12[i], R(8, 12), W[:4]), job(p10[i], R(8, 10), [4, 5])])
    plan.append([job(p11[4], R(8, 11), [0, 1, 2]), job(p11[5], R(8, 11), [3, 4, 5])])
    for p in p12:
        plan.append([job(p, R(0, 8), W)])
    for p in p11:
        plan.append([job(p, R(0, 8), W)])
    assert len(plan) == 32, len(plan)
    return plan


def stream_from_order(cu, order, ring, pipe=False):
    idx = {k: i for i, k in enumerate(order)}
    items = []
    for key in order:
        if key[0] == 'X':
            _, ty, s, hb, b0, nb = key
            assert 1 <= nb <= 8 and b0 + nb <= NT[s]
            items.append((ty, CU[s] + 32 * b0, hb, min(CU[s + 1], CU[s] + 32 * (b0 + nb))))
            continue
        ty, ji, x = key
        s, hb, tasks = cu[ji][:3]
        blk = tasks[x][1] if ty == 'Q' else perm_of(cu[ji])[x]
        row0 = CU[s] + 32 * blk
        items.append((ty, row0, hb, CU[s + 1]))
    hdr = [[] for _ in range(NCONS)]
    for ji, job in enumerate(cu):
        s, hb, tasks = job[:3]
        n = NT[s]
        mpos = perm_of(job).index(n - 1)
        tl = []
        for t in range(n):
            tl.append((idx[('K', ji, t + 1)] if t + 1 < n else 0, idx[('V', ji, t)]))
            assert idx[('K', ji, t)] < idx[('V', ji, t)]
            if t + 1 < n:
                if pipe:
                    assert idx[('K', ji, t)] < idx[('K', ji, t + 1)] < idx[('V', ji, t + 1)] and idx[('V', ji, t)] < idx[('V', ji, t + 1)]
                    if t + 2 < n:
                        assert idx[('V', ji, t)] < idx[('K', ji, t + 2)]
                else:
                    assert idx[('V', ji, t)] < idx[('K', ji, t + 1)]
        for x, (w, qb) in enumerate(tasks):
            row0 = CU[s] + 32 * qb
            hdr[w].append(dict(seq=s, row0=row0, hb=hb, nvq=min(32, CU[s + 1] - row0), n=n, qitem=idx[('Q', ji, x)],
                               k0=idx[('K', ji, 0)], tl=tl, nvl=L[s] - 32 * (n - 1), mpos=mpos))
    for w in range(NCONS):
        last_needed = -1
        for h in hdr[w]:
            prog = min(h['qitem'], h['k0'])
            assert prog > last_needed, (prog, last_needed)
            assert max(h['qitem'], h['k0']) - prog <= ring - 1
            for kn, vn in h['tl']:
                assert max(kn, vn) - prog <= ring - 1, (kn, prog)
                assert (min(kn, vn) if pipe and kn else vn) >= prog
                prog = min(kn, vn) if pipe and kn else vn
                last_needed = vn
            last_needed = max(last_needed, h['qitem'])
    return items, hdr


def release_need(cu, order):
    idx = {k: i for i, k in enumerate(order)}
    before = {}
    seen = [-1] * NCONS
    for ji, job in enumerate(cu):
        n = NT[job[0]]
        for x, (w, _) in enumerate(job[2]):
            before[(ji, x)] = max(seen[w], idx[('Q', ji, x)], idx[('K', ji, 0)])
            seen[w] = max(before[(ji, x)], idx[('V', ji, n - 1)])
    rel = []
    for k in order:
        if k[0] == 'X':
            rel.append(-1)
            continue
        ty, ji, t = k
        n = NT[cu[ji][0]]
        st = max(before[(ji, x)] for x in range(len(cu[ji][2])))
        if ty == 'Q':
            rel.append(before[(ji, t)])
        elif ty == 'K':
            rel.append(st if t == 0 else max(st, idx[('V', ji, t - 1)], idx[('K', ji, t)]))
        else:
            rel.append(max(st, idx[('V', ji, t)], idx[('K', ji, t + 1)] if t + 1 < n else -1))
    return rel


if __name__ == '__main__':
    plan = hand_plan()
    check_plan(plan)
    for i, cu in enumerate(plan):
        items, tl, hdr = build_stream(cu)
        load = [0] * 4
        for s, hb, tasks in cu:
            for w, qb in tasks:
                load[w % 4] += NT[s]
        print(i, [(NT[s], len(t)) for s, hb, t in cu], 'items', len(items), 'load', load)
        print('   ', ' '.join(f'{ty}{(r0)}' for ty, r0, hb, nv in items[:26]))
```

```python
import sys, os, argparse, struct, math
sys.path.insert(0, os.path.dirname(os.path.abspath(__file__)))
import plan as PL
import sim
import xsim2

NAME = 'standalone__varlen_attn_packed__ragged_kernel'
SLOT = 8704
KST, VST = 1056, 1088
GSTRIDE = 2560


def f2u(x):
    return struct.unpack('<I', struct.pack('<f', x))[0]


class Gen:
    def __init__(self, o):
        self.o = o
        self.L = []
        self.idx = 's8'
        self.m0save = 's9'

    def e(self, s):
        if s is None:
            return
        if isinstance(s, (list, tuple)):
            for x in s:
                self.e(x)
            return
        self.L.append('    ' + s)

    def lab(self, s):
        self.L.append(s + ':')

    def many(self, txt):
        for l in txt.strip().split('\n'):
            l = l.strip()
            if not l or l == 'None':
                continue
            if l.endswith(':'):
                self.L.append(l)
            else:
                self.e(l)

    def stamp(self, real=False, force=False):
        if not self.o.stamps or (self.o.mini and not force):
            return
        self.e('s_memrealtime s[34:35]' if real else 's_memtime s[34:35]')
        self.e('s_waitcnt lgkmcnt(0)')
        self.stampval('s34')

    def stampval(self, s):
        if not self.o.stamps:
            return
        if self.m0save:
            self.e(f's_mov_b32 {self.m0save}, m0')
        self.e(f's_mov_b32 m0, {self.idx}')
        self.e(f's_add_u32 {self.idx}, {self.idx}, 1')
        self.e(f'v_writelane_b32 v167, {s}, m0')
        if self.m0save:
            self.e(f's_mov_b32 m0, {self.m0save}')
            self.e('s_nop 0')

    def stamp_out(self):
        if self.o.probe:
            self.np = getattr(self, 'np', 0) + 1
            self.many(f'''
                s_waitcnt vmcnt(0)
                s_mov_b32 s3, 0x100000
                s_add_u32 s100, s100, {self.o.probe}
            PRB{self.np}:
                s_memrealtime s[34:35]
                s_waitcnt lgkmcnt(0)
                s_sub_u32 s3, s3, 1
                s_cbranch_scc1 PRBX{self.np}
                s_sub_u32 s35, s34, s100
                s_cmp_lt_i32 s35, 0
                s_cbranch_scc1 PRB{self.np}
            PRBX{self.np}:
            ''')
        if not self.o.stamps:
            return
        self.e(f's_mov_b32 {self.idx}, 62')
        self.stamp(force=True)
        self.stamp(real=True, force=True)
        self.many(f'''
            s_load_dwordx2 s[34:35], s[0:1], 48
            s_mul_i32 s3, s2, 12
            s_add_u32 s3, s3, s14
            s_lshl_b32 s3, s3, 8
            v_mbcnt_lo_u32_b32 v1, -1, 0
            v_mbcnt_hi_u32_b32 v1, -1, v1
            v_lshlrev_b32 v1, 2, v1
            v_add_u32 v1, s3, v1
            s_waitcnt lgkmcnt(0)
            global_store_dword v1, v167, s[34:35]
        ''')


O, Q, S, P, POOL = 0, 64, 96, 112, 120
vKb, vVb, vK, vV, vL, vNM, vLT, vT = 152, 153, 154, 155, 156, 157, 158, 159
FL = 160
vFA, vPA, vSW = 164, 165, 166
sC, sNC, sThr, sP, sSpin, sRem, sMaskAt, sFirst = 's16', 's17', 's18', 's19', 's20', 's21', 's22', 's23'
sE0, sE1, sE0p = 's24', 's25', 's26'
H = 28
TB = 36


def r(a, n):
    return f'v[{a}:{a + n - 1}]'


def pool(i):
    return r(POOL + 4 * i, 4)


def qk(i, c0=False):
    c = '0' if c0 else r(S, 16)
    return f'v_mfma_f32_32x32x16_bf16 {r(S, 16)}, {pool(i)}, {r(Q + 4 * i, 4)}, {c}'


def pv(slot, b, j):
    return f'v_mfma_f32_32x32x16_bf16 {r(O + 16 * b, 16)}, {pool(slot)}, {r(P + 4 * j, 4)}, {r(O + 16 * b, 16)}'


def kread(s, addr=vK):
    return f'ds_read_b128 {pool(s)}, v{addr} offset:{32 * s}'


def vread(slot, b, j):
    return [f'ds_read_b64_tr_b16 {r(POOL + 4 * slot + 2 * eh, 2)}, v{vV} offset:{(2 * j + eh) * 256 + 64 * b}'
            for eh in (0, 1)]


NOF = [0]


def F(a, b):
    if NOF[0]:
        return []
    return [f'v_fma_f32 v{S + i}, v{S + i}, {sC}, v{vNM}' for i in range(a, b)]


def E(a, b):
    return [f'v_exp_f32 v{S + i}, v{S + i}' for i in range(a, b)]


def A(a, b):
    return [f'v_add_f32 v{vLT}, v{S}, v{S + 1}' if i == 1 else f'v_add_f32 v{vLT}, v{vLT}, v{S + i}'
            for i in range(max(a, 1), b)]


def C(a, b):
    return [f'v_cvt_pk_bf16_f32 v{P + k}, v{S + 2 * k}, v{S + 2 * k + 1}' for k in range(a, b)]


def addr(dst, s, base):
    return f'v_mad_u32_u24 v{dst}, {s}, 1, v{base}'


def pub(g, a, val):
    if g.o.execpub:
        return ['s_mov_b64 exec, 1', f'ds_write_b32 v{a}, v{val}', 's_mov_b64 exec, -1']
    return [f'ds_write_b32 v{a}, v{val}']


def poll(g, tag, need):
    g.many(f'''
        s_cmp_gt_u32 {sP}, {need}
        s_cbranch_scc1 POLLOK_{tag}
    POLL_{tag}:
        ds_read_b128 {r(FL, 4)}, v{vFA}
        s_waitcnt lgkmcnt(0)
        v_min3_u32 v{FL}, v{FL}, v{FL + 1}, v{FL + 2}
        v_min_u32 v{FL}, v{FL}, v{FL + 3}
        s_sub_u32 {sSpin}, {sSpin}, 1
        s_cbranch_scc1 END
        v_readfirstlane_b32 {sP}, v{FL}
        s_cmp_gt_u32 {sP}, {need}
        s_cbranch_scc1 POLLOK_{tag}
        s_sleep {g.o.csleep}
        s_branch POLL_{tag}
    POLLOK_{tag}:
    ''')


def finewaits(seq, step, epub=0):
    q = ['V0', 'V0', 'V1', 'V1', 'W', 'V2', 'V2', 'V3', 'V3', 'V4', 'V4', 'V5', 'V5', 'V6', 'V6', 'FL', 'V7', 'V7']
    if epub:
        q.remove('W')
    out = []
    k = 0
    for x in seq:
        if x.startswith('s_waitcnt lgkmcnt'):
            continue
        if x.startswith('v_mfma'):
            if k % step == 0:
                need = 'V%d' % (k + step - 1)
                last = max(i for i, n in enumerate(q) if n == need)
                out.append(f's_waitcnt lgkmcnt({min(15, len(q) - 1 - last)})')
            k += 1
        if x.startswith('ds_read'):
            q.append('K')
        out.append(x)
    return out


def gen_loader(g, lay):
    o = g.o
    g.idx, g.m0save = 's32', None
    g.lab('LOADER')
    g.many(f'''
        s_setprio {o.lprio}
        s_and_b32 s20, s14, 1
        s_lshr_b32 s3, s14, 1
        s_lshl_b32 s23, s20, 24
        v_mov_b32 v2, s23
        v_lshrrev_b32 v5, 4, v0
        ds_write_b32 v3, v2
        v_and_b32 v4, 7, v0
        v_lshlrev_b32 v4, 2, v4
        v_mov_b32 v24, 0
        v_add_u32 v4, {lay['PROGA']}, v4
        v_mov_b32 v18, 0x2000000
        v_lshlrev_b32 v19, 4, v0
        v_add_u32 v19, {lay['STG'] + 7 * 4096}, v19
        v_and_b32 v6, 15, v0
        v_lshrrev_b32 v7, 5, v0
        v_xor_b32 v7, v7, v6
        v_lshlrev_b32 v5, 12, v5
        s_mul_i32 s30, s3, {4 * KST}
        s_mul_i32 s31, s3, {4 * VST}
        s_lshl_b32 s3, s3, 16
        v_add_u32 v5, s3, v5
        v_lshl_add_u32 v8, v7, 4, v5
        v_lshl_add_u32 v12, v6, 4, v5
        v_add_u32 v9, {16384 - KST}, v8
        v_add_u32 v13, {16384 - VST}, v12
        v_add_u32 v10, {2 * (16384 - KST)}, v8
        v_add_u32 v14, {2 * (16384 - VST)}, v12
        v_add_u32 v11, {3 * (16384 - KST)}, v8
        v_add_u32 v15, {3 * (16384 - VST)}, v12
        v_lshrrev_b32 v20, 1, v0
        v_and_b32 v21, 1, v0
        v_lshlrev_b32 v20, 12, v20
        s_lshl_b32 s3, s3, 1
        v_lshl_add_u32 v20, v21, 7, v20
        v_add_u32 v20, s3, v20
        v_add_u32 v21, 0x40000, v20
        v_add_u32 v22, 0x80000, v20
        v_add_u32 v23, 0xc0000, v20
        s_mov_b32 s19, 0x00020000
        s_mov_b32 s22, 0
        s_mov_b32 s27, 0x40000
        s_mov_b32 s33, 0
        s_mov_b32 s13, 0
        s_waitcnt lgkmcnt(0)
    ''')
    g.stamp()
    if o.m3 == 1:
        g.e('v_mov_b32 v2, -1')
        g.e('ds_write_b32 v3, v2')
        g.e('s_waitcnt lgkmcnt(0)')
        g.e('s_barrier')
        g.e('s_branch L_END')
    g.many(f'''
        s_mov_b32 m0, 0
        s_mov_b32 s11, 0x00020000
    ''')
    if o.probe2:
        g.many(f'''
        s_mov_b32 s33, 0
        s_cmp_ge_u32 s2, {o.p1max * 8}
        s_cbranch_scc1 P1X
    P1:
        s_mov_b32 m0, s33
        s_nop 0
        s_movrels_b64 s[24:25], s[{TB}:{TB + 1}]
        s_bfe_u32 s12, s25, 0x20002
        s_cmp_eq_u32 s12, 0
        s_cbranch_scc1 P1X
        {'s_lshr_b32 s3, s25, 3' if o.probe3 else None}
        {'s_add_u32 s3, s3, s15' if o.probe3 else None}
        {'s_and_b32 s3, s3, 0xe00' if o.probe3 else None}
        {'s_sub_u32 s3, s3, s15' if o.probe3 else None}
        {'s_add_u32 s24, s24, s3' if o.probe3 else None}
        s_bitcmp1_b32 s25, 0
        s_cbranch_scc1 P1V
        s_add_u32 m0, s30, {lay['STG']}
        s_bitcmp1_b32 s25, 1
        s_cselect_b64 s[16:17], s[6:7], s[4:5]
        s_mov_b32 s18, s25
        buffer_load_dwordx4 v8, s[16:19], s24 offen lds
        buffer_load_dwordx4 v9, s[16:19], s24 offen offset:{KST} lds
        buffer_load_dwordx4 v10, s[16:19], s24 offen offset:{2 * KST} lds
        buffer_load_dwordx4 v11, s[16:19], s24 offen offset:{3 * KST} lds
        s_branch P1D
    P1V:
        s_add_u32 m0, s31, {lay['STG']}
        s_mov_b32 s10, s25
        buffer_load_dwordx4 v12, s[8:11], s24 offen lds
        buffer_load_dwordx4 v13, s[8:11], s24 offen offset:{VST} lds
        buffer_load_dwordx4 v14, s[8:11], s24 offen offset:{2 * VST} lds
        buffer_load_dwordx4 v15, s[8:11], s24 offen offset:{3 * VST} lds
    P1D:
        s_add_u32 s33, s33, 2
        s_waitcnt vmcnt({o.probe2})
        ''')
        g.stamp(force=True)
        g.many(f'''
        s_branch P1
    P1X:
        s_waitcnt vmcnt(0)
        ''')
        g.stamp(force=True)
        if o.stamps:
            g.many('''
        s_mov_b32 s3, 0x10000
    P1W:
        s_sleep 8
        s_memtime s[34:35]
        s_waitcnt lgkmcnt(0)
        s_sub_u32 s3, s3, 1
        s_cbranch_scc1 P1WX
        s_sub_u32 s34, s34, s100
        s_cmp_lt_u32 s34, 32000
        s_cbranch_scc1 P1W
    P1WX:
            ''')
        g.many(f'''
        s_memrealtime s[34:35]
        s_waitcnt lgkmcnt(0)
        s_sub_u32 s34, s34, s100
        s_lshl_b32 s34, s34, 2
        s_mov_b32 m0, 0
        s_add_u32 s100, s100, s34
        s_nop 1
        ''')
    nt = o.nt

    def dup(a, srd, st):
        if o.dup == 1:
            return '\n' + '\n'.join(f'buffer_load_dwordx4 v{a + i}, {srd}, s24 offen offset:{i * st} lds' for i in range(4))
        if o.dup == 2:
            return '\n' + '\n'.join(f'buffer_load_dwordx4 v[{32 + 4 * i}:{35 + 4 * i}], v{a + i}, {srd}, s24 offen offset:{i * st}' for i in range(4))
        if o.dup == 3:
            return '\n' + '\n'.join(f'ds_write_b128 v19, v[{32 + 4 * i}:{35 + 4 * i}] offset:{i * 1024}' for i in range(4))
        return ''

    sep = ['\n']

    def kload(n=''):
        return sep[0].join(f'buffer_load_dwordx4 v{8 + i}, s[16:19], s24 offen offset:{i * KST}{n} lds' for i in range(4)) + dup(8, 's[16:19]', KST)

    def vload(n=''):
        return sep[0].join(f'buffer_load_dwordx4 v{12 + i}, s[8:11], s24 offen offset:{i * VST}{n} lds' for i in range(4)) + dup(12, 's[8:11]', VST)

    def done(nxt):
        st = ''
        if o.sst:
            st = f'''
            s_memtime s[34:35]
            s_and_b32 m0, s20, -2
            s_waitcnt lgkmcnt(0)
            s_movreld_b32 s{TB}, s34
            '''
        return st + f'''
        s_add_u32 s20, s20, 2
        s_add_u32 s22, s22, 1
        s_and_b32 m0, s20, -2
        s_branch {nxt}
        '''

    def trick(x):
        l = x.split('\n')
        return '\n'.join([l[0], l[1], 's_waitcnt vmcnt(1)', l[2], 's_waitcnt vmcnt(1)', l[3]])

    def issue(p, nxt):
        return f'''
        s_lshr_b32 s28, s25, 25
        s_and_b32 s24, s24, 0x01ffff00
        s_mul_i32 s28, s28, {SLOT}
        s_and_b32 s18, s25, 0x01fff000
        s_xor_b32 s24, s24, s15
        {'s_bitcmp1_b32 s25, 6' if o.px else None}
        {f's_cbranch_scc1 {p}_X' if o.px else None}
        s_bitcmp1_b32 s25, 0
        s_cbranch_scc1 {p}_V
        s_add_u32 m0, s28, s30
        s_bitcmp1_b32 s25, 1
        s_cselect_b64 s[16:17], s[6:7], s[4:5]
        {'s_bitcmp1_b32 s25, 4' if nt else None}
        {f's_cbranch_scc1 {p}_KN' if nt else None}
        {'s_bitcmp1_b32 s25, 5' if o.trick else None}
        {f's_cbranch_scc1 {p}_KT' if o.trick else None}
        {kload()}
    {p}_DONE:
        {done(nxt)}
    {p}_V:
        s_add_u32 m0, s28, s31
        s_mov_b32 s10, s18
        {'s_bitcmp1_b32 s25, 4' if nt else None}
        {f's_cbranch_scc1 {p}_VN' if nt else None}
        {'s_bitcmp1_b32 s25, 5' if o.trick else None}
        {f's_cbranch_scc1 {p}_VT' if o.trick else None}
        {vload()}
        {done(nxt)}
        ''' + (f'''
    {p}_KN:
        {kload(' nt')}
        s_branch {p}_DONE
    {p}_VN:
        {vload(' nt')}
        s_branch {p}_DONE
        ''' if nt else '') + (f'''
    {p}_KT:
        {trick(kload())}
        s_branch {p}_DONE
    {p}_VT:
        {trick(vload())}
        s_branch {p}_DONE
        ''' if o.trick else '') + (f'''
    {p}_X:
        s_bitcmp1_b32 s25, 1
        s_cselect_b64 s[16:17], s[6:7], s[4:5]
        s_bitcmp1_b32 s25, 0
        s_cselect_b64 s[16:17], s[8:9], s[16:17]
        buffer_load_dword v25, v20, s[16:19], s24 offen
        buffer_load_dword v26, v21, s[16:19], s24 offen
        buffer_load_dword v27, v22, s[16:19], s24 offen
        buffer_load_dword v28, v23, s[16:19], s24 offen
        s_branch {p}_DONE
        ''' if o.px else '')
    if o.nb:
        fail = f'''
        s_lshl_b32 s13, s22, 2
        s_mov_b32 s29, {o.nb - 1}
    L_F1:
        s_getreg_b32 s3, hwreg(HW_REG_IB_STS, 0, 4)
        s_add_u32 s3, s3, 4
        s_cmp_le_u32 s3, s13
        s_cbranch_scc1 L_WAIT
        s_sleep 1
        s_sub_u32 s29, s29, 1
        s_cbranch_scc0 L_F1
        s_sub_u32 s27, s27, 1
        s_cbranch_scc0 L_POLL
        s_branch END
        '''
    else:
        fail = f'''
        s_cmp_gt_u32 s22, 0
        s_cbranch_scc1 L_WAIT
        s_sub_u32 s27, s27, 1
        s_cbranch_scc1 END
        s_sleep {o.lsleep}
        s_branch L_POLL
        '''
    g.many(f'''
    S_NEXT:
        s_movrels_b64 s[24:25], s[{TB}:{TB + 1}]
        s_bfe_u32 s12, s25, 0x20002
        s_cmp_ge_u32 s22, s12
        s_cbranch_scc1 L_FIRST
        {issue('S', 'S_NEXT')}
    L_FIRST:
    ''')
    g.stamp()
    if o.pace:
        sep[0] = f'\ns_sleep {o.pace}\n'
    g.many(f'''
        s_barrier
        s_branch L_WAIT
    L_NEXT:
        s_movrels_b64 s[24:25], s[{TB}:{TB + 1}]
        s_bfe_u32 s12, s25, 0x20002
        s_cmp_lt_u32 s22, s12
        s_cbranch_scc1 L_CHK
    L_WAIT:
        s_cmp_eq_u32 s22, 3
        s_cbranch_scc0 L_W2
        s_waitcnt vmcnt({16 if o.dup in (1, 2) else 8})
    L_PUB:
        s_mov_b64 exec, 1
        ds_add_u32 v3, v18
        s_mov_b64 exec, -1
        s_sub_u32 s22, s22, 1
    ''')
    if o.lstamp:
        g.stamp()
    if o.sst:
        g.many(f'''
        s_memtime s[34:35]
        s_mov_b32 m0, s33
        s_add_u32 s33, s33, 2
        s_waitcnt lgkmcnt(0)
        s_movreld_b32 s{TB + 1}, s34
        ''')
    g.many(f'''
        s_cmp_ge_u32 s22, s12
        s_cbranch_scc1 L_WAIT
    L_CHK:
        s_and_b32 s26, s24, {'0' if o.m1 else '0xff'}
        s_cbranch_scc0 L_ISSUE
        {f's_setprio {o.pprio}' if o.pprio != o.lprio else None}
        s_lshr_b32 s21, s24, 25
        v_cmp_gt_u32_sdwa vcc, s21, v24 src0_sel:DWORD src1_sel:BYTE_3
        {f's_setprio {o.lprio}' if o.pprio != o.lprio else None}
        s_and_b32 s3, vcc_lo, s26
        s_cbranch_scc0 L_ISSUE
    L_POLL:
        ds_read_b32 v24, v4
        {f's_setprio {o.pprio}' if o.pprio != o.lprio else None}
        s_waitcnt lgkmcnt(0)
        v_cmp_gt_u32_sdwa vcc, s21, v24 src0_sel:DWORD src1_sel:BYTE_3
        {f's_setprio {o.lprio}' if o.pprio != o.lprio else None}
        s_and_b32 s3, vcc_lo, s26
        s_cbranch_scc1 L_FAIL
    L_ISSUE:
        {issue('L', 'L_NEXT')}
    L_FAIL:
        {fail}
    L_W2:
        s_cmp_eq_u32 s22, 2
        s_cbranch_scc0 L_W1
        s_waitcnt vmcnt({8 if o.dup in (1, 2) else 4})
        s_branch L_PUB
    L_W1:
        s_cmp_eq_u32 s22, 0
        s_cbranch_scc1 L_END
        s_waitcnt vmcnt(0)
        s_branch L_PUB
    L_END:
    ''')
    if o.sst:
        for i in range(56):
            g.e(f'v_writelane_b32 v167, s{TB + i}, {6 + i}')
    g.stamp_out()
    g.e('s_endpgm')


def gen_consumer(g, lay):
    o = g.o
    c = 128 ** -0.5 * math.log2(math.e)
    st = o.stpol
    g.idx, g.m0save = 's8', 's9'
    pr = o.prio
    g.lab('CONSUMER')
    g.many(f'''
        v_mov_b32 v{vFA}, {lay['FULLA']}
        v_mov_b32 v{vPA}, v3
        v_and_b32 v1, 7, v0
        v_mul_u32_u24 v{vKb}, {KST}, v1
        v_bfe_u32 v2, v0, 3, 2
        v_lshl_add_u32 v{vKb}, v2, 8, v{vKb}
        v_lshrrev_b32 v3, 5, v0
        v_bfe_u32 v4, v0, 4, 1
        v_xor_b32 v5, v3, v4
        v_lshl_add_u32 v{vKb}, v5, 4, v{vKb}
        v_bfe_u32 v5, v0, 2, 2
        v_lshl_add_u32 v5, v3, 2, v5
        v_mul_u32_u24 v{vVb}, {VST}, v5
        v_lshl_add_u32 v{vVb}, v4, 5, v{vVb}
        v_and_b32 v5, 1, v0
        v_lshl_add_u32 v{vVb}, v5, 4, v{vVb}
        v_bfe_u32 v5, v0, 1, 1
        v_lshl_add_u32 v{vVb}, v5, 3, v{vVb}
        v_bfe_u32 v5, v0, 2, 1
        v_lshl_add_u32 v2, v5, 4, v2
        v_and_b32 v5, 3, v0
        v_lshl_add_u32 v2, v5, 2, v2
        s_lshl_b32 s3, s14, 12
        s_add_u32 s3, s3, {lay['STG'] - 4 * 4096}
        v_xor_b32 v1, v1, v3
        v_lshlrev_b32 v1, 4, v1
        v_lshl_add_u32 v2, v2, 7, v1
        v_add_u32 v{vSW}, s3, v2
        s_mov_b32 s13, s3
        s_mov_b32 {sC}, {hex(f2u(c))}
        s_mov_b32 {sNC}, {hex(f2u(-c))}
        s_mov_b32 {sThr}, {hex(f2u(2.0 ** 24))}
        s_mov_b32 {sP}, 0
        s_mov_b32 {sSpin}, 0x40000
        s_mov_b32 m0, 0
        s_waitcnt lgkmcnt(0)
        v_mov_b32 v{vT}, s{TB + 5}
        s_mov_b32 s7, 0x00020000
    ''')
    g.e(pub(g, vPA, vT))
    g.many('''
        s_waitcnt lgkmcnt(0)
        s_barrier
    ''')
    if o.stamps:
        g.e('s_mov_b32 s8, 5')
        g.e('s_mov_b32 s12, 0')
    g.stamp()
    g.lab('TASK')
    g.many(f'''
        s_movrels_b64 s[{H}:{H + 1}], s[{TB}:{TB + 1}]
        s_movrels_b64 s[{H + 2}:{H + 3}], s[{TB + 2}:{TB + 3}]
        s_movrels_b64 s[{H + 4}:{H + 5}], s[{TB + 4}:{TB + 5}]
        s_movrels_b64 s[24:25], s[{TB + 6}:{TB + 7}]
        s_add_u32 m0, m0, 8
        s_cmp_eq_u32 s{H + 1}, 0
        s_cbranch_scc1 C_END
        v_mov_b32 v{P}, 0
        v_mov_b32 v{P + 1}, 0
        v_mov_b32 v{P + 2}, 0
        v_mov_b32 v{P + 3}, 0
        v_mov_b32 v{vL}, 0
        v_mov_b32 v{vNM}, 0x7f800000
    ''')
    zero = [f'v_mfma_f32_32x32x16_bf16 {r(O + 16 * b, 16)}, {r(P, 4)}, {r(P, 4)}, 0' for b in range(4)]
    if not o.zf:
        g.e(zero)
    g.many(f'''
        s_lshr_b32 {sRem}, s{H + 4}, 24
        s_and_b32 {sMaskAt}, s{H + 5}, 0xff
        s_mov_b32 {sE0p}, s{H + 4}
        {addr(vV, f's{H + 3}', vKb)}
        s_mov_b32 {sFirst}, 1
    ''')
    poll(g, 'T', f's{H + 3}')
    if o.fprio:
        g.many(f'''
        s_setprio {o.fprio[0]}
        s_cmp_ge_u32 s14, 8
        s_cbranch_scc0 FP_X
        s_setprio {o.fprio[1]}
    FP_X:
        ''')
    g.stamp()
    for s in range(8):
        g.e(f'ds_read_b128 {r(Q + 4 * s, 4)}, v{vV} offset:{32 * s}')
    g.lab('FRESH')
    g.e(addr(vK, sE0p, vKb))
    g.e('s_waitcnt lgkmcnt(7)')
    for s in range(8):
        g.e(kread(s))
    g.many(f'''
        s_cmp_eq_u32 {sRem}, {sMaskAt}
        s_cbranch_scc1 FMASK
        s_waitcnt lgkmcnt(7)
        {qk(0, True)}
    F_BACK:
        ds_read_b128 {r(FL, 4)}, v{vFA}
    ''')
    for s in range(1, 8):
        g.e(f's_waitcnt lgkmcnt({8 - s})')
        g.e(qk(s))
    if o.zf:
        g.e(f's_cmp_eq_u32 {sFirst}, 0')
        g.e('s_cbranch_scc1 F_NZ')
        g.e(zero)
        g.lab('F_NZ')
    t0, t1 = FL, FL + 1
    g.many(f'''
        s_waitcnt lgkmcnt(0)
        v_min3_u32 v{FL}, v{FL}, v{FL + 1}, v{FL + 2}
        v_mov_b32 v{vT}, {sE1}
        v_min_u32 v{FL}, v{FL}, v{FL + 3}
        ds_write_b32 v{vPA}, v{vT}
        {addr(vK, sE0, vKb)}
        v_readfirstlane_b32 {sP}, v{FL}
        {addr(vV, sE1, vVb)}
        s_cmp_gt_u32 {sP}, {sE0}
        s_cbranch_scc0 F_NOK
    ''')
    for s in range(8):
        g.e(kread(s))
    g.many(f'''
    F_NOK:
        s_nop 3
        v_max3_f32 v{t0}, v{S}, v{S + 1}, v{S + 2}
        v_max3_f32 v{t1}, v{S + 3}, v{S + 4}, v{S + 5}
        v_max3_f32 v{t0}, v{t0}, v{S + 6}, v{S + 7}
        v_max3_f32 v{t1}, v{t1}, v{S + 8}, v{S + 9}
        v_max3_f32 v{t0}, v{t0}, v{S + 10}, v{S + 11}
        v_max3_f32 v{t1}, v{t1}, v{S + 12}, v{S + 13}
        v_max3_f32 v{t0}, v{t0}, v{S + 14}, v{S + 15}
        v_max_f32 v{t0}, v{t0}, v{t1}
        v_mov_b32 v{t1}, v{t0}
        s_nop 1
        v_permlane32_swap_b32 v{t0}, v{t1}
        v_max_f32 v{t0}, v{t0}, v{t1}
        v_mul_f32 v{t0}, {sNC}, v{t0}
        v_min_f32 v{t0}, v{t0}, v{vNM}
        s_cmp_eq_u32 {sFirst}, 0
        s_cbranch_scc1 RESCALE
    R_BACK:
        v_mov_b32 v{vNM}, v{t0}
        s_mov_b32 {sFirst}, 0
    ''')
    g.e(F(0, 16) + E(0, 16) + A(1, 16) + C(0, 8))
    g.stamp()
    if o.epub:
        g.e('s_waitcnt lgkmcnt(0)')
    g.e(f's_cmp_gt_u32 {sP}, {sE0}')
    g.e('s_cbranch_scc1 CONT')
    g.lab('LATE')
    if o.stamps and not o.mini:
        g.e('s_memtime s[100:101]')
        g.e('s_waitcnt lgkmcnt(0)')
    poll(g, 'L', sE0)
    if o.stamps and not o.mini:
        g.e('s_memtime s[34:35]')
        g.e('s_waitcnt lgkmcnt(0)')
        g.e('s_sub_u32 s34, s34, s100')
        g.e('s_add_u32 s12, s12, s34')
    for s in range(8):
        g.e(kread(s))
    if o.epub:
        g.e('s_waitcnt lgkmcnt(0)')
    g.e('s_branch CONT')
    g.L.append('.p2align 4') if o.align else None
    g.lab('LOOP')
    NOF[0] = o.nof
    loop_start = len(g.L)
    g.e(f's_waitcnt lgkmcnt({1 if o.epub else 0})')
    if pr:
        g.e(f's_setprio {pr[0]}')
    g.e(qk(0, True))
    g.lab('L_BACK')
    if pr and not o.pl:
        g.e(f's_setprio {pr[1]}')
    mins = [f'v_min3_u32 v{FL}, v{FL}, v{FL + 1}, v{FL + 2}', f'v_min_u32 v{FL}, v{FL}, v{FL + 3}']
    rfl = [f'v_readfirstlane_b32 {sP}, v{FL}'] + ([f'v_mov_b32 v{FL + 1}, {sE1}'] if o.epub else [])
    cmpv = [f'v_cmp_nge_f32 vcc, {sThr}, v{vLT}']
    lo = [f's_setprio {pr[2]}'] if pr else []
    flr = f'ds_read_b128 {r(FL, 4)}, v{vFA}'
    if o.sched <= 3:
        gapA = {0: [f'v_mov_b32 v{vT}, {sE1}'],
                1: pub(g, vPA, vT) + [f'v_add_f32 v{vL}, v{vL}, v{vLT}'],
                2: [f's_mov_b32 {sE0p}, {sE0}', f's_movrels_b64 s[24:25], s[{TB}:{TB + 1}]', 's_add_u32 m0, m0, 2'],
                7: [flr, addr(vK, sE0, vKb), addr(vV, sE1, vVb)]}
    else:
        gapA = {0: [f'v_mov_b32 v{vT}, {sE1}'] if not o.epub else [],
                1: pub(g, vPA, vT) if not o.epub else [],
                2: [f'v_add_f32 v{vL}, v{vL}, v{vLT}', f's_mov_b32 {sE0p}, {sE0}'],
                3: [f's_movrels_b64 s[24:25], s[{TB}:{TB + 1}]'],
                4: ['s_add_u32 m0, m0, 2'],
                5: [addr(vK, sE0, vKb)],
                6: [flr]}
    for m in range(8):
        if m > 0:
            g.e(qk(m))
        g.e(vread(m, m % 4, m // 4))
        g.e(gapA.get(m))

    def vseg(e0, f0=16):
        out = F(f0, 16)
        acc = [vLT, vT]
        tail = []
        done = e0
        q = []
        adds = []
        for i in range(2, 16):
            adds.append((i, f'v_add_f32 v{acc[i & 1]}, v{S + i - 2}, v{S + i}' if i < 4 else f'v_add_f32 v{acc[i & 1]}, v{acc[i & 1]}, v{S + i}'))
        cv = [(2 * k + 1, C(k, k + 1)[0]) for k in range(8)]
        ai = ci = 0
        for i in range(e0, 16):
            out += E(i, i + 1)
            if ai < len(adds) and adds[ai][0] < i:
                out.append(adds[ai][1]); ai += 1
            if i % 2 and ci < 5 and cv[ci][0] < i:
                out.append(cv[ci][1]); ci += 1
            elif ai < len(adds) and adds[ai][0] < i:
                out.append(adds[ai][1]); ai += 1
        out.append(cv[ci][1]); ci += 1
        out += [a for _, a in adds[ai:]]
        out.append(f'v_add_f32 v{vLT}, v{vLT}, v{vT}')
        out += cmpv + [c_ for _, c_ in cv[ci:]]
        return out
    seq = ['s_waitcnt lgkmcnt(9)', pv(0, 0, 0)]
    if o.sched > 3:
        seq += [addr(vV, sE1, vVb)]
    seq += [pv(1, 1, 0)]
    if o.sched == 1:
        seq += ['s_nop 3'] + F(0, 4) + [pv(2, 2, 0)] + F(4, 8) + [pv(3, 3, 0)]
        seq += [kread(s) for s in range(4)] + ['s_waitcnt lgkmcnt(4)', pv(4, 0, 1), kread(4)]
        seq += F(8, 12) + [pv(5, 1, 1), kread(5)] + F(12, 16) + [pv(6, 2, 1), kread(6)] + mins
        seq += [pv(7, 3, 1), kread(7)] + lo + rfl + E(0, 16) + A(1, 16) + cmpv + C(0, 8)
    elif o.sched in (2, 4, 5):
        seq += [kread(0), kread(1), pv(2, 2, 0), kread(2)] + F(0, 4) + [pv(3, 3, 0), kread(3)] + F(4, 8 if o.sched < 4 else 7)
        seq += ['s_waitcnt lgkmcnt(4)', pv(4, 0, 1), kread(4)]
        if o.sched == 2:
            seq += F(8, 12) + [pv(5, 1, 1), kread(5)] + F(12, 16) + [pv(6, 2, 1), kread(6)] + mins + E(0, 1)
        else:
            seq += F(7, 11) + [pv(5, 1, 1), kread(5)] + F(11, 15) + [pv(6, 2, 1), kread(6)] + F(15, 16) + mins
        seq += [pv(7, 3, 1), kread(7)] + lo + rfl
        if o.sched == 2:
            seq += E(1, 16) + A(1, 16) + cmpv + C(0, 8)
        elif o.sched == 4:
            seq += E(0, 16) + A(1, 16) + cmpv + C(0, 8)
        else:
            seq += vseg(0)
    elif o.sched in (3, 6):
        seq += [kread(0), kread(1), pv(2, 2, 0), kread(2)] + F(0, 4) + [pv(3, 3, 0), kread(3)] + F(4, 6) + E(0, 1)
        seq += ['s_waitcnt lgkmcnt(4)', pv(4, 0, 1), kread(4)]
        seq += F(6, 8) + E(1, 2) + [pv(5, 1, 1), kread(5)] + F(8, 10) + E(2, 3) + [pv(6, 2, 1), kread(6)] + mins + E(3, 4)
        seq += [pv(7, 3, 1), kread(7)] + lo + rfl
        if o.sched == 3:
            seq += F(10, 16) + E(4, 16) + A(1, 16) + cmpv + C(0, 8)
        else:
            seq += vseg(4, 10)
    elif o.sched == 7:
        seq += [kread(0), kread(1), pv(2, 2, 0), kread(2)] + F(0, 3) + [pv(3, 3, 0), kread(3)] + F(3, 5)
        seq += ['s_waitcnt lgkmcnt(4)', pv(4, 0, 1), kread(4)]
        seq += F(5, 8) + [pv(5, 1, 1), kread(5)] + F(8, 11) + [pv(6, 2, 1), kread(6)] + mins
        seq += [pv(7, 3, 1), kread(7)] + lo + rfl + vseg(0, 11)
    elif o.sched == 8:
        seq += [kread(0), kread(1), pv(2, 2, 0), kread(2), 's_nop 0'] + E(0, 1) + [pv(3, 3, 0), kread(3)] + E(1, 3)
        seq += ['s_waitcnt lgkmcnt(4)', pv(4, 0, 1), kread(4)]
        seq += E(3, 5) + [pv(5, 1, 1), kread(5)] + E(5, 7) + [pv(6, 2, 1), kread(6)] + mins + E(7, 8)
        seq += [pv(7, 3, 1), kread(7)] + lo + rfl + vseg(8, 16)
    elif o.sched == 9:
        seq += [kread(0), kread(1), pv(2, 2, 0), kread(2)] + [pv(3, 3, 0), kread(3)]
        seq += ['s_waitcnt lgkmcnt(4)', pv(4, 0, 1), kread(4)]
        seq += [pv(5, 1, 1), kread(5)] + [pv(6, 2, 1), kread(6)] + mins
        seq += [pv(7, 3, 1), kread(7)] + lo + rfl + vseg(0, 16)
    if o.klate:
        ks = [x for x in seq if x.startswith('ds_read_b128')]
        seq = [x for x in seq if not x.startswith('ds_read_b128')]
        seq = ['s_waitcnt lgkmcnt(0)' if x == 's_waitcnt lgkmcnt(4)' else x for x in seq]
        i = seq.index(rfl[0]) + 1
        tail = seq[i:]
        seq = seq[:i]
        if o.klate == 1:
            seq += ks + tail
        else:
            for k, x in enumerate(tail):
                if k < 8:
                    seq.append(ks[k])
                seq.append(x)
    if o.fine:
        seq = finewaits(seq, o.fine, o.epub)
    g.e(seq)
    if o.pl:
        lad = dict((int(a), int(b)) for a, b in (x.split(':') for x in o.pl.split(',')))
        body = g.L[loop_start:]
        del g.L[loop_start:]
        k = 0
        for x in body:
            g.L.append(x)
            if 'v_mfma' in x:
                k += 1
                if k in lad:
                    g.e(f's_setprio {lad[k]}')
    g.many(f'''
        {'s_nop 0' if o.m3 or o.m5 else 's_cbranch_vccnz FRESH'}
        {f'ds_write_b32 v{vPA}, v{FL + 1}' if o.epub else None}
        s_cmp_gt_u32 {sP}, {sE0}
        s_cbranch_scc0 LATE
    CONT:
    ''')
    if o.itst:
        g.stamp()
    g.many(f'''
        s_sub_u32 {sRem}, {sRem}, 1
        s_cbranch_scc1 FINAL
        s_cmp_eq_u32 {sRem}, {sMaskAt}
        s_cbranch_scc0 LOOP
        s_mov_b32 s27, 0
    MASK:
        v_mov_b32 v{FL}, s{H + 2}
        s_mov_b32 exec_lo, 0
        v_lshrrev_b32 v{FL}, 16, v{FL}
        s_mov_b32 exec_lo, -1
    ''')
    for i in range(16):
        bit = 4 * (i % 4) + i // 4
        g.e(f'v_bfe_i32 v{S + i}, v{FL}, {bit}, 1')
    for i in range(16):
        g.e(f'v_lshlrev_b32 v{S + i}, 23, v{S + i}')
    g.many(f'''
        s_waitcnt lgkmcnt(0)
        s_cmp_eq_u32 s27, 0
        {qk(0)}
        s_cbranch_scc1 L_BACK
        s_branch F_BACK
    ''')
    g.lab('FINAL')
    g.stamp()
    order = [(b, j) for b in range(4) for j in range(2)]
    g.e('s_waitcnt lgkmcnt(4)')
    for k in range(5):
        g.e(vread(k, *order[k]))
    X = S
    vW = [vSW, X, X + 1, X + 2]
    vR = [X + 4, X + 5, X + 6, X + 7]
    vG = [X + 8, X + 9, X + 10, X + 11]
    ln = X + 12

    def mul(b):
        if o.pk:
            return [f'v_pk_mul_f32 {r(O + 16 * b + i, 2)}, {r(O + 16 * b + i, 2)}, {r(vL, 2)} op_sel_hi:[1,0]' for i in range(0, 16, 2)]
        return [f'v_mul_f32 v{O + 16 * b + i}, v{O + 16 * b + i}, v{vL}' for i in range(16)]

    def blk(b):
        m = mul(b)
        h = len(m) // 2
        out = []
        for gq in range(2):
            d = Q + 8 * b + 4 * gq
            out += m[gq * h:(gq + 1) * h]
            for k in range(4):
                i = O + 16 * b + 8 * gq + 2 * k
                out.append(f'v_cvt_pk_bf16_f32 v{d + k}, v{i}, v{i + 1}')
            out.append(f'ds_write_b128 v{vW[2 * (b & 1) + gq]}, {r(d, 4)}')
        return out

    def rd(rnd):
        return [f'ds_read_b128 {r(O + 32 * rnd + 4 * k, 4)}, v{vR[k]} offset:{1024 * k}' for k in range(4)]

    def stv(rnd, extra):
        out = []
        for k in range(4):
            out.append(f's_waitcnt lgkmcnt({3 - k + extra})')
            out.append(f'buffer_store_dwordx4 {r(O + 32 * rnd + 4 * k, 4)}, v{vG[k]}, s[4:7], 0 offen offset:{128 * rnd}{st}')
        return out
    seq = []
    seq += [f'v_add_f32 v{vL}, v{vL}, v{vLT}', f's_movrels_b32 s3, s{TB + 5}', f's_xor_b32 s4, s{H}, s15', 's_add_u32 s4, s10, s4',
            f'v_mov_b32 v{FL + 1}, v{vL}', f's_addc_u32 s5, s11, 0', f's_mov_b32 s6, s{H + 1}',
            f'v_permlane32_swap_b32 v{vL}, v{FL + 1}', f'v_mov_b32 v{vT}, s3',
            f'v_add_f32 v{vL}, v{vL}, v{FL + 1}',
            f'v_mbcnt_lo_u32_b32 v{ln}, -1, 0', f'v_rcp_f32 v{vL}, v{vL}', f'v_mbcnt_hi_u32_b32 v{ln}, -1, v{ln}']
    if o.eprio:
        seq += [f's_setprio {o.eprio[0]}']
    seq += ['s_waitcnt lgkmcnt(8)', pv(0, *order[0])] + vread(5, *order[5])
    seq += [f'v_lshrrev_b32 v{ln + 1}, 3, v{ln}', f'v_and_b32 v{ln + 2}, 7, v{ln}', f'v_lshrrev_b32 v{ln}, 5, v{ln}']
    seq += ['s_waitcnt lgkmcnt(8)', pv(1, *order[1])] + vread(6, *order[6])
    seq += [f'v_xor_b32 v{ln}, v{ln}, v{ln + 2}', f'v_lshl_add_u32 v{vR[0]}, v{ln + 1}, 7, s13', f'v_xor_b32 v{vW[1]}, 32, v{vSW}']
    seq += ['s_waitcnt lgkmcnt(8)', pv(2, *order[2])] + vread(7, *order[7])
    seq += [f'v_lshl_add_u32 v{vR[0]}, v{ln}, 4, v{vR[0]}', f'v_xor_b32 v{vW[2]}, 64, v{vSW}', f'v_xor_b32 v{vW[3]}, 0x60, v{vSW}']
    b0 = blk(0)
    k = 5
    seq += ['s_waitcnt lgkmcnt(8)', pv(3, *order[3])] + b0[:k]
    nw = lambda x: sum(1 for i in x if i.startswith('ds_write'))
    seq += [f's_waitcnt lgkmcnt({6 + nw(b0[:k])})', pv(4, *order[4])] + b0[k:2 * k]
    seq += [f's_waitcnt lgkmcnt({4 + nw(b0[:2 * k])})', pv(5, *order[5])] + b0[2 * k:3 * k]
    seq += [f's_waitcnt lgkmcnt({2 + nw(b0[:3 * k])})', pv(6, *order[6])] + b0[3 * k:4 * k]
    seq += [f's_waitcnt lgkmcnt({nw(b0[:4 * k])})', pv(7, *order[7])]
    seq += pub(g, vPA, vT)
    if o.eprio:
        seq += [f's_setprio {o.eprio[1]}']
        if len(o.eprio) > 3:
            seq += ['s_cmp_eq_u32 s3, 0xff000000', 's_cbranch_scc1 E_LAST', f's_setprio {o.eprio[3]}']
            if len(o.eprio) > 4:
                seq += ['s_cmp_ge_u32 s14, 8', 's_cbranch_scc0 E_LAST', f's_setprio {o.eprio[4]}']
            seq += ['E_LAST:']
    seq += b0[4 * k:] + blk(1)
    seq += [f'v_xor_b32 v{vR[1]}, 32, v{vR[0]}', f'v_xor_b32 v{vR[2]}, 64, v{vR[0]}', f'v_xor_b32 v{vR[3]}, 0x60, v{vR[0]}']
    seq += rd(0)
    seq += [f'v_lshlrev_b32 v{vG[0]}, 12, v{ln + 1}', f'v_lshl_add_u32 v{vG[0]}, v{ln + 2}, 4, v{vG[0]}',
            f'v_add_u32 v{vG[1]}, 0x8000, v{vG[0]}', f'v_add_u32 v{vG[2]}, 0x10000, v{vG[0]}', f'v_add_u32 v{vG[3]}, 0x18000, v{vG[0]}']
    seq += blk(2)
    seq += stv(0, 2)
    seq += blk(3) + rd(1) + stv(1, 0)
    if o.eprio:
        seq += [f's_setprio {o.eprio[2]}']
    g.many('\n'.join(seq))
    g.stamp()
    g.e('s_branch TASK')
    g.lab('C_END')
    if o.stamps:
        g.e('s_waitcnt vmcnt(0)')
        g.stamp()
        g.stampval('s12')
    g.stamp_out()
    g.lab('END')
    g.e('s_endpgm')
    g.many(f'''
    FMASK:
        s_mov_b32 s27, 1
        s_branch MASK
    RESCALE:
        v_sub_f32 v{t1}, v{t0}, v{vNM}
        v_exp_f32 v{t1}, v{t1}
        s_nop 0
        v_mul_f32 v{vL}, v{vL}, v{t1}
    ''')
    for i in range(64):
        g.e(f'v_mul_f32 v{O + i}, v{O + i}, v{t1}')
    g.e('s_branch R_BACK')


def slots_of(plan, orders, wins, ring, o):
    if o.spec and 'slots' in o.spec and not o.fifo:
        return o.spec['slots']
    if o.fifo:
        return [[i % ring for i in range(len(x))] for x in orders]
    import json
    P = json.load(open('calP.json'))
    P['RING'] = ring
    m, out = xsim2.run(plan, orders, wins, P)
    assert m < 1e8
    return [[out[c].slot[i] for i in range(len(orders[c]))] for c in range(32)]


def tables(plan, ring, o):
    words = []
    orders = [[tuple(x) for x in od] for od in o.spec['orders']]
    wins = o.spec['wins']
    slots = slots_of(plan, orders, wins, ring, o)
    rots = o.spec.get('rot')
    if o.rot == 'none':
        rot = lambda s, hb: 0
    elif o.rot == 'spec':
        rot = lambda s, hb: rots[2 * s + hb]
    else:
        tb = eval(o.rot)
        rot = lambda s, hb: tb(s, hb) & 7
    col = lambda s, hb: rot(s, hb) * 512 + hb * 256
    users = {}
    for cu in plan:
        for j in cu:
            users[(j[0], j[1])] = users.get((j[0], j[1]), 0) + 1
    for gi, cu in enumerate(plan):
        order = orders[gi]
        items, hdr = PL.stream_from_order(cu, order, 99)
        us, th = xsim2.users_thr(cu, order)
        rel = PL.release_need(cu, order)
        w = [0] * (GSTRIDE // 4)
        assert len(items) <= 62
        occ = {}
        for i, (ty, row0, hb, end) in enumerate(items):
            win = wins[gi][i]
            if win == 0:
                assert o.trick
                win = 1 | 8
            b = 64 * (i & 1) + (i >> 1) * 2
            isx = order[i][0] == 'X'
            sq = order[i][2] if isx else cu[order[i][1]][0]
            w[b] = row0 * 4096 + col(sq, hb)
            w[b + 1] = (end * 4096) | (ty == 'V') | ((ty == 'K') << 1) | (win << 2)
            assert end * 4096 < 1 << 25
            if o.fifo and i >= ring:
                w[b] |= 255 | ((i - ring + 1) << 25)
            if isx:
                w[b + 1] |= 64
                continue
            sl = slots[gi][i]
            assert 0 <= sl < ring
            w[b + 1] |= sl << 25
            if not o.fifo and sl in occ:
                pv_ = occ[sl]
                assert rel[pv_] < i and i >= 6, (gi, i, pv_, rel[pv_])
                w[b] |= us[pv_] | ((th[pv_] + 1) << 25)
            occ[sl] = i
            j = cu[order[i][1]]
            if (o.nt >= 1 and ty == 'Q') or (o.nt >= 2 and users[(j[0], j[1])] == 1):
                w[b + 1] |= 16
        sa = lambda it: slots[gi][it] * SLOT
        for c in range(8):
            s = []
            for h in hdr[c]:
                s += [h['row0'] * 4096 + col(h['seq'], h['hb']), h['nvq'] * 4096 - 3840, (0xffffffff << h['nvl']) & 0xffffffff,
                      sa(h['qitem']) | (max(h['qitem'], h['k0']) << 24), sa(h['k0']) | ((h['n'] - 1) << 24),
                      (min(h['qitem'], h['k0']) << 24) | (h['n'] - 1 - h['mpos'] if h['nvl'] < 32 else 255)]
                for kn, vn in h['tl']:
                    s += [(sa(kn) if kn else 0) | (max(kn, vn) << 24), sa(vn) | (vn << 24)]
            s += [0, 0, 0, 0, 0, 255 << 24]
            assert len(s) <= 62, len(s)
            w[64 * (c + 2):64 * (c + 2) + len(s)] = s
        words += w
    return words


def main():
    ap = argparse.ArgumentParser()
    ap.add_argument('-o', default='standalone__varlen_attn_packed__ragged.s')
    ap.add_argument('--stamps', action='store_true')
    ap.add_argument('--mini', action='store_true')
    ap.add_argument('--probe', type=int, default=0)
    ap.add_argument('--probe2', type=int, default=0)
    ap.add_argument('--probe3', type=int, default=0)
    ap.add_argument('--p1max', type=int, default=32)
    ap.add_argument('--pk', action='store_true')
    ap.add_argument('--eprio', default='')
    ap.add_argument('--win', default='3', help='W or W,Wlow,first group,items')
    ap.add_argument('--order', default='sim')
    ap.add_argument('--lprio', type=int, default=3)
    ap.add_argument('--itst', action='store_true')
    ap.add_argument('--pace', type=int, default=0)
    ap.add_argument('--klate', type=int, default=0)
    ap.add_argument('--pl', default='')
    ap.add_argument('--lstamp', type=int, default=1)
    ap.add_argument('--lacc', type=int, default=0)
    ap.add_argument('--pprio', type=int, default=3)
    ap.add_argument('--sst', type=int, default=0)
    ap.add_argument('--epub', type=int, default=0)
    ap.add_argument('--zf', type=int, default=0)
    ap.add_argument('--nb', type=int, default=0)
    ap.add_argument('--dup', type=int, default=0)
    ap.add_argument('--trick', type=int, default=0)
    ap.add_argument('--spec', default='')
    ap.add_argument('--px', type=int, default=1)
    ap.add_argument('--nof', type=int, default=0)
    ap.add_argument('--fine', type=int, default=0)
    ap.add_argument('--m5', type=int, default=0)
    ap.add_argument('--ring', type=int, default=15)
    ap.add_argument('--nt', type=int, default=0, help='1: Q, 2: Q + unshared KV')
    ap.add_argument('--stpol', default='nt')
    ap.add_argument('--m1', type=int, default=0)
    ap.add_argument('--m3', type=int, default=0)
    ap.add_argument('--sched', type=int, default=2)
    ap.add_argument('--prio', default='120')
    ap.add_argument('--lsleep', type=int, default=2)
    ap.add_argument('--csleep', type=int, default=1)
    ap.add_argument('--execpub', action='store_true')
    ap.add_argument('--align', action='store_true')
    ap.add_argument('--qsplit', type=int, default=1)
    ap.add_argument('--plan', default='h2')
    ap.add_argument('--fifo', type=int, default=0)
    ap.add_argument('--fprio', default='')
    ap.add_argument('--rot', default='none')
    o = ap.parse_args()
    if o.stpol:
        o.stpol = ' ' + o.stpol.replace('_', ' ')
    if o.prio == 'none':
        o.prio = ''
    lay = dict(RING=o.ring, RINGB=o.ring * SLOT)
    lay['STG'] = lay['RINGB']
    lay['FULLA'] = lay['STG'] + 8 * 4096
    lay['PROGA'] = lay['FULLA'] + 16
    lds = lay['FULLA'] + 64
    assert lds <= 163840 and lay['STG'] % 128 == 0
    g = Gen(o)
    ref = open('standalone__varlen_attn_packed__ragged.s.ref').read().split('\n')
    head = [l for l in ref[:12] if l.startswith(';') and '@launch' not in l]
    out = head + [f'; @launch grid=(256,1,1) block=(768,1,1) lds={lds}',
                  '.amdgcn_target "amdgcn-amd-amdhsa--gfx950"', '.text', f'.globl {NAME}', '.p2align 8',
                  f'.type {NAME},@function', f'{NAME}:']
    g.many(f'''
        s_cmp_ge_u32 s2, 256
        s_cbranch_scc1 END
        v_lshrrev_b32 v1, 6, v0
        s_getpc_b64 s[12:13]
    PCREF:
        s_load_dwordx4 s[4:7], s[0:1], 0
        v_readfirstlane_b32 s14, v1
        s_load_dwordx2 s[8:9], s[0:1], 16
        s_lshr_b32 s3, s2, 3
        s_mul_i32 s3, s3, {GSTRIDE}
        s_and_b32 s15, s14, 1
        s_sub_u32 s28, s14, 2
        s_cmp_ge_u32 s14, 4
        s_cselect_b32 s15, s28, s15
        s_lshl_b32 s15, s15, 8
        s_add_u32 s3, s3, s15
        s_add_u32 s3, s3, TABLE-PCREF
        s_add_u32 s12, s12, s3
        s_addc_u32 s13, s13, 0
        s_load_dwordx16 s[36:51], s[12:13], 0
        s_load_dwordx16 s[52:67], s[12:13], 64
        s_load_dwordx16 s[68:83], s[12:13], 128
        s_load_dwordx16 s[84:99], s[12:13], 192
        s_load_dwordx2 s[10:11], s[0:1], 32
        v_lshlrev_b32 v3, 2, v1
        v_add_u32 v3, {lay['FULLA']}, v3
        s_and_b32 s15, s2, 7
        s_lshl_b32 s15, s15, 9
        v_and_b32 v0, 63, v0
    ''')
    if o.probe and not o.stamps:
        g.e('s_memrealtime s[100:101]')
    if o.stamps:
        g.idx, g.m0save = 's32', None
        g.e('s_mov_b32 s32, 0')
        g.e('v_mov_b32 v167, 0')
        g.e('s_memrealtime s[34:35]')
        g.e('s_memtime s[100:101]')
        g.e('s_getreg_b32 s33, hwreg(HW_REG_HW_ID)')
        g.stampval('s33')
        g.e('s_getreg_b32 s33, hwreg(HW_REG_XCC_ID)')
        g.stampval('s33')
        g.e('s_waitcnt lgkmcnt(0)')
        g.stampval('s34')
        g.stampval('s100')
    g.many('''
        s_cmp_ge_u32 s14, 4
        s_cbranch_scc1 CONSUMER
    ''')
    gen_loader(g, lay)
    gen_consumer(g, lay)
    if o.spec:
        import json
        o.spec = json.load(open(o.spec))
        plan = [[(j[0], j[1], [tuple(x) for x in j[2]]) + tuple(j[3:]) for j in cu] for cu in o.spec['plan']]
    else:
        plan = PL.get_plan(o.plan)
    PL.check_plan(plan)
    tw = tables(plan, o.ring, o)
    g.L.append('.p2align 6')
    g.lab('TABLE')
    for i in range(0, len(tw), 8):
        g.e('.long ' + ', '.join(hex(x) for x in tw[i:i + 8]))
    out += g.L
    out += ['.section .rodata,"a"', '.p2align 6', f'.amdhsa_kernel {NAME}', '  .amdhsa_next_free_vgpr 168',
            '  .amdhsa_next_free_sgpr 102', '  .amdhsa_accum_offset 168', '  .amdhsa_group_segment_fixed_size 0',
            '  .amdhsa_kernarg_size 56', '  .amdhsa_user_sgpr_count 2', '  .amdhsa_user_sgpr_kernarg_segment_ptr 1',
            '  .amdhsa_system_sgpr_workgroup_id_x 1', '.end_amdhsa_kernel', '']
    open(o.o, 'w').write('\n'.join(out))


main()
```
